```python
import torch

def _softmax(x, axis=-1):
    return torch.softmax(x, dim=axis)
def _gelu(x):
    return torch.nn.functional.gelu(x, approximate="tanh")
def _silu(x):
    return torch.nn.functional.silu(x)
def _sigmoid(x):
    return torch.sigmoid(x)
def _layernorm(x, axis=-1, eps=1e-5):
    m = x.mean(dim=axis, keepdim=True)
    v = x.var(dim=axis, keepdim=True, unbiased=False)
    return (x - m) / torch.sqrt(v + eps)
def _scatter_add(tgt, idx, src, axis=0):
    return tgt.clone().index_add_(axis, idx, src)
def _segment_sum(src, seg, n):
    out = torch.zeros((n,) + src.shape[1:], dtype=src.dtype)
    return out.index_add_(0, seg, src)
def _pad(x, pw):
    flat = tuple(v for pair in reversed(pw) for v in pair)
    return torch.nn.functional.pad(x, flat)

kernel_name = 'sequential_preLN__mha_block__mixer_token_mlp__prompt'

def setup_inputs():

    _w = (lambda a: (lambda t: t.to(torch.bfloat16) if t.is_floating_point() else t)(torch.as_tensor(a)))
    def _A_setup():
        B, S, D, H = 1, 2048, 512, 32
        return {
            "x": _w((lambda *s: torch.randn(*s, dtype=torch.bfloat16) * 0.05)(B, S, D)),
            "wqkv": _w((lambda *s: torch.randn(*s, dtype=torch.bfloat16) * 0.05)(D, 3 * D)),
            "wo": _w((lambda *s: torch.randn(*s, dtype=torch.bfloat16) * 0.05)(D, D)),
        }
    _A_in = _A_setup()

    def _B_setup():
        B, S, D, F = 1, 2048, 512, 1792
        return {
            "x": _w((lambda *s: torch.randn(*s, dtype=torch.bfloat16) * 0.05)(B, S, D)),
            "w1": _w((lambda *s: torch.randn(*s, dtype=torch.bfloat16) * 0.8)(S, F) * (S ** -0.5)),
            "b1": _w((lambda *s: torch.randn(*s, dtype=torch.bfloat16) * 12.8)(F) * 0.02),
            "w2": _w((lambda *s: torch.randn(*s, dtype=torch.bfloat16) * 0.2)(F, S) * (F ** -0.5)),
            "b2": _w((lambda *s: torch.randn(*s, dtype=torch.bfloat16) * 3.2)(S) * 0.02),
        }
    _B_in = _B_setup()

    return {
        "A_x": _A_in["x"],
        "A_wqkv": _A_in["wqkv"],
        "A_wo": _A_in["wo"],
        "B_x": _B_in["x"],
        "B_w1": _B_in["w1"],
        "B_b1": _B_in["b1"],
        "B_w2": _B_in["w2"],
        "B_b2": _B_in["b2"],
    }

def reference(A_x, A_wqkv, A_wo, B_x, B_w1, B_b1, B_w2, B_b2):
    def _A_ref(x, wqkv, wo):
        B, S, D = x.shape
        H = 32
        Dh = D // H
        qkv = (lambda x, *d: x.permute(*d))((x @ wqkv).reshape(B, S, 3, H, Dh), 2, 0, 3, 1, 4)
        q, k, v = qkv[0], qkv[1], qkv[2]
        scores = torch.einsum("bhqd,bhkd->bhqk", q, k) * (Dh ** -0.5)
        p = _softmax(scores, axis=-1)
        o = torch.einsum("bhqk,bhkd->bhqd", p, v)
        return (lambda x, *d: x.permute(*d))(o, 0, 2, 1, 3).reshape(B, S, D) @ wo

    def _B_ref(x, w1, b1, w2, b2):
        B, S, D = x.shape
        h = _layernorm(x, axis=-1)
        u = torch.einsum("bsd,sf->bdf", h, w1) + b1
        u = _gelu(u)
        y = torch.einsum("bdf,fs->bds", u, w2) + b2
        return (lambda x, *d: x.permute(*d))(y, 0, 2, 1)

    x = A_x
    h = x + _A_ref(_layernorm(x, axis=-1), A_wqkv, A_wo)
    h2 = h + _B_ref(_layernorm(h, axis=-1), B_w1, B_b1, B_w2, B_b2)
    return h2
```

```python
import re

class Asm:
    def __init__(self):
        self.lines = []
    def __call__(self, s):
        for ln in s.split("\n"):
            ln = ln.strip()
            if ln:
                self.lines.append(ln)
    def label(self, n):
        self.lines.append(n + ":")
    def comment(self, c):
        self.lines.append("; " + c)
    def nop(self, n):
        while n > 0:
            k = min(n, 16)
            self.lines.append(f"s_nop {k-1}")
            n -= k

def vr(a, n=1):
    return f"v{a}" if n == 1 else f"v[{a}:{a+n-1}]"
def ar(a, n=1):
    return f"a{a}" if n == 1 else f"a[{a}:{a+n-1}]"
def sr(a, n=1):
    return f"s{a}" if n == 1 else f"s[{a}:{a+n-1}]"

REG_RE = re.compile(r"^-?(?:abs\()?\|?([vas])(?:(\d+)|\[(\d+):(\d+)\])\|?\)?$")
def regs_of(op):
    op = op.strip()
    m = REG_RE.match(op)
    if m:
        k = m.group(1)
        if m.group(2) is not None:
            return {(k, int(m.group(2)))}
        return {(k, i) for i in range(int(m.group(3)), int(m.group(4)) + 1)}
    if op in ("vcc", "exec", "m0", "scc"):
        return {("x", op)}
    if op in ("vcc_lo", "vcc_hi"):
        return {("x", "vcc")}
    if op in ("exec_lo", "exec_hi"):
        return {("x", "exec")}
    return set()

TRANS = ("v_exp_f32", "v_log_f32", "v_rcp_f32", "v_rsq_f32", "v_sqrt_f32", "v_sin_f32", "v_cos_f32", "v_exp_f16", "v_rcp_iflag_f32")

class Ins:
    def __init__(self, text):
        self.text = text
        t = text.split(";")[0].strip()
        self.is_label = t.endswith(":")
        self.is_comment = (t == "") or t.startswith(".")
        self.op = ""
        self.ops = []
        self.w = set(); self.r = set()
        self.states = 0
        if self.is_label or self.is_comment:
            return
        parts = t.split(None, 1)
        self.op = parts[0]
        rest = parts[1] if len(parts) > 1 else ""
        ops = [o.strip() for o in re.split(r",(?![^\[]*\])", rest)] if rest else []
        self.mods = ""
        if ops:
            last = ops[-1].split(None, 1)
            ops[-1] = last[0]
            if len(last) > 1:
                self.mods = last[1]
        self.ops = ops
        op = self.op
        self.states = 1
        if op == "s_nop":
            self.states = int(ops[0]) + 1
        self.mfma = op.startswith("v_mfma")
        self.valu = op.startswith("v_") and not self.mfma
        self.trans = any(op.startswith(x) for x in TRANS)
        self.vmem = op.startswith(("buffer_", "global_", "flat_"))
        self.ds = op.startswith("ds_")
        self.salu = op.startswith("s_")
        self.dpp = ("row_" in self.mods) or ("quad_perm" in self.mods) or ("wave_" in self.mods) or op.endswith("_dpp") or ("row_" in rest)
        self.permlane = op.startswith("v_permlane")
        self.lds_dma = self.vmem and (" lds" in (" " + self.mods) or op.startswith("global_load_lds"))
        R = regs_of
        if self.mfma:
            self.w = R(ops[0]); self.a = R(ops[1]); self.b = R(ops[2]); self.c = R(ops[3])
            self.r = self.a | self.b | self.c
            self.passes = 8 if "32x32" in op else 4
        elif op.startswith("v_cmp"):
            self.w = R(ops[0])
            for o in ops[1:]: self.r |= R(o)
        elif op.startswith(("v_readfirstlane", "v_readlane")):
            self.w = R(ops[0])
            for o in ops[1:]: self.r |= R(o)
        elif self.permlane:
            self.w = R(ops[0]) | R(ops[1]); self.r = set(self.w)
        elif op.startswith(("v_add_co", "v_sub_co", "v_addc_co", "v_subb_co")):
            self.w = R(ops[0]) | R(ops[1])
            for o in ops[2:]: self.r |= R(o)
        elif self.valu:
            self.w = R(ops[0])
            for o in ops[1:]: self.r |= R(o)
            if op.startswith(("v_fmac", "v_dot2c", "v_pk_fmac", "v_writelane")) or self.dpp or "sdwa" in op:
                self.r |= self.w
            if op.startswith("v_cndmask") and len(ops) == 3:
                self.r |= {("x", "vcc")}
        elif self.vmem:
            st = "store" in op or "atomic" in op
            if self.lds_dma:
                for o in ops: self.r |= R(o)
                self.r |= {("x", "m0")}
            elif op.startswith("buffer_"):
                if st:
                    self.data = R(ops[0])
                    for o in ops: self.r |= R(o)
                    if "atomic" in op and "sc0" in self.mods: self.w = R(ops[0])
                else:
                    self.w = R(ops[0])
                    for o in ops[1:]: self.r |= R(o)
            else:
                if st:
                    self.data = R(ops[1])
                    for o in ops: self.r |= R(o)
                else:
                    self.w = R(ops[0])
                    for o in ops[1:]: self.r |= R(o)
            self.store = st
            self.wide = st and ("x4" in op or "x3" in op)
        elif self.ds:
            if op.startswith(("ds_read", "ds_bpermute", "ds_permute", "ds_swizzle")):
                self.w = R(ops[0])
                for o in ops[1:]: self.r |= R(o)
            else:
                for o in ops: self.r |= R(o)
        elif self.salu:
            if op.startswith(("s_cmp", "s_cbranch", "s_branch", "s_waitcnt", "s_barrier", "s_nop", "s_endpgm", "s_sleep", "s_setprio")):
                for o in ops: self.r |= R(o)
            else:
                if ops: self.w = R(ops[0])
                for o in ops[1:]: self.r |= R(o)
                if "saveexec" in op:
                    self.w |= {("x", "exec")}

def vregs(s):
    return {x for x in s if x[0] in ("v", "a")}
def sregs(s):
    return {x for x in s if x[0] == "s" or x == ("x", "vcc")}

def need(prev, cur):
    n = 0
    if prev.is_label or prev.is_comment or not prev.op: return 0
    pw = prev.w
    if prev.op.startswith("v_mfma"):
        p8 = prev.passes == 8
        D = prev.w
        if cur.op.startswith("v_mfma"):
            if D & (cur.a | cur.b): n = max(n, 12 if p8 else 8)
            if D & cur.c:
                if cur.c == D and cur.passes == prev.passes: pass
                else: n = max(n, 10 if p8 else 6)
            if D & cur.w and cur.c != D:
                n = max(n, 10 if p8 else 6)
        else:
            if (cur.valu or cur.vmem or cur.ds) and (D & (cur.r | cur.w)):
                n = max(n, 12 if p8 else 8)
        if cur.valu and (prev.c & cur.w):
            n = max(n, 7 if p8 else 3)
        return n
    if prev.valu:
        pv = vregs(pw); ps = sregs(pw)
        if cur.op.startswith("v_mfma") and (pv & cur.r): n = max(n, 2)
        if prev.trans and cur.valu and not cur.trans and (pv & cur.r): n = max(n, 1)
        if prev.trans and cur.op.startswith("v_mfma") and (pv & cur.r): n = max(n, 2)
        if cur.permlane and (pv & cur.r): n = max(n, 2)
        if cur.valu and cur.dpp and (pv & cur.r): n = max(n, 2)
        if cur.op.startswith(("v_readfirstlane", "v_readlane")) and (pv & cur.r): n = max(n, 1)
        if ps:
            if cur.valu and (ps & cur.r): n = max(n, 2)
            if cur.op.startswith(("v_readlane", "v_writelane")) and (ps & cur.r): n = max(n, 4)
            if cur.vmem and (ps & cur.r): n = max(n, 5)
            if cur.salu and (ps & cur.r): n = max(n, 4)
        if ("x", "exec") in pw:
            n = max(n, 5)
    if prev.salu:
        if ("x", "m0") in pw and cur.lds_dma if cur.op else False: n = max(n, 1)
    if prev.vmem and getattr(prev, "wide", False):
        if (prev.data & cur.w):
            n = max(n, 2 if cur.valu else 1)
    return n

def fix_hazards(lines, window=24, verbose=False):
    out = []; hist = []
    inserted = 0
    for ln in lines:
        cur = Ins(ln)
        if cur.is_label or cur.is_comment or not cur.op:
            out.append(ln); continue
        dist = 0; pad = 0
        for prev in reversed(hist[-window:]):
            nd = need(prev, cur)
            if nd > dist:
                pad = max(pad, nd - dist)
            dist += prev.states
            if dist > 20: break
        if pad > 0:
            inserted += pad
            if verbose: print(f"pad {pad} before: {ln}")
            k = pad
            while k > 0:
                m = min(k, 16)
                nop = Ins(f"s_nop {m-1}")
                out.append(nop.text); hist.append(nop); k -= m
        out.append(ln); hist.append(cur)
        if cur.op in ("s_branch", "s_endpgm"):
            hist = []
    return out, inserted

def check_backedges(lines):
    labels = {}
    ins = [Ins(l) for l in lines]
    for i, x in enumerate(ins):
        if x.is_label: labels[x.text.strip()[:-1]] = i
    probs = []
    for i, x in enumerate(ins):
        if x.op and x.op.startswith(("s_cbranch", "s_branch")):
            tgt = labels.get(x.ops[0])
            if tgt is None: continue
            tail = [y for y in ins[max(0, i-40):i+1] if y.op]
            head = [y for y in ins[tgt:tgt+60] if y.op][:30]
            seq = tail + head
            for k in range(len(tail), len(seq)):
                dist = 0
                for j in range(k-1, -1, -1):
                    if j < len(tail):
                        nd = need(seq[j], seq[k])
                        if nd > dist:
                            probs.append((x.text, seq[j].text, seq[k].text, nd, dist))
                    dist += seq[j].states
                    if dist > 20: break
    return probs
```

```python
import sys
sys.path.insert(0, "dev")
from asmlib import *

NAME = "sequential_preLN__mha_block__mixer_token_mlp__prompt"
WS_Q   = 0
WS_K   = 2 << 20
WS_V   = 4 << 20
WS_NRM = 6 << 20
WS_O   = 7 << 20
WS_ST  = 9 << 20
WS_H   = 10 << 20
WS_HT  = 12 << 20
WS_U   = 14 << 20
WS_SIZE = 16 << 20
KA_X, KA_WQKV, KA_WO, KA_W1, KA_B1, KA_W2, KA_B2, KA_OUT, KA_DBG, KA_WS = 0, 8, 16, 32, 40, 48, 56, 64, 72, 80
ONES = 0x3F803F80
LOG2E = 1.4426950408889634

def f2u(x):
    import struct
    return struct.unpack("<I", struct.pack("<f", x))[0]

def srd(a, s, ptr, size):
    a(f"s_mov_b32 s{s}, s{ptr}")
    a(f"s_and_b32 s{s+1}, s{ptr+1}, 0xffff")
    a(f"s_mov_b32 s{s+2}, {size}")
    a(f"s_mov_b32 s{s+3}, 0x00020000")

def kernel_head(a, name, nwg):
    a.lines.append(f".globl {name}")
    a.lines.append(".p2align 8")
    a.lines.append(f".type {name},@function")
    a.label(name)
    a(f"s_cmp_ge_u32 s2, {nwg}")
    a(f"s_cbranch_scc1 L_{name}_end")

def kernel_tail(a, name):
    a.label(f"L_{name}_end")
    a("s_endpgm")

def kd(name, nv=256, acc=256, ns=96):
    return f""".amdhsa_kernel {name}
  .amdhsa_next_free_vgpr {nv}
  .amdhsa_next_free_sgpr {ns}
  .amdhsa_accum_offset {acc}
  .amdhsa_group_segment_fixed_size 0
  .amdhsa_kernarg_size 88
  .amdhsa_user_sgpr_count 2
  .amdhsa_user_sgpr_kernarg_segment_ptr 1
  .amdhsa_system_sgpr_workgroup_id_x 1
.end_amdhsa_kernel
"""

def emit_identity_sigma(a, base, vl, t0, t1):
    a(f"v_and_b32 v{t0}, 31, v{vl}")
    a(f"v_lshrrev_b32 v{t1}, 5, v{vl}")
    a(f"v_lshlrev_b32 v{t1}, 2, v{t1}")
    a(f"v_sub_u32 v{t0}, v{t0}, v{t1}")
    for q in range(2):
        for i in range(4):
            c = 16 * q + (0, 2, 8, 10)[i]
            r = base + 4 * q + i
            a(f"v_mov_b32 v{r}, 0")
            a(f"v_cmp_eq_u32 vcc, {c}, v{t0}")
            a(f"v_cndmask_b32 v{r}, v{r}, v{t1+1}, vcc")
            a(f"v_cmp_eq_u32 vcc, {c+1}, v{t0}")
            a(f"v_cndmask_b32 v{r}, v{r}, v{t1+2}, vcc")

def emit_identity_consts(a, t1):
    a(f"v_mov_b32 v{t1+1}, 0x3f80")
    a(f"v_mov_b32 v{t1+2}, 0x3f800000")

def emit_identity_nat(a, base, vl, t0, t1):
    a(f"v_and_b32 v{t0}, 31, v{vl}")
    a(f"v_lshrrev_b32 v{t1}, 5, v{vl}")
    a(f"v_lshlrev_b32 v{t1}, 3, v{t1}")
    a(f"v_sub_u32 v{t0}, v{t0}, v{t1}")
    for q in range(2):
        for i in range(4):
            c = 16 * q + 2 * i
            r = base + 4 * q + i
            a(f"v_mov_b32 v{r}, 0")
            a(f"v_cmp_eq_u32 vcc, {c}, v{t0}")
            a(f"v_cndmask_b32 v{r}, v{r}, v{t1+1}, vcc")
            a(f"v_cmp_eq_u32 vcc, {c+1}, v{t0}")
            a(f"v_cndmask_b32 v{r}, v{r}, v{t1+2}, vcc")

def swap_add(a, v, t):
    a(f"v_mov_b32 v{t}, v{v}")
    a(f"v_permlane32_swap_b32 v{v}, v{t}")
    a(f"v_add_f32 v{v}, v{v}, v{t}")

MF = "v_mfma_f32_32x32x16_bf16"

def gen_A():
    a = Asm(); name = "ka_kernel"
    kernel_head(a, name, 256)
    a(f"s_load_dwordx2 s[4:5], s[0:1], {KA_X}")
    a(f"s_load_dwordx2 s[6:7], s[0:1], {KA_WQKV}")
    a(f"s_load_dwordx2 s[20:21], s[0:1], {KA_WS}")
    a("v_lshrrev_b32 v2, 6, v0")
    a("v_and_b32 v1, 63, v0")
    a("v_readfirstlane_b32 s22, v2")
    a("s_and_b32 s23, s2, 3")
    a("s_lshl_b32 s23, s23, 2")
    a("s_lshr_b32 s29, s2, 3")
    a("s_and_b32 s30, s29, 3")
    a("s_add_u32 s23, s23, s30")
    a("s_bfe_u32 s24, s2, 0x10002")
    a("s_lshl_b32 s24, s24, 3")
    a("s_lshr_b32 s30, s29, 2")
    a("s_add_u32 s24, s24, s30")
    a("s_lshl_b32 s25, s23, 17")
    a("s_lshl_b32 s30, s22, 15")
    a("s_add_u32 s25, s25, s30")
    a("s_mul_i32 s26, s22, 49152")
    a("s_lshl_b32 s30, s24, 6")
    a("s_add_u32 s26, s26, s30")
    SLOT = 28672; L0 = 1024
    a("s_lshl_b32 s27, s22, 12")
    a(f"s_add_u32 s27, s27, {L0}")
    a("s_lshl_b32 s28, s22, 10")
    a(f"s_add_u32 s28, s28, {L0 + 16384}")
    a("v_lshrrev_b32 v8, 3, v1")
    a("v_lshlrev_b32 v8, 10, v8")
    a("v_lshrrev_b32 v9, 4, v1")
    a("v_and_b32 v10, 7, v1")
    a("v_xor_b32 v9, v9, v10")
    for n in range(4):
        a(f"v_xor_b32 v10, {4*(n&1)}, v9")
        a(f"v_lshl_add_u32 v10, v10, 4, v8")
        a(f"v_add_u32 v{2+n}, {n*8192}, v10")
    a("v_lshrrev_b32 v8, 2, v1")
    a("s_movk_i32 s30, 3072")
    a("v_mul_lo_u32 v8, v8, s30")
    a("v_and_b32 v9, 3, v1")
    a("v_lshl_add_u32 v6, v9, 4, v8")
    a("s_waitcnt lgkmcnt(0)")
    srd(a, 8, 4, 2048 * 512 * 2)
    srd(a, 12, 6, 512 * 1536 * 2)
    srd(a, 16, 20, WS_SIZE)
    def dma_stage(s):
        slot = s % 5
        for n in range(4):
            a(f"s_add_u32 m0, s27, {slot*SLOT + n*1024 - s*128}")
            a("s_nop 0")
            a(f"buffer_load_dwordx4 v{2+n}, s[8:11], s25 offen offset:{s*128} lds")
        a(f"s_add_u32 s29, s26, {s*196608}")
        for t in range(3):
            a(f"s_add_u32 m0, s28, {slot*SLOT + t*4096 - t*1024}")
            a("s_nop 0")
            a(f"buffer_load_dwordx4 v6, s[12:15], s29 offen offset:{t*1024} lds")
    for s in range(5):
        dma_stage(s)
    a("v_and_b32 v8, 31, v1")
    a("v_lshrrev_b32 v9, 5, v1")
    a("v_bfe_u32 v10, v1, 1, 3")
    a("v_lshlrev_b32 v8, 7, v8")
    a("v_add_u32 v8, s27, v8")
    for ks in range(4):
        a(f"v_add_u32 v11, {2*ks}, v9")
        a("v_xor_b32 v11, v11, v10")
        a(f"v_lshl_add_u32 v{12+ks}, v11, 4, v8")
    a("v_bfe_u32 v8, v1, 2, 2")
    a("v_lshl_add_u32 v8, v9, 3, v8")
    a("v_lshlrev_b32 v8, 6, v8")
    a("v_bfe_u32 v10, v1, 4, 1")
    a("v_lshl_add_u32 v8, v10, 5, v8")
    a("v_and_b32 v10, 3, v1")
    a("v_lshl_add_u32 v8, v10, 3, v8")
    a(f"v_add_u32 v7, {L0 + 16384}, v8")
    a("s_lshl_b32 s30, s22, 10")
    a("v_add_u32 v11, s30, v7")
    XF = [16, 20]; WF = [24, 36]; CF = 48
    SUM = [60, 61]; SQ = [62, 63]; CS = [64, 65, 66, 67, 68, 69]
    ACC = [80, 96, 112]
    for r in SUM + SQ + CS: a(f"v_mov_b32 v{r}, 0")
    for b in ACC:
        for r in range(16): a(f"v_mov_b32 v{b+r}, 0")
    a(f"s_mov_b32 s31, {ONES:#x}")
    def reads(ks, buf):
        a(f"ds_read_b128 {vr(XF[buf],4)}, v{12+ks}")
        for t in range(3):
            for q in range(2):
                a(f"ds_read_b64_tr_b16 {vr(WF[buf]+4*t+2*q,2)}, v7 offset:{t*4096 + ks*1024 + q*256}")
    def creads():
        for t in range(3):
            for q in range(2):
                a(f"ds_read_b64_tr_b16 {vr(CF+4*t+2*q,2)}, v11 offset:{t*4096 + q*256}")
    def advance(s):
        d = ((s + 1) % 5 - s % 5) * SLOT
        for r in (12, 13, 14, 15, 7, 11):
            if d >= 0: a(f"v_add_u32 v{r}, {d}, v{r}")
            else: a(f"v_subrev_u32 v{r}, {-d}, v{r}")
    def allowed(s):
        issued = 5 if s <= 1 else min(8, s + 4)
        if s == 0: issued = 5
        return 7 * (issued - 1 - s)
    a(f"s_waitcnt vmcnt({allowed(0)})")
    a("s_barrier")
    reads(0, 0)
    for s in range(8):
        for ks in range(4):
            buf = ks & 1
            a("s_waitcnt lgkmcnt(0)")
            if ks < 3:
                reads(ks + 1, buf ^ 1)
                if ks == 1: creads()
            elif s < 7:
                a(f"s_waitcnt vmcnt({allowed(s+1)})")
                a("s_barrier")
                advance(s)
                reads(0, 0 if True else 0) if False else None
                reads(0, 0)
            x = XF[buf]
            for t in range(3):
                a(f"{MF} {vr(ACC[t],16)}, {vr(WF[buf]+4*t,4)}, {vr(x,4)}, {vr(ACC[t],16)}")
                if t == 0:
                    for i in range(4):
                        a(f"v_dot2c_f32_bf16 v{SUM[i&1]}, s31, v{x+i}") if False else a(f"v_dot2c_f32_bf16 v{SUM[i&1]}, s31, v{x+i}")
                if t == 1:
                    for i in range(4):
                        a(f"v_dot2c_f32_bf16 v{SQ[i&1]}, v{x+i}, v{x+i}")
            if ks == 2:
                pass
            if ks == 3:
                for t in range(3):
                    for i in range(4):
                        a(f"v_dot2c_f32_bf16 v{CS[2*t+(i&1)]}, s31, v{CF+4*t+i}")
                if s + 5 <= 7:
                    dma_stage(s + 5)
    SCR = L0 + 5 * SLOT
    a(f"v_add_f32 v60, v60, v61")
    a(f"v_add_f32 v62, v62, v63")
    for t in range(3): a(f"v_add_f32 v{64+t*2}, v{64+t*2}, v{65+t*2}")
    swap_add(a, 60, 70); swap_add(a, 62, 71)
    for t in range(3): swap_add(a, 64 + 2*t, 72 + t)
    a("v_and_b32 v8, 31, v1")
    a("v_lshlrev_b32 v8, 2, v8")
    a("s_mul_i32 s30, s22, 384")
    a(f"s_add_u32 s30, s30, {SCR}")
    a("v_add_u32 v9, s30, v8")
    for t in range(3): a(f"ds_write_b32 v9, v{64+2*t} offset:{t*128}")
    a(f"s_mov_b32 s30, {f2u(1.0/512):#x}")
    a("v_mul_f32 v60, s30, v60")
    a("v_mul_f32 v62, s30, v62")
    a("v_fma_f32 v62, -v60, v60, v62")
    a("v_max_f32 v62, 0, v62")
    a(f"v_add_f32 v62, {f2u(1e-5):#x}, v62")
    a("v_rsq_f32 v62, v62")
    a("v_sub_f32 v60, 0, v60")
    a("v_mov_b32 v61, v60")
    a("v_mov_b32 v63, v62")
    a(f"v_mul_f32 v74, {f2u(0.25*LOG2E):#x}, v62")
    a("v_mov_b32 v75, v74")
    a("s_waitcnt lgkmcnt(0)")
    a("s_barrier")
    a("v_lshlrev_b32 v10, 2, v1")
    a(f"v_add_u32 v10, {SCR}, v10")
    for w in range(4): a(f"ds_read_b32 v{64+w}, v10 offset:{w*384}")
    a(f"v_add_u32 v9, {SCR + 256}, v8")
    for w in range(4): a(f"ds_read_b32 v{68+w}, v9 offset:{w*384}")
    a("s_waitcnt lgkmcnt(0)")
    a("v_add_f32 v64, v64, v65"); a("v_add_f32 v66, v66, v67"); a("v_add_f32 v64, v64, v66")
    a("v_add_f32 v68, v68, v69"); a("v_add_f32 v70, v70, v71"); a("v_add_f32 v68, v68, v70")
    a("s_lshl_b32 s30, s22, 9")
    a(f"s_add_u32 s30, s30, {SCR + 2048}")
    a("v_lshlrev_b32 v10, 2, v1")
    a("v_add_u32 v10, s30, v10")
    a("ds_write_b32 v10, v64")
    a("v_add_u32 v9, s30, v8")
    a("ds_write_b32 v9, v68 offset:256")
    a("v_lshrrev_b32 v9, 5, v1")
    a("v_lshlrev_b32 v9, 4, v9")
    a("v_add_u32 v9, s30, v9")
    a("s_waitcnt lgkmcnt(0)")
    CSR = 128
    for t in range(3):
        for g in range(4):
            a(f"ds_read_b128 {vr(CSR+16*t+4*g,4)}, v9 offset:{t*128 + g*32}")
    emit_identity_consts(a, 77)
    IDS = 176
    emit_identity_sigma(a, IDS, 1, 76, 77)
    a("s_waitcnt lgkmcnt(0)")
    for t in range(3):
        for r in range(0, 16, 2):
            a(f"v_pk_fma_f32 {vr(ACC[t]+r,2)}, {vr(CSR+16*t+r,2)}, v[60:61], {vr(ACC[t]+r,2)}")
        sc = "v[74:75]" if t == 0 else "v[62:63]"
        for r in range(0, 16, 2):
            a(f"v_pk_mul_f32 {vr(ACC[t]+r,2)}, {vr(ACC[t]+r,2)}, {sc}")
    PK = 184
    for t in (2, 0, 1):
        for i in range(8):
            a(f"v_cvt_pk_bf16_f32 v{PK+8*t+i}, v{ACC[t]+2*i}, v{ACC[t]+2*i+1}")
        if t == 2:
            a(f"{MF} {vr(128,16)}, {vr(PK+16,4)}, {vr(IDS,4)}, 0")
            a(f"{MF} {vr(128,16)}, {vr(PK+20,4)}, {vr(IDS+4,4)}, {vr(128,16)}")
    for t in range(2):
        for hd in range(2):
            r = 64 + 2*t + hd
            b = ACC[t] + 8*hd
            a(f"v_mul_f32 v{r}, v{b}, v{b}")
            for i in range(1, 8):
                a(f"v_fma_f32 v{r}, v{b+i}, v{b+i}, v{r}")
    for k in range(4): swap_add(a, 64 + k, 70 + k)
    for sh in (1, 2, 4, 8):
        for k in range(4):
            a(f"v_max_u32_dpp v{64+k}, v{64+k}, v{64+k} row_ror:{sh} row_mask:0xf bank_mask:0xf")
    a("s_lshl_b32 s29, s23, 2")
    a("s_add_u32 s29, s29, s22")
    a("s_lshl_b32 s30, s24, 7")
    a("s_add_u32 s30, s30, s29")
    a("s_lshl_b32 s30, s30, 10")
    a("v_lshlrev_b32 v8, 4, v1")
    for t in range(2):
        a(f"s_add_u32 s32, s30, {WS_Q if t == 0 else WS_K}")
        a(f"buffer_store_dwordx4 {vr(PK+8*t,4)}, v8, s[16:19], s32 offen")
        a(f"s_add_u32 s33, s32, 65536")
        a(f"buffer_store_dwordx4 {vr(PK+8*t+4,4)}, v8, s[16:19], s33 offen")
    for i in range(8):
        a(f"v_cvt_pk_bf16_f32 v{PK+16+i}, v{128+2*i}, v{128+2*i+1}")
    a("v_bfe_u32 v9, v1, 4, 1")
    a("v_lshlrev_b32 v9, 16, v9")
    a("v_lshrrev_b32 v10, 5, v1")
    a("v_lshl_add_u32 v9, v10, 8, v9")
    a("v_and_b32 v10, 15, v1")
    a("v_lshl_add_u32 v9, v10, 4, v9")
    a(f"s_add_u32 s32, s30, {WS_V}")
    a(f"buffer_store_dwordx4 {vr(PK+16,4)}, v9, s[16:19], s32 offen")
    a(f"buffer_store_dwordx4 {vr(PK+20,4)}, v9, s[16:19], s32 offen offset:512")
    a("s_lshl_b32 s32, s23, 3")
    a("s_lshl_b32 s33, s22, 1")
    a("s_add_u32 s32, s32, s33")
    a("s_lshl_b32 s33, s24, 8")
    a("s_add_u32 s32, s32, s33")
    a("s_lshl_b32 s32, s32, 2")
    a(f"s_add_u32 s32, s32, {WS_NRM}")
    a("v_lshrrev_b32 v10, 4, v1")
    a("v_lshlrev_b32 v10, 2, v10")
    a("s_mov_b32 exec_lo, 0x00010001")
    a("s_mov_b32 exec_hi, 0")
    for t in range(2):
        for hd in range(2):
            a(f"buffer_store_dword v{64+2*t+hd}, v10, s[16:19], s32 offen offset:{hd*512}") if t == 0 else None
    a(f"s_add_u32 s33, s32, 16384")
    for hd in range(2):
        a(f"buffer_store_dword v{66+hd}, v10, s[16:19], s33 offen offset:{hd*512}")
    a("s_mov_b64 exec, -1")
    a("s_cmp_lg_u32 s22, 0")
    a(f"s_cbranch_scc1 L_{name}_end")
    a("v_mov_b32 v20, -1"); a("v_mov_b32 v21, -1"); a("v_mov_b32 v22, -1"); a("v_mov_b32 v23, -1")
    a("s_lshl_b32 s32, s2, 10")
    a(f"s_add_u32 s32, s32, {WS_ST}")
    a("buffer_store_dwordx4 v[20:23], v8, s[16:19], s32 offen")
    kernel_tail(a, name)
    return name, a.lines, 256, 256, L0 + 5*SLOT + 4096

def gen_B():
    a = Asm(); name = "kb_kernel"
    kernel_head(a, name, 256)
    a(f"s_load_dwordx2 s[20:21], s[0:1], {KA_WS}")
    a("v_lshrrev_b32 v2, 6, v0")
    a("v_and_b32 v1, 63, v0")
    a("v_readfirstlane_b32 s22, v2")
    a("s_and_b32 s23, s2, 31")
    a("s_lshr_b32 s24, s2, 5")
    a("v_lshlrev_b32 v2, 4, v1")
    a("s_waitcnt lgkmcnt(0)")
    srd(a, 16, 20, WS_SIZE)
    a("s_lshl_b32 s25, s23, 16")
    a("s_lshl_b32 s26, s24, 3")
    a("s_lshl_b32 s27, s22, 1")
    a("s_add_u32 s26, s26, s27")
    a("s_lshl_b32 s27, s26, 10")
    a("s_add_u32 s27, s27, s25")
    a(f"s_add_u32 s27, s27, {WS_Q}")
    QA, QB = 4, 8
    a("s_lshl_b32 s28, s23, 9")
    a(f"s_add_u32 s28, s28, {WS_NRM}")
    a("v_lshlrev_b32 v3, 3, v1")
    a("buffer_load_dwordx2 v[140:141], v3, s[16:19], s28 offen")
    a("s_add_u32 s29, s28, 16384")
    a("buffer_load_dwordx2 v[142:143], v3, s[16:19], s29 offen")
    a(f"buffer_load_dwordx4 {vr(QA,4)}, v2, s[16:19], s27 offen")
    a(f"buffer_load_dwordx4 {vr(QB,4)}, v2, s[16:19], s27 offen offset:1024")
    a("s_lshl_b32 s31, s22, 11")
    a("s_add_u32 s30, s25, s31")
    a(f"s_add_u32 s30, s30, {WS_K}")
    def dma_chunk_dyn():
        a("s_mov_b32 m0, s31")
        a(f"s_add_u32 s32, s30, {WS_V - WS_K}")
        a("buffer_load_dwordx4 v2, s[16:19], s30 offen lds")
        a("buffer_load_dwordx4 v2, s[16:19], s30 offen offset:1024 lds")
        a("s_add_u32 m0, s31, 65536")
        a("s_add_u32 s30, s30, 8192")
        a("buffer_load_dwordx4 v2, s[16:19], s32 offen lds")
        a("buffer_load_dwordx4 v2, s[16:19], s32 offen offset:1024 lds")
        a("s_add_u32 s31, s31, 8192")
    dma_chunk_dyn(); dma_chunk_dyn()
    KF = [12, 16]; VF = [[20, 24], [28, 32]]; S = [36, 52]; P = 68; O = [76, 92]; NM = [108, 124]
    for r in range(20, 36): a(f"v_mov_b32 v{r}, {ONES:#x}")
    for r in range(P, P + 8): a(f"v_mov_b32 v{r}, 0")
    for z in range(2):
        for r in range(16): a(f"v_mov_b32 v{O[z]+r}, 0")
        for r in range(16): a(f"v_mov_b32 v{NM[z]+r}, 0")
    a("v_lshlrev_b32 v3, 4, v1")
    a("v_lshrrev_b32 v144, 5, v1")
    a("v_lshlrev_b32 v144, 8, v144")
    a("v_and_b32 v145, 15, v1")
    a("v_lshl_add_u32 v144, v145, 4, v144")
    a("v_add_u32 v144, 0x10000, v144")
    VK, VV = 3, 144
    a("s_waitcnt vmcnt(10)")
    a("v_max_u32 v140, v140, v141")
    a("v_max_u32 v142, v142, v143")
    for sh in (1, 2, 4, 8):
        a(f"v_max_u32_dpp v140, v140, v140 row_ror:{sh} row_mask:0xf bank_mask:0xf")
        a(f"v_max_u32_dpp v142, v142, v142 row_ror:{sh} row_mask:0xf bank_mask:0xf")
    for k, r in ((0, 140), (1, 142)):
        for row in range(4):
            a(f"v_readlane_b32 s{36+4*k+row}, v{r}, {16*row}")
    a("s_max_u32 s36, s36, s37"); a("s_max_u32 s38, s38, s39"); a("s_max_u32 s36, s36, s38")
    a("s_max_u32 s40, s40, s41"); a("s_max_u32 s42, s42, s43"); a("s_max_u32 s40, s40, s42")
    a("v_mov_b32 v140, s36")
    a("v_mul_f32 v140, s40, v140")
    a(f"s_mov_b32 s37, {f2u(1600.0/1.03):#x}")
    a("v_cmp_ge_f32 vcc, s37, v140")
    a("s_mov_b32 s34, 8")
    a("s_cmp_eq_u64 vcc, 0")
    a(f"s_cbranch_scc0 L_{name}_fast")
    for c in range(6): dma_chunk_dyn()
    a("s_mov_b32 s34, 0")
    a("s_waitcnt vmcnt(0)")
    a("s_barrier")
    a("v_mov_b32 v140, 0xff800000")
    a("v_mov_b32 v141, 0xff800000")
    a("s_mov_b32 s35, 0")
    a("v_mov_b32 v142, v3")
    a.label(f"L_{name}_p1")
    a(f"ds_read_b128 {vr(KF[0],4)}, v142")
    a("v_add_u32 v142, 1024, v142")
    a("s_waitcnt lgkmcnt(0)")
    a(f"{MF} {vr(S[0],16)}, {vr(KF[0],4)}, {vr(QA,4)}, 0")
    a(f"{MF} {vr(S[1],16)}, {vr(KF[0],4)}, {vr(QB,4)}, 0")
    for z in range(2):
        for r in range(0, 16, 2):
            a(f"v_max3_f32 v{140+z}, v{S[z]+r}, v{S[z]+r+1}, v{140+z}")
    a("s_add_u32 s35, s35, 1")
    a("s_cmp_lt_u32 s35, 64")
    a(f"s_cbranch_scc1 L_{name}_p1")
    for z in range(2):
        a(f"v_mov_b32 v142, v{140+z}")
        a(f"v_permlane32_swap_b32 v{140+z}, v142")
        a(f"v_max_f32 v{140+z}, v{140+z}, v142")
        a(f"v_sub_f32 v{140+z}, 0, v{140+z}")
        for r in range(16): a(f"v_mov_b32 v{NM[z]+r}, v{140+z}")
    a.label(f"L_{name}_fast")
    a("s_waitcnt vmcnt(4)")
    a("s_barrier")
    MASK_ON = "s_mov_b64 exec, s[44:45]"
    a("s_mov_b32 s44, 0x0000ffff"); a("s_mov_b32 s45, 0x0000ffff")
    a(f"ds_read_b128 {vr(KF[0],4)}, v{VK}")
    a(MASK_ON)
    a(f"ds_read_b128 {vr(VF[0][0],4)}, v{VV}")
    a(f"ds_read_b128 {vr(VF[0][1],4)}, v{VV} offset:512")
    a("s_mov_b64 exec, -1")
    a("s_waitcnt lgkmcnt(0)")
    a(f"{MF} {vr(S[0],16)}, {vr(KF[0],4)}, {vr(QA,4)}, {vr(NM[0],16)}")
    a("s_mov_b32 s35, 0")
    a.nop(12)
    a.lines.append(".p2align 6")
    a.label(f"L_{name}_loop")
    a("s_add_u32 s46, s35, 2")
    a("s_cmp_lt_u32 s46, s34")
    a(f"s_cbranch_scc0 L_{name}_noload")
    dma_chunk_dyn()
    a.label(f"L_{name}_noload")
    Q = [QA, QB]
    for t in range(8):
        for z in range(2):
            s = S[z]; sn = S[z ^ 1]
            pz = z ^ 1; pt = t if z == 1 else t - 1
            vprev = VF[pt & 1][1]
            nt = t if z == 0 else t + 1
            e = lambda i: a(f"v_exp_f32 v{s+i}, v{s+i}")
            c = lambda i: a(f"v_cvt_pk_bf16_f32 v{P+i}, v{s+2*i}, v{s+2*i+1}")
            if z == 0 and t == 7:
                a("s_cmp_lt_u32 s46, s34")
                a(f"s_cbranch_scc0 L_{name}_w0")
                a("s_waitcnt vmcnt(4)")
                a(f"s_branch L_{name}_w1")
                a.label(f"L_{name}_w0")
                a("s_waitcnt vmcnt(0)")
                a.label(f"L_{name}_w1")
                a("s_barrier")
            e(0); e(1)
            a(f"{MF} {vr(O[pz],16)}, {vr(vprev,4)}, {vr(P+4,4)}, {vr(O[pz],16)}")
            if z == 0:
                a(f"ds_read_b128 {vr(KF[(t+1)&1],4)}, v{VK} offset:{(t+1)*1024}")
            e(2); e(3)
            if z == 0:
                a(MASK_ON)
                a(f"ds_read_b128 {vr(VF[(t+1)&1][0],4)}, v{VV} offset:{(t+1)*1024}")
                a(f"ds_read_b128 {vr(VF[(t+1)&1][1],4)}, v{VV} offset:{(t+1)*1024+512}")
                a("s_mov_b64 exec, -1")
            e(4); e(5); e(6)
            if z == 1: a("s_waitcnt lgkmcnt(0)")
            a(f"{MF} {vr(sn,16)}, {vr(KF[nt&1],4)}, {vr(Q[z^1],4)}, {vr(NM[z^1],16)}")
            e(7); c(0); c(1); c(2); c(3); e(8); e(9); e(10)
            a(f"{MF} {vr(O[z],16)}, {vr(VF[t&1][0],4)}, {vr(P,4)}, {vr(O[z],16)}")
            e(11); e(12); e(13); e(14); e(15); c(4); c(5); c(6); c(7)
    a(f"v_add_u32 v{VK}, 8192, v{VK}")
    a(f"v_add_u32 v{VV}, 8192, v{VV}")
    a("s_add_u32 s35, s35, 1")
    a("s_cmp_lt_u32 s35, 8")
    a(f"s_cbranch_scc1 L_{name}_loop")
    a.nop(2)
    a(f"{MF} {vr(O[1],16)}, {vr(VF[1][1],4)}, {vr(P+4,4)}, {vr(O[1],16)}")
    a("s_lshl_b32 s27, s26, 15")
    a("s_lshl_b32 s28, s23, 10")
    a("s_add_u32 s27, s27, s28")
    a(f"s_add_u32 s27, s27, {WS_O}")
    for z in range(2):
        a(f"v_rcp_f32 v140, v{O[z]+8}")
        for r in range(8): a(f"v_mul_f32 v{O[z]+r}, v{O[z]+r}, v140")
        for i in range(4): a(f"v_cvt_pk_bf16_f32 v{S[z]+i}, v{O[z]+2*i}, v{O[z]+2*i+1}")
        a(f"s_add_u32 s28, s27, {z*32768}")
        a(f"buffer_store_dwordx4 {vr(S[z],4)}, v2, s[16:19], s28 offen")
    kernel_tail(a, name)
    return name, a.lines, 256, 256, 131072 + 2048

def tile_map_CE(a):
    a("s_and_b32 s23, s2, 1")
    a("s_lshl_b32 s23, s23, 2")
    a("s_lshr_b32 s29, s2, 3")
    a("s_and_b32 s30, s29, 3")
    a("s_add_u32 s23, s23, s30")
    a("s_bfe_u32 s24, s2, 0x20001")
    a("s_lshl_b32 s24, s24, 3")
    a("s_lshr_b32 s30, s29, 2")
    a("s_add_u32 s24, s24, s30")

def wtile_dma_voffs(a, base, vl, stride, t0, t1, n_regs=4):
    a(f"v_lshrrev_b32 v{t0}, 3, v{vl}")
    a(f"s_mov_b32 s30, {stride}")
    a(f"v_mul_lo_u32 v{t0}, v{t0}, s30")
    a(f"v_bfe_u32 v{t1}, v{vl}, 4, 1")
    a(f"v_lshlrev_b32 v{t1}, 2, v{t1}")
    a(f"v_and_b32 v{base}, 7, v{vl}")
    a(f"v_xor_b32 v{t1}, v{t1}, v{base}")
    a(f"v_lshl_add_u32 v{base}, v{t1}, 4, v{t0}")
    for n in range(1, n_regs):
        a(f"v_add_u32 v{base+n}, {n*8*stride}, v{base}")

def wtile_read_addrs(a, r0, r1, vl, t0, t1, lds_base_s=None):
    a(f"v_lshrrev_b32 v{t0}, 5, v{vl}")
    a(f"v_lshlrev_b32 v{t0}, 2, v{t0}")
    a(f"v_bfe_u32 v{t1}, v{vl}, 2, 2")
    a(f"v_add_u32 v{t0}, v{t0}, v{t1}")
    a(f"v_lshlrev_b32 v{t0}, 7, v{t0}")
    a(f"v_bfe_u32 v{t1}, v{vl}, 4, 1")
    a(f"v_lshlrev_b32 v{t1}, 1, v{t1}")
    a(f"v_bfe_u32 v{r1}, v{vl}, 1, 1")
    a(f"v_add_u32 v{t1}, v{t1}, v{r1}")
    a(f"v_bfe_u32 v{r1}, v{vl}, 3, 1")
    a(f"v_lshlrev_b32 v{r1}, 2, v{r1}")
    a(f"v_xor_b32 v{t1}, v{t1}, v{r1}")
    a(f"v_lshl_add_u32 v{t0}, v{t1}, 4, v{t0}")
    a(f"v_and_b32 v{t1}, 1, v{vl}")
    a(f"v_lshl_add_u32 v{r0}, v{t1}, 3, v{t0}")
    if lds_base_s is not None:
        a(f"v_add_u32 v{r0}, {lds_base_s}, v{r0}")
    a(f"v_xor_b32 v{r1}, 64, v{r0}")

def reduce_pair(a, acc_keep_sel, ACC0, ACC1, OUT, sW, scr, vl, t0, t1, keep_is_low_bit):
    pass

def gen_C():
    a = Asm(); name = "kc_kernel"
    kernel_head(a, name, 256)
    a(f"s_load_dwordx2 s[4:5], s[0:1], {KA_X}")
    a(f"s_load_dwordx2 s[6:7], s[0:1], {KA_WO}")
    a(f"s_load_dwordx2 s[20:21], s[0:1], {KA_WS}")
    a("v_lshrrev_b32 v2, 6, v0")
    a("v_and_b32 v1, 63, v0")
    a("v_readfirstlane_b32 s22, v2")
    tile_map_CE(a)
    a("s_lshr_b32 s25, s22, 1")
    a("s_and_b32 s26, s22, 1")
    a("v_lshlrev_b32 v2, 4, v1")
    wtile_dma_voffs(a, 4, 1, 1024, 8, 9, 4)
    a("s_waitcnt lgkmcnt(0)")
    srd(a, 8, 4, 2048 * 512 * 2)
    srd(a, 12, 6, 512 * 512 * 2)
    srd(a, 16, 20, WS_SIZE)
    a("s_lshl_b32 s27, s26, 8")
    a("s_lshl_b32 s28, s25, 5")
    a("s_add_u32 s27, s27, s28")
    a("s_lshl_b32 s28, s27, 7")
    a("s_lshl_b32 s27, s27, 10")
    a("s_lshl_b32 s29, s23, 7")
    a("s_add_u32 s27, s27, s29")
    OF = 32
    a("s_lshl_b32 s31, s24, 1")
    a("s_add_u32 s31, s31, s25")
    a("s_lshl_b32 s32, s31, 15")
    a("s_lshl_b32 s33, s26, 14")
    a("s_add_u32 s32, s32, s33")
    a(f"s_add_u32 s32, s32, {WS_O}")
    XF = 96
    a("v_and_b32 v8, 31, v1")
    a("v_lshlrev_b32 v8, 10, v8")
    a("v_lshrrev_b32 v9, 5, v1")
    a("v_lshl_add_u32 v8, v9, 4, v8")
    a("s_lshl_b32 s33, s31, 15")
    a("s_lshl_b32 s34, s23, 7")
    a("s_add_u32 s33, s33, s34")
    a("s_lshl_b32 s34, s26, 6")
    a("s_add_u32 s33, s33, s34")
    a(f"buffer_load_dwordx4 {vr(XF,4)}, v8, s[8:11], s33 offen")
    a(f"buffer_load_dwordx4 {vr(XF+4,4)}, v8, s[8:11], s33 offen offset:32")
    for cc in range(4):
        a(f"s_add_u32 s34, s27, {cc*65536}")
        for n in range(4):
            a(f"s_add_u32 m0, s28, {cc*8192 + n*1024}")
            a("s_nop 0")
            a(f"buffer_load_dwordx4 v{4+n}, s[12:15], s34 offen lds")
        a(f"s_add_u32 s35, s32, {cc*4096}")
        for k in range(4):
            a(f"buffer_load_dwordx4 {vr(OF+16*cc+4*k,4)}, v2, s[16:19], s35 offen offset:{k*1024}")
    wtile_read_addrs(a, 10, 11, 1, 8, 9)
    a("s_lshl_b32 s34, s26, 15")
    a("v_add_u32 v10, s34, v10")
    a("v_add_u32 v11, s34, v11")
    IDN = 104; IDS = 112
    emit_identity_consts(a, 13)
    emit_identity_nat(a, IDN, 1, 12, 13)
    emit_identity_sigma(a, IDS, 1, 12, 13)
    ACC = [128, 144]; WF = [16, 24]
    for b in ACC:
        for r in range(16): a(f"v_mov_b32 v{b+r}, 0")
    RES = 160
    a("s_waitcnt vmcnt(32)")
    a(f"{MF} {vr(RES,16)}, {vr(IDN,4)}, {vr(XF,4)}, 0")
    a(f"{MF} {vr(RES,16)}, {vr(IDN+4,4)}, {vr(XF+4,4)}, {vr(RES,16)}")
    def reads(ks, buf):
        for t in range(2):
            for q in range(2):
                a(f"ds_read_b64_tr_b16 {vr(WF[buf]+4*t+2*q,2)}, v{10+t} offset:{ks*2048 + q*1024}")
    for cc in range(4):
        a(f"s_waitcnt vmcnt({8*(3-cc)})")
        a("s_barrier")
        reads(4*cc, 0)
        for k in range(4):
            ks = 4*cc + k; buf = k & 1
            if k < 3:
                reads(ks + 1, buf ^ 1)
                a("s_waitcnt lgkmcnt(4)")
            else:
                a("s_waitcnt lgkmcnt(0)")
            for t in range(2):
                a(f"{MF} {vr(ACC[t],16)}, {vr(WF[buf]+4*t,4)}, {vr(OF+4*ks,4)}, {vr(ACC[t],16)}")
    SCR = 65536
    a("s_xor_b32 s34, s22, 1")
    a("s_lshl_b32 s34, s34, 12")
    a(f"s_add_u32 s34, s34, {SCR}")
    a("v_add_u32 v8, s34, v2")
    a("s_lshl_b32 s34, s22, 12")
    a(f"s_add_u32 s34, s34, {SCR}")
    a("v_add_u32 v9, s34, v2")
    a("s_cmp_eq_u32 s26, 0")
    a(f"s_cbranch_scc1 L_{name}_k0")
    for g in range(4): a(f"ds_write_b128 v8, {vr(ACC[0]+4*g,4)} offset:{g*1024}")
    for r in range(16): a(f"v_add_f32 v{ACC[0]+r}, v{ACC[1]+r}, v{RES+r}")
    a(f"s_branch L_{name}_k1")
    a.label(f"L_{name}_k0")
    a.nop(12)
    for g in range(4): a(f"ds_write_b128 v8, {vr(ACC[1]+4*g,4)} offset:{g*1024}")
    for r in range(16): a(f"v_add_f32 v{ACC[0]+r}, v{ACC[0]+r}, v{RES+r}")
    a.label(f"L_{name}_k1")
    H = ACC[0]
    a("s_waitcnt lgkmcnt(0)")
    a("s_barrier")
    for g in range(4): a(f"ds_read_b128 {vr(ACC[1]+4*g,4)}, v9 offset:{g*1024}")
    a("s_waitcnt lgkmcnt(0)")
    for r in range(16): a(f"v_add_f32 v{H+r}, v{H+r}, v{ACC[1]+r}")
    a(f"v_add_f32 v16, v{H}, v{H+1}")
    a(f"v_mul_f32 v17, v{H}, v{H}")
    a(f"v_add_f32 v18, v{H+2}, v{H+3}")
    a(f"v_mul_f32 v19, v{H+2}, v{H+2}")
    a(f"v_fma_f32 v17, v{H+1}, v{H+1}, v17")
    a(f"v_fma_f32 v19, v{H+3}, v{H+3}, v19")
    for r in range(4, 16, 2):
        a(f"v_add_f32 v16, v16, v{H+r}")
        a(f"v_fma_f32 v17, v{H+r}, v{H+r}, v17")
        a(f"v_add_f32 v18, v18, v{H+r+1}")
        a(f"v_fma_f32 v19, v{H+r+1}, v{H+r+1}, v19")
    a("v_add_f32 v16, v16, v18")
    a("v_add_f32 v17, v17, v19")
    swap_add(a, 16, 18); swap_add(a, 17, 19)
    a("v_min_u32 v16, 0xfffffffe, v16")
    a("v_min_u32 v17, 0xfffffffe, v17")
    a("s_lshl_b32 s34, s31, 12")
    a(f"s_add_u32 s34, s34, {WS_ST}")
    a("s_lshl_b32 s35, s23, 1")
    a("s_add_u32 s35, s35, s26")
    a("s_lshl_b32 s35, s35, 8")
    a("s_add_u32 s35, s35, s34")
    a("v_and_b32 v8, 31, v1")
    a("v_lshlrev_b32 v8, 3, v8")
    a("s_mov_b32 exec_hi, 0")
    a("buffer_store_dwordx2 v[16:17], v8, s[16:19], s35 offen sc0 sc1")
    a("s_mov_b64 exec, -1")
    PKH = 24
    for i in range(8): a(f"v_cvt_pk_bf16_f32 v{PKH+i}, v{H+2*i}, v{H+2*i+1}")
    a("s_lshl_b32 s36, s24, 3")
    a("s_add_u32 s36, s36, s23")
    a("s_lshl_b32 s36, s36, 2")
    a("s_add_u32 s36, s36, s22")
    a("s_lshl_b32 s36, s36, 11")
    a(f"s_add_u32 s36, s36, {WS_H}")
    a(f"buffer_store_dwordx4 {vr(PKH,4)}, v2, s[16:19], s36 offen")
    a(f"buffer_store_dwordx4 {vr(PKH+4,4)}, v2, s[16:19], s36 offen offset:1024")
    a("v_lshrrev_b32 v9, 5, v1")
    a("v_lshl_add_u32 v8, v9, 11, v8")
    a("s_mov_b32 s37, 0x20000")
    a.label(f"L_{name}_poll")
    for p in range(8):
        a(f"buffer_load_dwordx2 {vr(32+2*p,2)}, v8, s[16:19], s34 offen offset:{p*256} sc0 sc1")
    a("s_waitcnt vmcnt(0)")
    a("v_max_u32 v48, v32, v33")
    for p in range(1, 8):
        a(f"v_max3_u32 v48, v{32+2*p}, v{33+2*p}, v48")
    a("v_cmp_eq_u32 vcc, -1, v48")
    a("s_sub_u32 s37, s37, 1")
    a("s_cmp_eq_u32 s37, 0")
    a(f"s_cbranch_scc1 L_{name}_go")
    a("s_cmp_lg_u64 vcc, 0")
    a(f"s_cbranch_scc1 L_{name}_poll")
    a.label(f"L_{name}_go")
    for st in (4, 2, 1):
        for p in range(st):
            a(f"v_add_f32 v{32+2*p}, v{32+2*p}, v{32+2*(p+st)}")
            a(f"v_add_f32 v{33+2*p}, v{33+2*p}, v{33+2*(p+st)}")
    swap_add(a, 32, 34); swap_add(a, 33, 35)
    a(f"s_mov_b32 s30, {f2u(1.0/512):#x}")
    a("v_mul_f32 v32, s30, v32")
    a("v_mul_f32 v33, s30, v33")
    a("v_fma_f32 v33, -v32, v32, v33")
    a("v_max_f32 v33, 0, v33")
    a(f"v_add_f32 v34, {f2u(1e-5):#x}, v33")
    a("v_rsq_f32 v34, v34")
    a("v_mul_f32 v35, v33, v34")
    a("v_mul_f32 v35, v35, v34")
    a(f"v_add_f32 v35, {f2u(1e-5):#x}, v35")
    a("v_rsq_f32 v35, v35")
    a("v_mul_f32 v34, v34, v35")
    a("v_mul_f32 v36, v32, v34")
    a("v_sub_f32 v36, 0, v36")
    a("v_mov_b32 v35, v34")
    a("v_mov_b32 v37, v36")
    for r in range(0, 16, 2):
        a(f"v_pk_fma_f32 {vr(H+r,2)}, {vr(H+r,2)}, v[34:35], v[36:37]")
    for i in range(8): a(f"v_cvt_pk_bf16_f32 v{40+i}, v{H+2*i}, v{H+2*i+1}")
    T = ACC[1]
    a(f"{MF} {vr(T,16)}, {vr(40,4)}, {vr(IDS,4)}, 0")
    a(f"{MF} {vr(T,16)}, {vr(44,4)}, {vr(IDS+4,4)}, {vr(T,16)}")
    for i in range(8): a(f"v_cvt_pk_bf16_f32 v{48+i}, v{T+2*i}, v{T+2*i+1}")
    a("s_lshl_b32 s35, s23, 1")
    a("s_add_u32 s35, s35, s26")
    a("s_lshl_b32 s35, s35, 7")
    a("s_lshl_b32 s36, s31, 1")
    a("s_add_u32 s35, s35, s36")
    a("s_lshl_b32 s35, s35, 10")
    a(f"s_add_u32 s35, s35, {WS_HT}")
    a(f"buffer_store_dwordx4 {vr(48,4)}, v2, s[16:19], s35 offen")
    a(f"buffer_store_dwordx4 {vr(52,4)}, v2, s[16:19], s35 offen offset:1024")
    kernel_tail(a, name)
    return name, a.lines, 256, 256, 65536 + 16384

def gemm_stream(a, name, nk_half, wstride, srd_w, s_wglob, s_aglob, ACC, w_is_A, NST_RING=5, PD=4):
    nst = nk_half // 4
    SLOT = 16384
    AF0 = 32
    NB = PD + 1
    WF = [16, 24]
    def issue(s):
        slot = s % NST_RING
        a(f"s_add_u32 s34, {s_wglob}, {s*64*wstride}")
        for n in range(4):
            a(f"s_add_u32 m0, s28, {slot*SLOT + n*1024}")
            a("s_nop 0")
            a(f"buffer_load_dwordx4 v{4+n}, {srd_w}, s34 offen lds")
        a(f"s_add_u32 s35, {s_aglob}, {s*4096}")
        fb = AF0 + (s % NB) * 16
        for k in range(4):
            a(f"buffer_load_dwordx4 {vr(fb+4*k,4)}, v2, s[16:19], s35 offen offset:{k*1024}")
    for s in range(min(PD, nst)): issue(s)
    for b in ACC:
        for r in range(16): a(f"v_mov_b32 v{b+r}, 0")
    def reads(slot, k, buf):
        base = slot * SLOT + k * 2048
        for t in range(2):
            for q in range(2):
                off = base + q * 1024
                reg = 10 + t
                if off >= 65536:
                    off -= 65536; reg = 12 + t
                a(f"ds_read_b64_tr_b16 {vr(WF[buf]+4*t+2*q,2)}, v{reg} offset:{off}")
    a("v_add_u32 v12, 0x10000, v10")
    a("v_add_u32 v13, 0x10000, v11")
    for s in range(nst):
        issued = min(nst, s + PD)
        a(f"s_waitcnt vmcnt({8*(issued-1-s)})")
        a("s_barrier")
        if s + PD < nst: issue(s + PD)
        slot = s % NST_RING
        fb = AF0 + (s % NB) * 16
        reads(slot, 0, 0)
        for k in range(4):
            buf = k & 1
            if k < 3:
                reads(slot, k + 1, buf ^ 1)
                a("s_waitcnt lgkmcnt(4)")
            else:
                a("s_waitcnt lgkmcnt(0)")
            for t in range(2):
                if w_is_A:
                    a(f"{MF} {vr(ACC[t],16)}, {vr(WF[buf]+4*t,4)}, {vr(fb+4*k,4)}, {vr(ACC[t],16)}")
                else:
                    a(f"{MF} {vr(ACC[t],16)}, {vr(fb+4*k,4)}, {vr(WF[buf]+4*t,4)}, {vr(ACC[t],16)}")

def pair_reduce(a, name, ACC, s_keep, partner_xor, SCR):
    a(f"s_xor_b32 s34, s22, {partner_xor}")
    a("s_lshl_b32 s34, s34, 12")
    a(f"s_add_u32 s34, s34, {SCR}")
    a("v_add_u32 v8, s34, v2")
    a("s_lshl_b32 s34, s22, 12")
    a(f"s_add_u32 s34, s34, {SCR}")
    a("v_add_u32 v9, s34, v2")
    a.nop(4)
    a("s_barrier")
    a(f"s_cmp_eq_u32 {s_keep}, 0")
    a(f"s_cbranch_scc1 L_{name}_k0")
    a.nop(12)
    for g in range(4): a(f"ds_write_b128 v8, {vr(ACC[0]+4*g,4)} offset:{g*1024}")
    for r in range(16): a(f"v_mov_b32 v{ACC[0]+r}, v{ACC[1]+r}")
    a(f"s_branch L_{name}_k1")
    a.label(f"L_{name}_k0")
    a.nop(12)
    for g in range(4): a(f"ds_write_b128 v8, {vr(ACC[1]+4*g,4)} offset:{g*1024}")
    a.label(f"L_{name}_k1")
    a("s_waitcnt lgkmcnt(0)")
    a("s_barrier")
    for g in range(4): a(f"ds_read_b128 {vr(ACC[1]+4*g,4)}, v9 offset:{g*1024}")
    a("s_waitcnt lgkmcnt(0)")
    for r in range(16): a(f"v_add_f32 v{ACC[0]+r}, v{ACC[0]+r}, v{ACC[1]+r}")

def gen_D():
    a = Asm(); name = "kd_kernel"
    kernel_head(a, name, 224)
    a(f"s_load_dwordx2 s[4:5], s[0:1], {KA_W1}")
    a(f"s_load_dwordx2 s[6:7], s[0:1], {KA_B1}")
    a(f"s_load_dwordx2 s[20:21], s[0:1], {KA_WS}")
    a("v_lshrrev_b32 v2, 6, v0")
    a("v_and_b32 v1, 63, v0")
    a("v_readfirstlane_b32 s22, v2")
    a("s_and_b32 s23, s2, 1")
    a("s_lshl_b32 s23, s23, 2")
    a("s_lshr_b32 s29, s2, 3")
    a("s_and_b32 s30, s29, 3")
    a("s_add_u32 s23, s23, s30")
    a("s_bfe_u32 s24, s2, 0x20001")
    a("s_mul_i32 s24, s24, 7")
    a("s_lshr_b32 s30, s29, 2")
    a("s_add_u32 s24, s24, s30")
    a("s_lshr_b32 s25, s22, 1")
    a("s_and_b32 s26, s22, 1")
    a("v_lshlrev_b32 v2, 4, v1")
    wtile_dma_voffs(a, 4, 1, 3584, 8, 9, 4)
    a("s_waitcnt lgkmcnt(0)")
    srd(a, 8, 4, 2048 * 1792 * 2)
    srd(a, 12, 6, 1792 * 2)
    srd(a, 16, 20, WS_SIZE)
    a("s_lshl_b32 s27, s26, 10")
    a("s_lshl_b32 s28, s25, 5")
    a("s_add_u32 s27, s27, s28")
    a("s_mul_i32 s27, s27, 3584")
    a("s_lshl_b32 s28, s24, 7")
    a("s_add_u32 s27, s27, s28")
    a("s_lshl_b32 s28, s26, 13")
    a("s_lshl_b32 s29, s25, 12")
    a("s_add_u32 s28, s28, s29")
    a("s_lshl_b32 s31, s23, 1")
    a("s_add_u32 s31, s31, s25")
    a("s_lshl_b32 s32, s31, 17")
    a("s_lshl_b32 s33, s26, 16")
    a("s_add_u32 s32, s32, s33")
    a(f"s_add_u32 s32, s32, {WS_HT}")
    a("v_lshrrev_b32 v8, 5, v1")
    a("v_lshlrev_b32 v8, 3, v8")
    a("s_lshl_b32 s33, s24, 7")
    a("s_lshl_b32 s36, s26, 6")
    a("s_add_u32 s33, s33, s36")
    for g in range(4):
        a(f"buffer_load_dwordx2 {vr(176+2*g,2)}, v8, s[12:15], s33 offen offset:{g*16}")
    wtile_read_addrs(a, 10, 11, 1, 8, 9)
    a("s_lshl_b32 s34, s26, 13")
    a("v_add_u32 v10, s34, v10")
    a("v_add_u32 v11, s34, v11")
    ACC = [128, 144]
    gemm_stream(a, name, 64, 3584, "s[8:11]", "s27", "s32", ACC, True)
    pair_reduce(a, name, ACC, "s26", 1, 0)
    U = ACC[0]
    for g in range(4):
        for i in range(2):
            r = 176 + 2*g + i
            a(f"v_lshlrev_b32 v{184+4*g+2*i}, 16, v{r}")
            a(f"v_and_b32 v{185+4*g+2*i}, 0xffff0000, v{r}")
    for r in range(16): a(f"v_add_f32 v{U+r}, v{U+r}, v{184+r}")
    kk = -2.0 * 0.7978845608028654 * LOG2E
    a(f"s_mov_b32 s36, {f2u(kk*0.044715):#x}")
    a(f"s_mov_b32 s37, {f2u(kk):#x}")
    T = 184
    for r in range(16): a(f"v_mul_f32 v{T+r}, v{U+r}, v{U+r}")
    a("v_mov_b32 v16, s37")
    for r in range(16): a(f"v_fma_f32 v{T+r}, v{T+r}, s36, v16")
    for r in range(16): a(f"v_mul_f32 v{T+r}, v{T+r}, v{U+r}")
    for r in range(16): a(f"v_exp_f32 v{T+r}, v{T+r}")
    for r in range(16): a(f"v_add_f32 v{T+r}, 1.0, v{T+r}")
    for r in range(16): a(f"v_rcp_f32 v{T+r}, v{T+r}")
    for r in range(16): a(f"v_mul_f32 v{U+r}, v{U+r}, v{T+r}")
    for i in range(8): a(f"v_cvt_pk_bf16_f32 v{48+i}, v{U+2*i}, v{U+2*i+1}")
    a("s_mul_i32 s35, s31, 112")
    a("s_lshl_b32 s36, s24, 2")
    a("s_add_u32 s35, s35, s36")
    a("s_lshl_b32 s36, s26, 1")
    a("s_add_u32 s35, s35, s36")
    a("s_lshl_b32 s35, s35, 10")
    a(f"s_add_u32 s35, s35, {WS_U}")
    a(f"buffer_store_dwordx4 {vr(48,4)}, v2, s[16:19], s35 offen")
    a(f"buffer_store_dwordx4 {vr(52,4)}, v2, s[16:19], s35 offen offset:1024")
    kernel_tail(a, name)
    return name, a.lines, 256, 256, 5 * 16384

def gen_E():
    a = Asm(); name = "ke_kernel"
    kernel_head(a, name, 256)
    a(f"s_load_dwordx2 s[4:5], s[0:1], {KA_W2}")
    a(f"s_load_dwordx2 s[6:7], s[0:1], {KA_B2}")
    a(f"s_load_dwordx2 s[38:39], s[0:1], {KA_OUT}")
    a(f"s_load_dwordx2 s[20:21], s[0:1], {KA_WS}")
    a("v_lshrrev_b32 v2, 6, v0")
    a("v_and_b32 v1, 63, v0")
    a("v_readfirstlane_b32 s22, v2")
    tile_map_CE(a)
    a("s_and_b32 s25, s22, 1")
    a("s_lshr_b32 s26, s22, 1")
    a("v_lshlrev_b32 v2, 4, v1")
    wtile_dma_voffs(a, 4, 1, 4096, 8, 9, 4)
    a("s_waitcnt lgkmcnt(0)")
    srd(a, 8, 4, 1792 * 2048 * 2)
    srd(a, 12, 6, 2048 * 2)
    srd(a, 16, 20, WS_SIZE)
    srd(a, 40, 38, 2048 * 512 * 2)
    a("s_mul_i32 s27, s26, 896")
    a("s_lshl_b32 s28, s25, 5")
    a("s_add_u32 s27, s27, s28")
    a("s_lshl_b32 s27, s27, 12")
    a("s_lshl_b32 s28, s24, 7")
    a("s_add_u32 s27, s27, s28")
    a("s_lshl_b32 s28, s26, 13")
    a("s_lshl_b32 s29, s25, 12")
    a("s_add_u32 s28, s28, s29")
    a("s_lshl_b32 s31, s23, 1")
    a("s_add_u32 s31, s31, s25")
    a("s_mul_i32 s32, s31, 112")
    a("s_mul_i32 s33, s26, 56")
    a("s_add_u32 s32, s32, s33")
    a("s_lshl_b32 s32, s32, 10")
    a(f"s_add_u32 s32, s32, {WS_U}")
    a("s_lshl_b32 s36, s24, 3")
    a("s_add_u32 s36, s36, s23")
    a("s_lshl_b32 s36, s36, 2")
    a("s_add_u32 s36, s36, s22")
    a("s_lshl_b32 s36, s36, 11")
    a(f"s_add_u32 s36, s36, {WS_H}")
    a(f"buffer_load_dwordx4 {vr(176,4)}, v2, s[16:19], s36 offen")
    a(f"buffer_load_dwordx4 {vr(180,4)}, v2, s[16:19], s36 offen offset:1024")
    a("v_and_b32 v8, 31, v1")
    a("v_lshlrev_b32 v8, 1, v8")
    a("s_lshl_b32 s33, s24, 7")
    a("s_lshl_b32 s36, s26, 6")
    a("s_add_u32 s33, s33, s36")
    a("buffer_load_ushort v184, v8, s[12:15], s33 offen")
    wtile_read_addrs(a, 10, 11, 1, 8, 9)
    a("s_lshl_b32 s34, s26, 13")
    a("v_add_u32 v10, s34, v10")
    a("v_add_u32 v11, s34, v11")
    ACC = [128, 144]
    gemm_stream(a, name, 56, 4096, "s[8:11]", "s27", "s32", ACC, False)
    pair_reduce(a, name, ACC, "s26", 2, 0)
    Y = ACC[0]
    a("v_lshlrev_b32 v184, 16, v184")
    for i in range(8):
        a(f"v_lshlrev_b32 v{192+2*i}, 16, v{176+i}")
        a(f"v_and_b32 v{193+2*i}, 0xffff0000, v{176+i}")
    for r in range(16): a(f"v_add_f32 v{Y+r}, v{Y+r}, v184")
    for r in range(16): a(f"v_add_f32 v{Y+r}, v{Y+r}, v{192+r}")
    for i in range(8): a(f"v_cvt_pk_bf16_f32 v{48+i}, v{Y+2*i}, v{Y+2*i+1}")
    a("v_permlane32_swap_b32 v48, v50"); a("v_permlane32_swap_b32 v49, v51")
    a("v_permlane32_swap_b32 v52, v54"); a("v_permlane32_swap_b32 v53, v55")
    a("v_and_b32 v8, 31, v1")
    a("v_lshlrev_b32 v8, 10, v8")
    a("v_lshrrev_b32 v9, 5, v1")
    a("v_lshl_add_u32 v8, v9, 4, v8")
    a("s_lshl_b32 s35, s24, 1")
    a("s_add_u32 s35, s35, s26")
    a("s_lshl_b32 s35, s35, 15")
    a("s_lshl_b32 s36, s31, 6")
    a("s_add_u32 s35, s35, s36")
    a(f"buffer_store_dwordx4 {vr(48,4)}, v8, s[40:43], s35 offen")
    a(f"buffer_store_dwordx4 {vr(52,4)}, v8, s[40:43], s35 offen offset:32")
    kernel_tail(a, name)
    return name, a.lines, 256, 256, 5 * 16384

def build(path):
    ks = [gen_A(), gen_B(), gen_C(), gen_D(), gen_E()]
    grids = {"ka_kernel": 256, "kb_kernel": 256, "kc_kernel": 256, "kd_kernel": 224, "ke_kernel": 256}
    ref = open("cdna_kernels/" + NAME + ".s.ref").read().split("\n")
    hdr = [l for l in ref if l.startswith(";") and "@launch" not in l and not l.startswith("; Override") and not l.startswith("; grid=")]
    out = list(hdr)
    for name, lines, nv, acc, lds in ks:
        out.append(f"; @launch kernel={name} grid=({grids[name]},1,1) block=(256,1,1) lds={lds}")
    out.append('.amdgcn_target "amdgcn-amd-amdhsa--gfx950"')
    out.append(".text")
    tot = 0
    for name, lines, nv, acc, lds in ks:
        fixed, n = fix_hazards(lines)
        tot += n
        pb = check_backedges(fixed)
        for p in pb: print("BACKEDGE HAZARD", name, p)
        for l in fixed:
            out.append(l if (l.endswith(":") or l.startswith(".")) else "    " + l)
    out.append('.section .rodata,"a"')
    for name, lines, nv, acc, lds in ks:
        out.append(".p2align 6")
        out.append(kd(name, nv, acc))
    open(path, "w").write("\n".join(out) + "\n")
    print("wrote", path, "nops inserted:", tot)

if __name__ == "__main__":
    build(sys.argv[1] if len(sys.argv) > 1 else "cdna_kernels/" + NAME + ".s")
```

```python
import re

class Asm:
    def __init__(self):
        self.lines = []
    def __call__(self, s):
        for ln in s.split("\n"):
            ln = ln.strip()
            if ln:
                self.lines.append(ln)
    def label(self, n):
        self.lines.append(n + ":")
    def comment(self, c):
        self.lines.append("; " + c)
    def nop(self, n):
        while n > 0:
            k = min(n, 16)
            self.lines.append(f"s_nop {k-1}")
            n -= k

def vr(a, n=1):
    return f"v{a}" if n == 1 else f"v[{a}:{a+n-1}]"
def ar(a, n=1):
    return f"a{a}" if n == 1 else f"a[{a}:{a+n-1}]"
def sr(a, n=1):
    return f"s{a}" if n == 1 else f"s[{a}:{a+n-1}]"

REG_RE = re.compile(r"^-?(?:abs\()?\|?([vas])(?:(\d+)|\[(\d+):(\d+)\])\|?\)?$")
def regs_of(op):
    op = op.strip()
    m = REG_RE.match(op)
    if m:
        k = m.group(1)
        if m.group(2) is not None:
            return {(k, int(m.group(2)))}
        return {(k, i) for i in range(int(m.group(3)), int(m.group(4)) + 1)}
    if op in ("vcc", "exec", "m0", "scc"):
        return {("x", op)}
    if op in ("vcc_lo", "vcc_hi"):
        return {("x", "vcc")}
    if op in ("exec_lo", "exec_hi"):
        return {("x", "exec")}
    return set()

TRANS = ("v_exp_f32", "v_log_f32", "v_rcp_f32", "v_rsq_f32", "v_sqrt_f32", "v_sin_f32", "v_cos_f32", "v_exp_f16", "v_rcp_iflag_f32")

class Ins:
    def __init__(self, text):
        self.text = text
        t = text.split(";")[0].strip()
        self.is_label = t.endswith(":")
        self.is_comment = (t == "") or t.startswith(".")
        self.op = ""
        self.ops = []
        self.w = set(); self.r = set()
        self.states = 0
        if self.is_label or self.is_comment:
            return
        parts = t.split(None, 1)
        self.op = parts[0]
        rest = parts[1] if len(parts) > 1 else ""
        ops = [o.strip() for o in re.split(r",(?![^\[]*\])", rest)] if rest else []
        self.mods = ""
        if ops:
            last = ops[-1].split(None, 1)
            ops[-1] = last[0]
            if len(last) > 1:
                self.mods = last[1]
        self.ops = ops
        op = self.op
        self.states = 1
        if op == "s_nop":
            self.states = int(ops[0]) + 1
        self.mfma = op.startswith("v_mfma")
        self.valu = op.startswith("v_") and not self.mfma
        self.trans = any(op.startswith(x) for x in TRANS)
        self.vmem = op.startswith(("buffer_", "global_", "flat_"))
        self.ds = op.startswith("ds_")
        self.salu = op.startswith("s_")
        self.dpp = ("row_" in self.mods) or ("quad_perm" in self.mods) or ("wave_" in self.mods) or op.endswith("_dpp") or ("row_" in rest)
        self.permlane = op.startswith("v_permlane")
        self.lds_dma = self.vmem and (" lds" in (" " + self.mods) or op.startswith("global_load_lds"))
        R = regs_of
        if self.mfma:
            self.w = R(ops[0]); self.a = R(ops[1]); self.b = R(ops[2]); self.c = R(ops[3])
            self.r = self.a | self.b | self.c
            self.passes = 8 if "32x32" in op else 4
        elif op.startswith("v_cmp"):
            self.w = R(ops[0])
            for o in ops[1:]: self.r |= R(o)
        elif op.startswith(("v_readfirstlane", "v_readlane")):
            self.w = R(ops[0])
            for o in ops[1:]: self.r |= R(o)
        elif self.permlane:
            self.w = R(ops[0]) | R(ops[1]); self.r = set(self.w)
        elif op.startswith(("v_add_co", "v_sub_co", "v_addc_co", "v_subb_co")):
            self.w = R(ops[0]) | R(ops[1])
            for o in ops[2:]: self.r |= R(o)
        elif self.valu:
            self.w = R(ops[0])
            for o in ops[1:]: self.r |= R(o)
            if op.startswith(("v_fmac", "v_dot2c", "v_pk_fmac", "v_writelane")) or self.dpp or "sdwa" in op:
                self.r |= self.w
            if op.startswith("v_cndmask") and len(ops) == 3:
                self.r |= {("x", "vcc")}
        elif self.vmem:
            st = "store" in op or "atomic" in op
            if self.lds_dma:
                for o in ops: self.r |= R(o)
                self.r |= {("x", "m0")}
            elif op.startswith("buffer_"):
                if st:
                    self.data = R(ops[0])
                    for o in ops: self.r |= R(o)
                    if "atomic" in op and "sc0" in self.mods: self.w = R(ops[0])
                else:
                    self.w = R(ops[0])
                    for o in ops[1:]: self.r |= R(o)
            else:
                if st:
                    self.data = R(ops[1])
                    for o in ops: self.r |= R(o)
                else:
                    self.w = R(ops[0])
                    for o in ops[1:]: self.r |= R(o)
            self.store = st
            self.wide = st and ("x4" in op or "x3" in op)
        elif self.ds:
            if op.startswith(("ds_read", "ds_bpermute", "ds_permute", "ds_swizzle")):
                self.w = R(ops[0])
                for o in ops[1:]: self.r |= R(o)
            else:
                for o in ops: self.r |= R(o)
        elif self.salu:
            if op.startswith(("s_cmp", "s_cbranch", "s_branch", "s_waitcnt", "s_barrier", "s_nop", "s_endpgm", "s_sleep", "s_setprio")):
                for o in ops: self.r |= R(o)
            else:
                if ops: self.w = R(ops[0])
                for o in ops[1:]: self.r |= R(o)
                if "saveexec" in op:
                    self.w |= {("x", "exec")}

def vregs(s):
    return {x for x in s if x[0] in ("v", "a")}
def sregs(s):
    return {x for x in s if x[0] == "s" or x == ("x", "vcc")}

def need(prev, cur):
    n = 0
    if prev.is_label or prev.is_comment or not prev.op: return 0
    pw = prev.w
    if prev.op.startswith("v_mfma"):
        p8 = prev.passes == 8
        D = prev.w
        if cur.op.startswith("v_mfma"):
            if D & (cur.a | cur.b): n = max(n, 12 if p8 else 8)
            if D & cur.c:
                if cur.c == D and cur.passes == prev.passes: pass
                else: n = max(n, 10 if p8 else 6)
            if D & cur.w and cur.c != D:
                n = max(n, 10 if p8 else 6)
        else:
            if (cur.valu or cur.vmem or cur.ds) and (D & (cur.r | cur.w)):
                n = max(n, 12 if p8 else 8)
        if cur.valu and (prev.c & cur.w):
            n = max(n, 7 if p8 else 3)
        return n
    if prev.valu:
        pv = vregs(pw); ps = sregs(pw)
        if cur.op.startswith("v_mfma") and (pv & cur.r): n = max(n, 2)
        if prev.trans and cur.valu and not cur.trans and (pv & cur.r): n = max(n, 1)
        if prev.trans and cur.op.startswith("v_mfma") and (pv & cur.r): n = max(n, 2)
        if cur.permlane and (pv & cur.r): n = max(n, 2)
        if cur.valu and cur.dpp and (pv & cur.r): n = max(n, 2)
        if cur.op.startswith(("v_readfirstlane", "v_readlane")) and (pv & cur.r): n = max(n, 1)
        if ps:
            if cur.valu and (ps & cur.r): n = max(n, 2)
            if cur.op.startswith(("v_readlane", "v_writelane")) and (ps & cur.r): n = max(n, 4)
            if cur.vmem and (ps & cur.r): n = max(n, 5)
            if cur.salu and (ps & cur.r): n = max(n, 4)
        if ("x", "exec") in pw:
            n = max(n, 5)
    if prev.salu:
        if ("x", "m0") in pw and cur.lds_dma if cur.op else False: n = max(n, 1)
    if prev.vmem and getattr(prev, "wide", False):
        if (prev.data & cur.w):
            n = max(n, 2 if cur.valu else 1)
    return n

def fix_hazards(lines, window=24, verbose=False):
    out = []; hist = []
    inserted = 0
    for ln in lines:
        cur = Ins(ln)
        if cur.is_label or cur.is_comment or not cur.op:
            out.append(ln); continue
        dist = 0; pad = 0
        for prev in reversed(hist[-window:]):
            nd = need(prev, cur)
            if nd > dist:
                pad = max(pad, nd - dist)
            dist += prev.states
            if dist > 20: break
        if pad > 0:
            inserted += pad
            if verbose: print(f"pad {pad} before: {ln}")
            k = pad
            while k > 0:
                m = min(k, 16)
                nop = Ins(f"s_nop {m-1}")
                out.append(nop.text); hist.append(nop); k -= m
        out.append(ln); hist.append(cur)
        if cur.op in ("s_branch", "s_endpgm"):
            hist = []
    return out, inserted

def check_backedges(lines):
    labels = {}
    ins = [Ins(l) for l in lines]
    for i, x in enumerate(ins):
        if x.is_label: labels[x.text.strip()[:-1]] = i
    probs = []
    for i, x in enumerate(ins):
        if x.op and x.op.startswith(("s_cbranch", "s_branch")):
            tgt = labels.get(x.ops[0])
            if tgt is None: continue
            tail = [y for y in ins[max(0, i-40):i+1] if y.op]
            head = [y for y in ins[tgt:tgt+60] if y.op][:30]
            seq = tail + head
            for k in range(len(tail), len(seq)):
                dist = 0
                for j in range(k-1, -1, -1):
                    if j < len(tail):
                        nd = need(seq[j], seq[k])
                        if nd > dist:
                            probs.append((x.text, seq[j].text, seq[k].text, nd, dist))
                    dist += seq[j].states
                    if dist > 20: break
    return probs

import subprocess, tempfile, os
_size_cache = {}
def ins_sizes(lines):
    todo = []
    for l in lines:
        x = Ins(l)
        if x.op and l not in _size_cache:
            todo.append(l)
    todo = list(dict.fromkeys(todo))
    if todo:
        src = ['.amdgcn_target "amdgcn-amd-amdhsa--gfx950"', ".text"]
        for i, l in enumerate(todo):
            x = Ins(l)
            t = l
            if x.op.startswith(("s_cbranch", "s_branch")): t = f"{x.op} Lsz{i}"
            src.append(f"Lsz{i}:"); src.append(t)
        src.append("Lszend:"); src.append("s_endpgm")
        d = tempfile.mkdtemp()
        open(d + "/a.s", "w").write("\n".join(src) + "\n")
        r = subprocess.run(["clang", "-x", "assembler", "-target", "amdgcn-amd-amdhsa", "-mcpu=gfx950", "-c", d + "/a.s", "-o", d + "/a.o"], capture_output=True, text=True)
        if r.returncode: raise SystemExit(r.stderr[:3000])
        o = subprocess.run(["llvm-objdump", "-d", "--mcpu=gfx950", d + "/a.o"], capture_output=True, text=True).stdout
        sizes = []
        for ln in o.split("\n"):
            if "//" in ln:
                enc = ln.split("//")[1].split(":")[1].split()
                sizes.append(4 * len(enc))
        assert len(sizes) == len(todo) + 1, (len(sizes), len(todo))
        for l, s in zip(todo, sizes): _size_cache[l] = s
    return [(_size_cache[l] if Ins(l).op else 0) for l in lines]

E64_OK = ("v_exp_f32", "v_rcp_f32", "v_rsq_f32", "v_mul_f32", "v_add_f32", "v_sub_f32", "v_max_f32", "v_mov_b32", "v_and_b32", "v_or_b32", "v_xor_b32", "v_lshlrev_b32", "v_lshrrev_b32", "v_add_u32", "v_max_u32", "v_min_u32")
def align8(lines, start_off=0, verbose=False):
    lines = list(lines)
    sizes = ins_sizes(lines)
    out = []; off = start_off; last4 = None; nn = 0; nw = 0
    for l, s in zip(lines, sizes):
        if l.startswith(".p2align"):
            if int(l.split()[1].rstrip(",")) >= 3: off = 0; last4 = None
            out.append(l); continue
        if s == 0:
            if l.endswith(":"): pass
            out.append(l); continue
        if s >= 8 and off % 8 == 4:
            if last4 is not None:
                x = Ins(out[last4])
                out[last4] = out[last4].replace(x.op, x.op + "_e64", 1); nw += 1
            else:
                out.append("s_nop 0"); nn += 1
            off += 4; last4 = None
        if s == 4:
            x = Ins(l)
            has_lit = False
            if x.op in E64_OK and not x.dpp: last4 = len(out)
        else:
            last4 = None
        out.append(l); off += s
    if verbose: print(f"align8: widened {nw}, nops {nn}")
    return out
def misaligned(lines, start_off=0):
    sizes = ins_sizes(lines); off = start_off; n = 0
    for l, s in zip(lines, sizes):
        if l.startswith(".p2align"):
            if int(l.split()[1].rstrip(",")) >= 3: off = 0
            continue
        if s >= 8 and off % 8 == 4: n += 1
        off += s
    return n
```

```python
import sys
sys.path.insert(0, "dev")
from asmlib import *

NAME = "sequential_preLN__mha_block__mixer_token_mlp__prompt"
WS_Q   = 0
WS_KV  = 2 << 20
WS_NRM = 6 << 20
WS_CNT = (6 << 20) + (64 << 10)
WS_O   = 7 << 20
WS_ST  = 9 << 20
WS_H   = 10 << 20
WS_HT  = 12 << 20
WS_U   = 14 << 20
WS_SIZE = 16 << 20
KA_X, KA_WQKV, KA_WO, KA_W1, KA_B1, KA_W2, KA_B2, KA_OUT, KA_DBG, KA_WS = 0, 8, 16, 32, 40, 48, 56, 64, 72, 80
ONES = 0x3F803F80
LOG2E = 1.4426950408889634
MF = "v_mfma_f32_32x32x16_bf16"
OPT = {}
STAMP = False
STAMP_OFF = 32 << 20
SPIN_MAX = 0x40000

def f2u(x):
    import struct
    return struct.unpack("<I", struct.pack("<f", x))[0]

def srd(a, s, ptr, size):
    a(f"s_mov_b32 s{s}, s{ptr}")
    a(f"s_and_b32 s{s+1}, s{ptr+1}, 0xffff")
    a(f"s_mov_b32 s{s+2}, {size}")
    a(f"s_mov_b32 s{s+3}, 0x00020000")

class VM:
    def __init__(self, a): self.a = a; self.ops = []
    def op(self, tag, n=1): self.ops += [tag] * n
    def wait(self, *tags):
        last = -1
        for i, t in enumerate(self.ops):
            if t in tags: last = i
        assert last >= 0, tags
        n = len(self.ops) - 1 - last
        self.a(f"s_waitcnt vmcnt({min(n, 63)})")
        self.ops = self.ops[last + 1:]
    def drain(self):
        self.a("s_waitcnt vmcnt(0)"); self.ops = []

VST = 239
def stamp(a, k):
    if STAMP:
        a("s_memrealtime s[90:91]")
        a("s_waitcnt lgkmcnt(0)")
        a(f"v_writelane_b32 v{VST}, s90, {k}")

def cstamp(a, k=None):
    if STAMP:
        a("s_memtime s[90:91]")
        a("s_waitcnt lgkmcnt(0)")
        if k is None:
            a("s_add_u32 s91, s39, 20"); a("s_mov_b32 s89, m0"); a("s_mov_b32 m0, s91")
            a(f"v_writelane_b32 v{VST}, s90, m0"); a("s_mov_b32 m0, s89")
        else:
            a(f"v_writelane_b32 v{VST}, s90, {k}")

def kernel_head(a, name, nwg):
    a.lines.append(f".globl {name}")
    a.lines.append(".p2align 8")
    a.lines.append(f".type {name},@function")
    a.label(name)
    a(f"s_cmp_ge_u32 s2, {nwg}")
    a(f"s_cbranch_scc1 L_{name}_end")
    if STAMP:
        a(f"v_mov_b32 v{VST}, 0")
        a("s_memtime s[92:93]")
        stamp(a, 0)

def kernel_tail(a, name, kidx):
    if STAMP:
        a.label(f"L_{name}_stamp")
        a("s_waitcnt vmcnt(0) lgkmcnt(0)")
        a("s_memtime s[94:95]")
        stamp(a, 62)
        a("s_sub_u32 s94, s94, s92")
        a(f"v_writelane_b32 v{VST}, s94, 63")
        a("s_cmp_lg_u32 s22, 0")
        a(f"s_cbranch_scc1 L_{name}_end")
        a("s_mov_b64 exec, -1")
        a("s_lshl_b32 s30, s2, 8")
        a(f"s_add_u32 s30, s30, {STAMP_OFF + kidx*65536}")
        a("v_and_b32 v4, 63, v0")
        a("v_lshlrev_b32 v4, 2, v4")
        a("v_add_u32 v4, s30, v4")
        a(f"global_store_dword v4, v{VST}, s[20:21]")
        a("s_waitcnt vmcnt(0)")
    a.label(f"L_{name}_end")
    a("s_endpgm")

def kd(name, nv=256, acc=256, ns=100):
    return f""".amdhsa_kernel {name}
  .amdhsa_next_free_vgpr {nv}
  .amdhsa_next_free_sgpr {ns}
  .amdhsa_accum_offset {acc}
  .amdhsa_group_segment_fixed_size 0
  .amdhsa_kernarg_size 88
  .amdhsa_user_sgpr_count 2
  .amdhsa_user_sgpr_kernarg_segment_ptr 1
  .amdhsa_system_sgpr_workgroup_id_x 1
.end_amdhsa_kernel
"""

def emit_identity(a, base, vl, t0, t1, natural):
    a(f"v_mov_b32 v{t1+1}, 0x3f80")
    a(f"v_mov_b32 v{t1+2}, 0x3f800000")
    a(f"v_and_b32 v{t0}, 31, v{vl}")
    a(f"v_lshrrev_b32 v{t1}, 5, v{vl}")
    a(f"v_lshlrev_b32 v{t1}, {3 if natural else 2}, v{t1}")
    a(f"v_sub_u32 v{t0}, v{t0}, v{t1}")
    for q in range(2):
        for i in range(4):
            c = 16 * q + ((2 * i) if natural else (0, 2, 8, 10)[i])
            r = base + 4 * q + i
            a(f"v_cmp_eq_u32 vcc, {c}, v{t0}")
            a(f"v_cmp_eq_u32 s[58:59], {c+1}, v{t0}")
            a(f"v_cndmask_b32 v{r}, 0, v{t1+1}, vcc")
            a(f"v_cndmask_b32 v{r}, v{r}, v{t1+2}, s[58:59]")

def swap_add(a, v, t):
    a(f"v_mov_b32 v{t}, v{v}")
    a(f"v_permlane32_swap_b32 v{v}, v{t}")
    a(f"v_add_f32 v{v}, v{v}, v{t}")

def tile_map_CE(a, sct, srb):
    a(f"s_and_b32 s{sct}, s2, 1")
    a(f"s_lshl_b32 s{sct}, s{sct}, 2")
    a("s_lshr_b32 s68, s2, 3")
    a("s_and_b32 s69, s68, 3")
    a(f"s_add_u32 s{sct}, s{sct}, s69")
    a(f"s_bfe_u32 s{srb}, s2, 0x20001")
    a(f"s_lshl_b32 s{srb}, s{srb}, 3")
    a("s_lshr_b32 s69, s68, 2")
    a(f"s_add_u32 s{srb}, s{srb}, s69")

def tile_map_D(a, sdb, sfb):
    a(f"s_and_b32 s{sdb}, s2, 1")
    a(f"s_lshl_b32 s{sdb}, s{sdb}, 2")
    a("s_lshr_b32 s68, s2, 3")
    a("s_and_b32 s69, s68, 3")
    a(f"s_add_u32 s{sdb}, s{sdb}, s69")
    a(f"s_bfe_u32 s{sfb}, s2, 0x20001")
    a(f"s_mul_i32 s{sfb}, s{sfb}, 7")
    a("s_lshr_b32 s69, s68, 2")
    a(f"s_add_u32 s{sfb}, s{sfb}, s69")

def wtile_dma_voffs(a, base, vl, stride, t0, t1, n_regs=4):
    a(f"v_lshrrev_b32 v{t0}, 3, v{vl}")
    a(f"s_mov_b32 s69, {stride}")
    a(f"v_mul_lo_u32 v{t0}, v{t0}, s69")
    a(f"v_bfe_u32 v{t1}, v{vl}, 4, 1")
    a(f"v_lshlrev_b32 v{t1}, 2, v{t1}")
    a(f"v_and_b32 v{base}, 7, v{vl}")
    a(f"v_xor_b32 v{t1}, v{t1}, v{base}")
    a(f"v_lshl_add_u32 v{base}, v{t1}, 4, v{t0}")
    for n in range(1, n_regs):
        a(f"v_add_u32 v{base+n}, {n*8*stride}, v{base}")

def wtile_read_addrs(a, r0, r1, vl, t0, t1):
    a(f"v_lshrrev_b32 v{t0}, 5, v{vl}")
    a(f"v_lshlrev_b32 v{t0}, 2, v{t0}")
    a(f"v_bfe_u32 v{t1}, v{vl}, 2, 2")
    a(f"v_add_u32 v{t0}, v{t0}, v{t1}")
    a(f"v_lshlrev_b32 v{t0}, 7, v{t0}")
    a(f"v_bfe_u32 v{t1}, v{vl}, 4, 1")
    a(f"v_lshlrev_b32 v{t1}, 1, v{t1}")
    a(f"v_bfe_u32 v{r1}, v{vl}, 1, 1")
    a(f"v_add_u32 v{t1}, v{t1}, v{r1}")
    a(f"v_bfe_u32 v{r1}, v{vl}, 3, 1")
    a(f"v_lshlrev_b32 v{r1}, 2, v{r1}")
    a(f"v_xor_b32 v{t1}, v{t1}, v{r1}")
    a(f"v_lshl_add_u32 v{t0}, v{t1}, 4, v{t0}")
    a(f"v_and_b32 v{t1}, 1, v{vl}")
    a(f"v_lshl_add_u32 v{r0}, v{t1}, 3, v{t0}")
    a(f"v_xor_b32 v{r1}, 64, v{r0}")

def gen_K1():
    a = Asm(); name = "k1_kernel"
    kernel_head(a, name, 256)
    a(f"s_load_dwordx4 s[4:7], s[0:1], {KA_X}")
    a(f"s_load_dwordx2 s[20:21], s[0:1], {KA_WS}")
    a("v_lshrrev_b32 v2, 6, v0")
    a("v_and_b32 v1, 63, v0")
    a("v_readfirstlane_b32 s22, v2")
    a("s_getpc_b64 s[32:33]")
    a.label("L_k1_pc")
    a("v_lshlrev_b32 v3, 6, v0")
    a("global_load_dword v8, v3, s[32:33]")
    a("s_add_u32 s34, s32, k2_kernel-L_k1_pc")
    a("s_addc_u32 s35, s33, 0")
    a("s_lshr_b32 s36, s2, 3")
    a("s_lshl_b32 s36, s36, 11")
    a("v_and_b32 v3, 31, v0")
    a("v_lshlrev_b32 v3, 6, v3")
    a("v_add_u32 v3, s36, v3")
    a("v_min_u32 v3, K2_CODE_BYTES, v3")
    a("global_load_dword v9, v3, s[34:35]")
    a("s_and_b32 s23, s2, 3")
    a("s_lshl_b32 s23, s23, 2")
    a("s_lshr_b32 s29, s2, 3")
    a("s_and_b32 s30, s29, 3")
    a("s_add_u32 s23, s23, s30")
    a("s_bfe_u32 s24, s2, 0x10002")
    a("s_lshl_b32 s24, s24, 3")
    a("s_lshr_b32 s30, s29, 2")
    a("s_add_u32 s24, s24, s30")
    a("s_lshl_b32 s25, s23, 17")
    a("s_lshl_b32 s30, s22, 15")
    a("s_add_u32 s25, s25, s30")
    a("s_mul_i32 s26, s22, 49152")
    a("s_lshl_b32 s30, s24, 6")
    a("s_add_u32 s26, s26, s30")
    SLOT = 28672; L0 = 1024
    a("s_lshl_b32 s27, s22, 12")
    a(f"s_add_u32 s27, s27, {L0}")
    a("s_lshl_b32 s28, s22, 10")
    a(f"s_add_u32 s28, s28, {L0 + 16384}")
    a("v_lshrrev_b32 v8, 3, v1") if False else None
    a("v_lshrrev_b32 v10, 3, v1")
    a("v_lshlrev_b32 v10, 10, v10")
    a("v_lshrrev_b32 v11, 4, v1")
    a("v_and_b32 v12, 7, v1")
    a("v_xor_b32 v11, v11, v12")
    for n in range(4):
        a(f"v_xor_b32 v12, {4*(n&1)}, v11")
        a(f"v_lshl_add_u32 v12, v12, 4, v10")
        a(f"v_add_u32 v{2+n}, {n*8192}, v12")
    a("v_lshrrev_b32 v10, 2, v1")
    a("s_movk_i32 s30, 3072")
    a("v_mul_lo_u32 v10, v10, s30")
    a("v_and_b32 v11, 3, v1")
    a("v_lshl_add_u32 v6, v11, 4, v10")
    a("s_waitcnt lgkmcnt(0)")
    srd(a, 8, 4, 2048 * 512 * 2)
    srd(a, 12, 6, 512 * 1536 * 2)
    srd(a, 16, 20, WS_SIZE)
    vm = VM(a); vm.op("code", 2)
    def dma_stage(s):
        slot = s % 5
        for n in range(4):
            a(f"s_add_u32 m0, s27, {slot*SLOT + n*1024 - s*128}")
            if n == 0: a(f"s_add_u32 s29, s26, {s*196608}")
            else: a("s_nop 0")
            a(f"buffer_load_dwordx4 v{2+n}, s[8:11], s25 offen offset:{s*128} lds")
        for t in range(3):
            a(f"s_add_u32 m0, s28, {slot*SLOT + t*4096 - t*1024}")
            a("s_nop 0")
            a(f"buffer_load_dwordx4 v6, s[12:15], s29 offen offset:{t*1024} lds")
        vm.op(("st", s), 7)
    for s in range(3): dma_stage(s)
    stamp(a, 1)
    a("v_and_b32 v10, 31, v1")
    a("v_lshrrev_b32 v11, 5, v1")
    a("v_bfe_u32 v16, v1, 1, 3")
    a("v_lshlrev_b32 v10, 7, v10")
    a("v_add_u32 v10, s27, v10")
    for ks in range(4):
        a(f"v_add_u32 v17, {2*ks}, v11")
        a("v_xor_b32 v17, v17, v16")
        a(f"v_lshl_add_u32 v{12+ks}, v17, 4, v10")
    a("v_bfe_u32 v10, v1, 2, 2")
    a("v_lshl_add_u32 v10, v11, 3, v10")
    a("v_lshlrev_b32 v10, 6, v10")
    a("v_bfe_u32 v16, v1, 4, 1")
    a("v_lshl_add_u32 v10, v16, 5, v10")
    a("v_and_b32 v16, 3, v1")
    a("v_lshl_add_u32 v10, v16, 3, v10")
    a(f"v_add_u32 v7, {L0 + 16384}, v10")
    a("s_lshl_b32 s30, s22, 10")
    a("v_add_u32 v11, s30, v7")
    XF = [16, 20]; WF = [24, 36]; CF = 48
    SUM = [60, 61]; SQ = [62, 63]; CS = [64, 65, 66, 67, 68, 69]
    ACC = [80, 96, 112]
    for r in SUM + SQ + CS: a(f"v_mov_b32 v{r}, 0")
    for b in ACC:
        for r in range(16): a(f"v_mov_b32 v{b+r}, 0")
    a(f"s_mov_b32 s31, {ONES:#x}")
    def rdx(ks, buf): a(f"ds_read_b128 {vr(XF[buf],4)}, v{12+ks}")
    def rdw(ks, buf, t):
        for q in range(2):
            a(f"ds_read_b64_tr_b16 {vr(WF[buf]+4*t+2*q,2)}, v7 offset:{t*4096 + ks*1024 + q*256}")
    def creads():
        for t in range(3):
            for q in range(2):
                a(f"ds_read_b64_tr_b16 {vr(CF+4*t+2*q,2)}, v11 offset:{t*4096 + q*256}")
    def advance(s):
        d = ((s + 1) % 5 - s % 5) * SLOT
        for r in (12, 13, 14, 15, 7, 11):
            if d >= 0: a(f"v_add_u32 v{r}, {d}, v{r}")
            else: a(f"v_subrev_u32 v{r}, {-d}, v{r}")
    dma_stage(3)
    vm.wait(("st", 0))
    a("s_barrier")
    stamp(a, 2)
    rdx(0, 0)
    for t in range(3): rdw(0, 0, t)
    for s in range(8):
        for ks in range(4):
            buf = ks & 1; x = XF[buf]
            mf = lambda t: a(f"{MF} {vr(ACC[t],16)}, {vr(WF[buf]+4*t,4)}, {vr(x,4)}, {vr(ACC[t],16)}")
            a("s_waitcnt lgkmcnt(0)")
            if ks < 3:
                mf(0); rdx(ks + 1, buf ^ 1); rdw(ks + 1, buf ^ 1, 0)
                mf(1); rdw(ks + 1, buf ^ 1, 1); rdw(ks + 1, buf ^ 1, 2)
                mf(2)
                if ks == 1: creads()
                if s == 0 and ks == 0: dma_stage(4)
            else:
                mf(0); mf(1); mf(2)
                if s < 7:
                    vm.wait(("st", s + 1))
                    a("s_barrier")
                    advance(s)
                    rdx(0, 0)
                    for t in range(3): rdw(0, 0, t)
                    if s + 5 <= 7: dma_stage(s + 5)
            for i in range(4):
                a(f"v_dot2c_f32_bf16 v{SUM[i&1]}, s31, v{x+i}")
                a(f"v_dot2c_f32_bf16 v{SQ[i&1]}, v{x+i}, v{x+i}")
            if ks == 3 or ks == 2:
                pass
            if ks == 2:
                for t in range(3):
                    for i in range(4):
                        a(f"v_dot2c_f32_bf16 v{CS[2*t+(i&1)]}, s31, v{CF+4*t+i}")
    stamp(a, 3)
    SCR = L0 + 5 * SLOT
    for t in range(3): a(f"v_add_f32 v{64+t*2}, v{64+t*2}, v{65+t*2}")
    for t in range(3): swap_add(a, 64 + 2*t, 72 + t)
    a("v_and_b32 v8, 31, v1")
    a("v_lshlrev_b32 v8, 2, v8")
    a("s_mul_i32 s30, s22, 384")
    a(f"s_add_u32 s30, s30, {SCR}")
    a("v_add_u32 v9, s30, v8")
    for t in range(3): a(f"ds_write_b32 v9, v{64+2*t} offset:{t*128}")
    a(f"v_add_f32 v60, v60, v61")
    a(f"v_add_f32 v62, v62, v63")
    swap_add(a, 60, 70); swap_add(a, 62, 71)
    a("s_waitcnt lgkmcnt(0)")
    a("s_barrier")
    a("v_lshlrev_b32 v10, 2, v1")
    a(f"v_add_u32 v10, {SCR}, v10")
    for w in range(4): a(f"ds_read_b32 v{64+w}, v10 offset:{w*384}")
    a(f"v_add_u32 v9, {SCR + 256}, v8")
    for w in range(4): a(f"ds_read_b32 v{68+w}, v9 offset:{w*384}")
    a(f"s_mov_b32 s30, {f2u(1.0/512):#x}")
    a("v_mul_f32 v60, s30, v60")
    a("v_mul_f32 v62, s30, v62")
    a("v_fma_f32 v62, -v60, v60, v62")
    a("v_max_f32 v62, 0, v62")
    a(f"v_add_f32 v62, {f2u(1e-5):#x}, v62")
    a("v_rsq_f32 v62, v62")
    a("v_sub_f32 v60, 0, v60")
    a("v_mov_b32 v61, v60")
    a("v_mov_b32 v63, v62")
    a(f"v_mul_f32 v74, {f2u(0.25*LOG2E):#x}, v62")
    a("v_mov_b32 v75, v74")
    a("s_waitcnt lgkmcnt(0)")
    a("v_add_f32 v64, v64, v65"); a("v_add_f32 v66, v66, v67"); a("v_add_f32 v68, v68, v69"); a("v_add_f32 v70, v70, v71")
    a("v_add_f32 v64, v64, v66"); a("v_add_f32 v68, v68, v70")
    a("s_lshl_b32 s30, s22, 9")
    a(f"s_add_u32 s30, s30, {SCR + 2048}")
    a("v_lshlrev_b32 v10, 2, v1")
    a("v_add_u32 v10, s30, v10")
    a("ds_write_b32 v10, v64")
    a("v_add_u32 v9, s30, v8")
    a("ds_write_b32 v9, v68 offset:256")
    a("v_lshrrev_b32 v9, 5, v1")
    a("v_lshlrev_b32 v9, 4, v9")
    a("v_add_u32 v9, s30, v9")
    a("s_waitcnt lgkmcnt(0)")
    CSR = 128
    for t in (2, 0, 1):
        for g in range(4):
            a(f"ds_read_b128 {vr(CSR+16*t+4*g,4)}, v9 offset:{t*128 + g*32}")
    IDS = 176
    emit_identity(a, IDS, 1, 76, 77, False)
    PK = 184
    for n, t in enumerate((2, 0, 1)):
        a(f"s_waitcnt lgkmcnt({8 - 4*n})")
        for r in range(0, 16, 2):
            a(f"v_pk_fma_f32 {vr(ACC[t]+r,2)}, {vr(CSR+16*t+r,2)}, v[60:61], {vr(ACC[t]+r,2)}")
        sc = "v[74:75]" if t == 0 else "v[62:63]"
        for r in range(0, 16, 2):
            a(f"v_pk_mul_f32 {vr(ACC[t]+r,2)}, {vr(ACC[t]+r,2)}, {sc}")
        for i in range(8):
            a(f"v_cvt_pk_bf16_f32 v{PK+8*t+i}, v{ACC[t]+2*i}, v{ACC[t]+2*i+1}")
        if t == 2:
            a(f"{MF} {vr(208,16)}, {vr(PK+16,4)}, {vr(IDS,4)}, 0")
            a(f"{MF} {vr(208,16)}, {vr(PK+20,4)}, {vr(IDS+4,4)}, {vr(208,16)}")
        else:
            if t == 0:
                a("s_lshl_b32 s29, s23, 2")
                a("s_add_u32 s29, s29, s22")
                a("s_lshl_b32 s30, s24, 7")
                a("s_add_u32 s30, s30, s29")
                a("v_lshlrev_b32 v8, 4, v1")
                a("s_lshl_b32 s32, s30, 10")
                a(f"s_add_u32 s32, s32, {WS_Q}")
                a("s_add_u32 s33, s32, 65536")
                a(f"buffer_store_dwordx4 {vr(PK,4)}, v8, s[16:19], s32 offen")
                a(f"buffer_store_dwordx4 {vr(PK+4,4)}, v8, s[16:19], s33 offen")
            else:
                a("s_lshl_b32 s32, s30, 11")
                a(f"s_add_u32 s32, s32, {WS_KV}")
                a("s_add_u32 s33, s32, 131072")
                a(f"buffer_store_dwordx4 {vr(PK+8,4)}, v8, s[16:19], s32 offen")
                a(f"buffer_store_dwordx4 {vr(PK+12,4)}, v8, s[16:19], s33 offen")
    for i in range(8):
        a(f"v_cvt_pk_bf16_f32 v{PK+16+i}, v{208+2*i}, v{208+2*i+1}")
    a("v_bfe_u32 v9, v1, 4, 1")
    a("v_lshlrev_b32 v9, 17, v9")
    a("v_lshrrev_b32 v10, 5, v1")
    a("v_lshl_add_u32 v9, v10, 8, v9")
    a("v_and_b32 v10, 15, v1")
    a("v_lshl_add_u32 v9, v10, 4, v9")
    a(f"buffer_store_dwordx4 {vr(PK+16,4)}, v9, s[16:19], s32 offen offset:1024")
    a(f"buffer_store_dwordx4 {vr(PK+20,4)}, v9, s[16:19], s32 offen offset:1536")
    stamp(a, 4)
    for t in range(2):
        for hd in range(2):
            r = 64 + 2*t + hd; b = ACC[t] + 8*hd
            a(f"v_mul_f32 v{r}, v{b}, v{b}")
    for i in range(1, 8):
        for t in range(2):
            for hd in range(2):
                r = 64 + 2*t + hd; b = ACC[t] + 8*hd
                a(f"v_fma_f32 v{r}, v{b+i}, v{b+i}, v{r}")
    for k in range(4): a(f"v_mov_b32 v{70+k}, v{64+k}")
    for k in range(4): a(f"v_permlane32_swap_b32 v{64+k}, v{70+k}")
    for k in range(4): a(f"v_add_f32 v{64+k}, v{64+k}, v{70+k}")
    for sh in (1, 2, 4, 8):
        for k in range(4):
            a(f"v_max_u32_dpp v{64+k}, v{64+k}, v{64+k} row_ror:{sh} row_mask:0xf bank_mask:0xf")
    a("s_lshl_b32 s32, s23, 3")
    a("s_lshl_b32 s33, s22, 1")
    a("s_add_u32 s32, s32, s33")
    a("s_lshl_b32 s33, s24, 8")
    a("s_add_u32 s32, s32, s33")
    a("s_lshl_b32 s32, s32, 2")
    a(f"s_add_u32 s32, s32, {WS_NRM}")
    a("s_add_u32 s33, s32, 16384")
    a("v_lshrrev_b32 v10, 4, v1")
    a("v_lshlrev_b32 v10, 2, v10")
    a("s_mov_b32 exec_lo, 0x00010001")
    a("s_mov_b32 exec_hi, 0")
    for hd in range(2):
        a(f"buffer_store_dword v{64+hd}, v10, s[16:19], s32 offen offset:{hd*512}")
        a(f"buffer_store_dword v{66+hd}, v10, s[16:19], s33 offen offset:{hd*512}")
    a("s_mov_b64 exec, -1")
    a("s_cmp_gt_u32 s22, 1")
    a(f"s_cbranch_scc1 L_{name}_fin")
    a("s_lshl_b32 s32, s2, 10")
    a("s_cmp_eq_u32 s22, 0")
    a(f"s_cbranch_scc0 L_{name}_cnt")
    a("v_mov_b32 v20, -1"); a("v_mov_b32 v21, -1"); a("v_mov_b32 v22, -1"); a("v_mov_b32 v23, -1")
    a(f"s_add_u32 s32, s32, {WS_ST}")
    a("buffer_store_dwordx4 v[20:23], v8, s[16:19], s32 offen")
    a(f"s_branch L_{name}_fin")
    a.label(f"L_{name}_cnt")
    a("s_cmp_ge_u32 s2, 12")
    a(f"s_cbranch_scc1 L_{name}_fin")
    a("v_mov_b32 v20, 0"); a("v_mov_b32 v21, 0"); a("v_mov_b32 v22, 0"); a("v_mov_b32 v23, 0")
    a(f"s_add_u32 s32, s32, {WS_CNT}")
    a("buffer_store_dwordx4 v[20:23], v8, s[16:19], s32 offen")
    a.label(f"L_{name}_fin")
    kernel_tail(a, name, 0)
    return name, a.lines, 1024 + 5*SLOT + 4096

VH = 240
VB1 = 224
S_X, S_WO, S_W1, S_B1, S_W2, S_B2, S_OUT = 40, 44, 48, 50, 52, 54, 56

def arrive(a, s_off, tmpv=8):
    a("s_waitcnt vmcnt(0)")
    a("s_barrier")
    lab = a.uniq("arr")
    a("s_cmp_lg_u32 s22, 0")
    a(f"s_cbranch_scc1 {lab}")
    a(f"v_mov_b32 v{tmpv}, 0")
    a(f"v_mov_b32 v{tmpv+1}, 1")
    a("s_mov_b64 exec, 1")
    a(f"buffer_atomic_add v{tmpv+1}, v{tmpv}, s[16:19], {s_off} offen sc1")
    a("s_mov_b64 exec, -1")
    a.label(lab)

def await_cnt(a, s_off, n, tmpv=8):
    lab = a.uniq("pw"); done = a.uniq("pd")
    a("s_cmp_lg_u32 s22, 0")
    a(f"s_cbranch_scc1 {done}")
    a(f"v_mov_b32 v{tmpv}, 0")
    a(f"s_mov_b32 s37, {SPIN_MAX}")
    a.label(lab)
    a(f"buffer_load_dword v{tmpv+1}, v{tmpv}, s[16:19], {s_off} offen sc1")
    a("s_waitcnt vmcnt(0)")
    a(f"v_readfirstlane_b32 s38, v{tmpv+1}")
    a("s_sub_u32 s37, s37, 1")
    a("s_cmp_eq_u32 s37, 0")
    a(f"s_cbranch_scc1 {done}")
    a(f"s_cmp_lt_u32 s38, {n}")
    a(f"s_cbranch_scc1 {lab}")
    a.label(done)
    a("s_barrier")

def phase_B(a):
    name = "kb"
    a("s_and_b32 s23, s2, 31")
    a("s_lshr_b32 s24, s2, 5")
    a("s_lshr_b32 s25, s22, 1")
    a("s_and_b32 s26, s22, 1")
    Q = [4, 8, 12, 16]; KF = [20, 24]; VF = [[28, 32], [36, 40]]; S = [44, 60]; P = 76
    O = [84, 100, 116, 132]; NM = [148, 164, 180, 196]
    VK, VV, VPF1, VPF2, VDUM = 212, 213, 214, 215, 216
    a("s_lshl_b32 s28, s23, 9")
    a(f"s_add_u32 s28, s28, {WS_NRM}")
    a("v_lshlrev_b32 v3, 3, v1")
    a("s_add_u32 s29, s28, 16384")
    a("buffer_load_dwordx2 v[218:219], v3, s[16:19], s28 offen")
    a("buffer_load_dwordx2 v[220:221], v3, s[16:19], s29 offen")
    a("s_lshl_b32 s27, s24, 3")
    a("s_lshl_b32 s28, s25, 2")
    a("s_add_u32 s27, s27, s28")
    a("s_lshl_b32 s28, s27, 10")
    a("s_lshl_b32 s29, s23, 16")
    a("s_add_u32 s28, s28, s29")
    a(f"s_add_u32 s28, s28, {WS_Q}")
    for z in range(4):
        a(f"buffer_load_dwordx4 {vr(Q[z],4)}, v2, s[16:19], s28 offen offset:{z*1024}")
    a("s_lshl_b32 s31, s26, 16")
    a("s_lshl_b32 s28, s25, 13")
    a("s_add_u32 s31, s31, s28")
    a("s_lshl_b32 s30, s23, 17")
    a("s_add_u32 s30, s30, s31")
    a(f"s_add_u32 s30, s30, {WS_KV}")
    def dma_chunk():
        a("s_mov_b32 m0, s31")
        a("s_add_u32 s32, s30, 4096")
        for k in range(4): a(f"buffer_load_dwordx4 v2, s[16:19], s30 offen offset:{k*1024} lds")
        a("s_add_u32 m0, s31, 4096")
        a("s_add_u32 s30, s30, 16384")
        for k in range(4): a(f"buffer_load_dwordx4 v2, s[16:19], s32 offen offset:{k*1024} lds")
        a("s_add_u32 s31, s31, 16384")
    dma_chunk()
    tile_map_D(a, 33, 34)
    srd(a, 8, S_B1, 1792 * 2)
    a("v_lshrrev_b32 v3, 5, v1")
    a("v_lshlrev_b32 v3, 3, v3")
    a("s_lshl_b32 s35, s34, 7")
    a("s_lshl_b32 s36, s26, 6")
    a("s_add_u32 s35, s35, s36")
    for g in range(4):
        a(f"buffer_load_dwordx2 {vr(VB1+2*g,2)}, v3, s[8:11], s35 offen offset:{g*16}")
    tile_map_CE(a, 35, 36)
    srd(a, 12, S_B2, 2048 * 2)
    a("v_and_b32 v3, 31, v1")
    a("v_lshlrev_b32 v3, 1, v3")
    a("s_lshl_b32 s37, s36, 7")
    a("s_lshl_b32 s38, s25, 6")
    a("s_add_u32 s37, s37, s38")
    a(f"buffer_load_ushort v{VB1+8}, v3, s[12:15], s37 offen")
    a("s_lshl_b32 s37, s22, 8")
    a("v_add_u32 v3, s37, v1")
    a("v_lshrrev_b32 v217, 1, v3")
    a("v_and_b32 v3, 1, v3")
    a("v_lshlrev_b32 v3, 6, v3")
    a("s_and_b32 s37, s33, 3")
    a("s_lshl_b32 s37, s37, 9")
    a(f"v_add_u32 v{VPF1}, s37, v217")
    a("s_movk_i32 s38, 3584")
    a(f"v_mul_lo_u32 v{VPF1}, v{VPF1}, s38")
    a("s_lshl_b32 s37, s34, 7")
    a(f"v_add3_u32 v{VPF1}, v{VPF1}, s37, v3")
    a("s_and_b32 s37, s35, 3")
    a("s_mul_i32 s37, s37, 448")
    a(f"v_add_u32 v{VPF2}, s37, v217")
    a(f"v_lshlrev_b32 v{VPF2}, 12, v{VPF2}")
    a("s_lshl_b32 s37, s36, 7")
    a(f"v_add3_u32 v{VPF2}, v{VPF2}, s37, v3")
    srd(a, 8, S_W1, 2048 * 1792 * 2)
    srd(a, 12, S_W2, 1792 * 2048 * 2)
    srd(a, 4, S_WO, 512 * 512 * 2)
    for r in range(28, 44): a(f"v_mov_b32 v{r}, {ONES:#x}")
    a("v_and_b32 v3, 31, v1")
    a("v_cmp_eq_u32 vcc, 16, v3")
    a("v_cmp_eq_u32 s[58:59], 20, v3")
    a("s_or_b64 vcc, vcc, s[58:59]")
    for r in range(28, 44): a(f"v_cndmask_b32 v{r}, 0, v{r}, vcc")
    for r in range(P, P + 8): a(f"v_mov_b32 v{r}, 0")
    for z in range(4):
        for r in range(16): a(f"v_mov_b32 v{O[z]+r}, 0")
    a("s_lshl_b32 s28, s26, 16")
    a(f"v_add_u32 v{VK}, s28, v2")
    a(f"v_lshrrev_b32 v{VV}, 5, v1")
    a(f"v_lshlrev_b32 v{VV}, 8, v{VV}")
    a("v_and_b32 v3, 15, v1")
    a(f"v_lshl_add_u32 v{VV}, v3, 4, v{VV}")
    a("s_add_u32 s28, s28, 1024")
    a(f"v_add_u32 v{VV}, s28, v{VV}")
    a("s_mov_b32 s58, 0x0000ffff"); a("s_mov_b32 s59, 0x0000ffff")
    a("s_waitcnt vmcnt(17)")
    a("v_max_u32 v218, v218, v219")
    a("v_max_u32 v220, v220, v221")
    for sh in (1, 2, 4, 8):
        a(f"v_max_u32_dpp v218, v218, v218 row_ror:{sh} row_mask:0xf bank_mask:0xf")
        a(f"v_max_u32_dpp v220, v220, v220 row_ror:{sh} row_mask:0xf bank_mask:0xf")
    for k, r in ((0, 218), (1, 220)):
        for row in range(4):
            a(f"v_readlane_b32 s{60+4*k+row}, v{r}, {16*row}")
    a("s_max_u32 s60, s60, s61"); a("s_max_u32 s62, s62, s63"); a("s_max_u32 s60, s60, s62")
    a("s_max_u32 s64, s64, s65"); a("s_max_u32 s66, s66, s67"); a("s_max_u32 s64, s64, s66")
    a("v_mov_b32 v218, s60")
    a("v_mul_f32 v218, s64, v218")
    a(f"s_mov_b32 s61, {f2u(1600.0/1.03):#x}")
    a("v_cmp_ge_f32 vcc, s61, v218")
    a("s_cmp_eq_u64 vcc, 0")
    a(f"s_cbranch_scc1 L_{name}_slow")
    MASK_ON = "s_mov_b64 exec, s[58:59]"
    def wo_dma():
        wtile_dma_voffs(a, 218, 1, 1024, 222, 223, 4)
        a("s_lshl_b32 s37, s26, 8")
        a("s_lshl_b32 s38, s25, 5")
        a("s_add_u32 s37, s37, s38")
        a("s_lshl_b32 s37, s37, 10")
        a("s_lshl_b32 s28, s35, 7")
        a("s_add_u32 s37, s37, s28")
        a("s_lshl_b32 s28, s26, 16")
        a("s_lshl_b32 s38, s38, 7")
        a("s_add_u32 s38, s38, s28")
        for cc in range(4):
            for n in range(4):
                a(f"s_add_u32 m0, s38, {cc*8192 + n*1024}")
                a(f"s_add_u32 s28, s37, {cc*65536}")
                a(f"buffer_load_dwordx4 v{218+n}, s[4:7], s28 offen lds")
    def first_reads():
        a(f"ds_read_b128 {vr(KF[0],4)}, v{VK}")
        a(MASK_ON)
        a(f"ds_read_b128 {vr(VF[0][0],4)}, v{VV}")
        a(f"ds_read_b128 {vr(VF[0][1],4)}, v{VV} offset:512")
        a("s_mov_b64 exec, -1")
        a("s_waitcnt lgkmcnt(0)")
    def main_loop(tag, slow):
        C = (lambda z: vr(NM[z], 16)) if slow else (lambda z: "0")
        first_reads()
        a(f"{MF} {vr(S[0],16)}, {vr(KF[0],4)}, {vr(Q[0],4)}, {C(0)}")
        a("s_mov_b32 s39, 0")
        a.nop(12)
        a.lines.append(".p2align 6")
        a.label(f"L_{name}_{tag}_loop")
        if not slow: cstamp(a)
        if not slow and not OPT.get("nodma"):
            a("s_cmp_eq_u32 s39, 3")
            a(f"s_cbranch_scc1 L_{name}_wo")
            dma_chunk()
            a.label(f"L_{name}_back")
        for t in range(8):
            for z in range(4):
                s = S[z & 1]; sn = S[(z + 1) & 1]
                pz = (z - 1) & 3; pt = t if z > 0 else t - 1
                nz = (z + 1) & 3; nt = t if z < 3 else t + 1
                e = lambda i: a(f"v_exp_f32 v{s+i}, v{s+i}")
                c = lambda i: a(f"v_cvt_pk_bf16_f32 v{P+i}, v{s+2*i}, v{s+2*i+1}")
                if z == 0 and t == 7 and not slow:
                    if not OPT.get("nobar"):
                        a("s_waitcnt vmcnt(0)")
                        a("s_barrier")
                    if not OPT.get("nopf"):
                        a(f"buffer_load_dword v{VDUM}, v{VPF1}, s[8:11], 0 offen")
                        a(f"buffer_load_dword v{VDUM}, v{VPF2}, s[12:15], 0 offen")
                e(0); e(1)
                a(f"{MF} {vr(O[pz],16)}, {vr(VF[pt&1][1],4)}, {vr(P+4,4)}, {vr(O[pz],16)}")
                if z == 0: a(f"ds_read_b128 {vr(KF[(t+1)&1],4)}, v{VK} offset:{(t+1)*2048}")
                e(2); e(3)
                if z == 0:
                    a(MASK_ON)
                    a(f"ds_read_b128 {vr(VF[(t+1)&1][0],4)}, v{VV} offset:{(t+1)*2048}")
                    a(f"ds_read_b128 {vr(VF[(t+1)&1][1],4)}, v{VV} offset:{(t+1)*2048+512}")
                    a("s_mov_b64 exec, -1")
                e(4); e(5); e(6)
                if z == 3: a("s_waitcnt lgkmcnt(0)")
                a(f"{MF} {vr(sn,16)}, {vr(KF[nt&1],4)}, {vr(Q[nz],4)}, {C(nz)}")
                e(7); c(0); c(1); c(2); c(3); e(8); e(9); e(10)
                a(f"{MF} {vr(O[z],16)}, {vr(VF[t&1][0],4)}, {vr(P,4)}, {vr(O[z],16)}")
                e(11); e(12); e(13); e(14); e(15); c(4); c(5); c(6); c(7)
        a(f"v_add_u32 v{VK}, 0x4000, v{VK}")
        a(f"v_add_u32 v{VV}, 0x4000, v{VV}")
        if not slow:
            a(f"v_add_u32 v{VPF1}, {32*3584}, v{VPF1}")
            a(f"v_add_u32 v{VPF2}, {32*4096}, v{VPF2}")
        a("s_add_u32 s39, s39, 1")
        a("s_cmp_lt_u32 s39, 4")
        a(f"s_cbranch_scc1 L_{name}_{tag}_loop")
    a("s_waitcnt vmcnt(5)")
    a("s_barrier")
    stamp(a, 1)
    main_loop("f", False)
    cstamp(a, 24)
    a(f"s_branch L_{name}_fin")
    a.label(f"L_{name}_wo")
    wo_dma()
    a(f"s_branch L_{name}_back")
    a.label(f"L_{name}_slow")
    for c in range(3): dma_chunk()
    a("s_waitcnt vmcnt(0)")
    a("s_barrier")
    for z in range(4): a(f"v_mov_b32 v{218+z}, 0xff800000")
    a("s_mov_b32 s39, 0")
    a("v_mov_b32 v222, v2")
    a.label(f"L_{name}_p1")
    a(f"ds_read_b128 {vr(KF[0],4)}, v222")
    a("v_add_u32 v222, 0x800, v222")
    a("s_waitcnt lgkmcnt(0)")
    for zz in range(2):
        a(f"{MF} {vr(S[0],16)}, {vr(KF[0],4)}, {vr(Q[2*zz],4)}, 0")
        a(f"{MF} {vr(S[1],16)}, {vr(KF[0],4)}, {vr(Q[2*zz+1],4)}, 0")
        for z in range(2):
            for r in range(0, 16, 2):
                a(f"v_max3_f32 v{218+2*zz+z}, v{S[z]+r}, v{S[z]+r+1}, v{218+2*zz+z}")
    a("s_add_u32 s39, s39, 1")
    a("s_cmp_lt_u32 s39, 64")
    a(f"s_cbranch_scc1 L_{name}_p1")
    for z in range(4):
        a(f"v_mov_b32 v222, v{218+z}")
        a(f"v_permlane32_swap_b32 v{218+z}, v222")
        a(f"v_max_f32 v{218+z}, v{218+z}, v222")
        a(f"v_sub_f32 v{218+z}, 0, v{218+z}")
        for r in range(16): a(f"v_mov_b32 v{NM[z]+r}, v{218+z}")
    main_loop("s", True)
    a("s_barrier")
    wo_dma()
    a.label(f"L_{name}_fin")
    stamp(a, 2)
    a.nop(2)
    a(f"{MF} {vr(O[3],16)}, {vr(VF[1][1],4)}, {vr(P+4,4)}, {vr(O[3],16)}")
    SCR = 131072
    a("s_xor_b32 s28, s22, 1")
    a("s_mul_i32 s28, s28, 6144")
    a(f"s_add_u32 s28, s28, {SCR}")
    a("v_add_u32 v218, s28, v2")
    a("s_mul_i32 s28, s22, 6144")
    a(f"s_add_u32 s28, s28, {SCR}")
    a("v_add_u32 v219, s28, v2")
    a("s_lshl_b32 s29, s27, 15")
    a("s_lshl_b32 s28, s23, 10")
    a("s_add_u32 s29, s29, s28")
    a(f"s_add_u32 s29, s29, {WS_O}")
    a("s_cmp_eq_u32 s26, 0")
    a(f"s_cbranch_scc0 L_{name}_x1")
    for kh in range(2):
        if kh == 1: a.label(f"L_{name}_x1")
        a.nop(12)
        for n in range(2):
            z = 2 * (1 - kh) + n
            for g in range(3): a(f"ds_write_b128 v218, {vr(O[z]+4*g,4)} offset:{n*3072+g*1024}")
        a("s_waitcnt lgkmcnt(0)")
        a("s_barrier")
        for n in range(2):
            for g in range(3): a(f"ds_read_b128 {vr(S[0]+12*n+4*g,4)}, v219 offset:{n*3072+g*1024}")
        for n in range(2):
            z = 2 * kh + n
            a(f"s_waitcnt lgkmcnt({3*(1-n)})")
            for r in range(9): a(f"v_add_f32 v{O[z]+r}, v{O[z]+r}, v{S[0]+12*n+r}")
            a(f"v_rcp_f32 v220, v{O[z]+8}")
            a("s_nop 0")
            for r in range(8): a(f"v_mul_f32 v{O[z]+r}, v{O[z]+r}, v220")
            for i in range(4): a(f"v_cvt_pk_bf16_f32 v{P+4*n+i}, v{O[z]+2*i}, v{O[z]+2*i+1}")
            a(f"s_add_u32 s28, s29, {z*32768}")
            a(f"buffer_store_dwordx4 {vr(P+4*n,4)}, v2, s[16:19], s28 offen sc1")
        if kh == 0: a(f"s_branch L_{name}_x2")
    a.label(f"L_{name}_x2")
    a("s_lshl_b32 s28, s24, 8")
    a(f"s_add_u32 s28, s28, {WS_CNT}")
    arrive(a, "s28")
    stamp(a, 3)

def phase_C(a):
    name = "kc"
    tile_map_CE(a, 23, 24)
    a("s_lshl_b32 s31, s24, 1")
    a("s_add_u32 s31, s31, s25")
    srd(a, 8, S_X, 2048 * 512 * 2)
    XF = 96
    a("v_and_b32 v8, 31, v1")
    a("v_lshlrev_b32 v8, 10, v8")
    a("v_lshrrev_b32 v9, 5, v1")
    a("v_lshl_add_u32 v8, v9, 4, v8")
    a("s_lshl_b32 s33, s31, 15")
    a("s_lshl_b32 s34, s23, 7")
    a("s_add_u32 s33, s33, s34")
    a("s_lshl_b32 s34, s26, 6")
    a("s_add_u32 s33, s33, s34")
    a(f"buffer_load_dwordx4 {vr(XF,4)}, v8, s[8:11], s33 offen")
    a(f"buffer_load_dwordx4 {vr(XF+4,4)}, v8, s[8:11], s33 offen offset:32")
    wtile_read_addrs(a, 10, 11, 1, 8, 9)
    a("s_lshl_b32 s34, s26, 16")
    a("v_add_u32 v10, s34, v10")
    a("v_add_u32 v11, s34, v11")
    IDN = 104; IDS = 112
    emit_identity(a, IDN, 1, 12, 13, True)
    emit_identity(a, IDS, 1, 12, 13, False)
    ACC = [128, 144]; WF = [16, 24]; RES = 160; OF = 32
    for b in ACC:
        for r in range(16): a(f"v_mov_b32 v{b+r}, 0")
    a("s_waitcnt vmcnt(0)")
    a(f"{MF} {vr(RES,16)}, {vr(IDN,4)}, {vr(XF,4)}, 0")
    a(f"{MF} {vr(RES,16)}, {vr(IDN+4,4)}, {vr(XF+4,4)}, {vr(RES,16)}")
    a("s_lshl_b32 s32, s31, 15")
    a("s_lshl_b32 s33, s26, 14")
    a("s_add_u32 s32, s32, s33")
    a(f"s_add_u32 s32, s32, {WS_O}")
    a("s_lshr_b32 s34, s24, 2")
    a("s_lshl_b32 s34, s34, 8")
    a(f"s_add_u32 s34, s34, {WS_CNT}")
    await_cnt(a, "s34", 32)
    stamp(a, 4)
    for cc in range(4):
        a(f"s_add_u32 s33, s32, {cc*4096}")
        for k in range(4):
            a(f"buffer_load_dwordx4 {vr(OF+16*cc+4*k,4)}, v2, s[16:19], s33 offen offset:{k*1024} sc1")
    def reads(ks, buf):
        for t in range(2):
            for q in range(2):
                a(f"ds_read_b64_tr_b16 {vr(WF[buf]+4*t+2*q,2)}, v{10+t} offset:{ks*2048 + q*1024}")
    reads(0, 0)
    for ks in range(16):
        buf = ks & 1
        if ks < 15:
            reads(ks + 1, buf ^ 1)
            w = "lgkmcnt(4)"
        else:
            w = "lgkmcnt(0)"
        if ks % 4 == 0: w = f"vmcnt({12 - ks}) " + w
        a(f"s_waitcnt {w}")
        for t in range(2):
            a(f"{MF} {vr(ACC[t],16)}, {vr(WF[buf]+4*t,4)}, {vr(OF+4*ks,4)}, {vr(ACC[t],16)}")
    stamp(a, 5)
    SCR = 147456
    a("s_xor_b32 s34, s22, 1")
    a("s_lshl_b32 s34, s34, 12")
    a(f"s_add_u32 s34, s34, {SCR}")
    a("v_add_u32 v8, s34, v2")
    a("s_lshl_b32 s34, s22, 12")
    a(f"s_add_u32 s34, s34, {SCR}")
    a("v_add_u32 v9, s34, v2")
    H = VH
    a("s_cmp_eq_u32 s26, 0")
    a(f"s_cbranch_scc1 L_{name}_k0")
    for g in range(4): a(f"ds_write_b128 v8, {vr(ACC[0]+4*g,4)} offset:{g*1024}")
    for r in range(16): a(f"v_add_f32 v{H+r}, v{ACC[1]+r}, v{RES+r}")
    a(f"s_branch L_{name}_k1")
    a.label(f"L_{name}_k0")
    a.nop(12)
    for g in range(4): a(f"ds_write_b128 v8, {vr(ACC[1]+4*g,4)} offset:{g*1024}")
    for r in range(16): a(f"v_add_f32 v{H+r}, v{ACC[0]+r}, v{RES+r}")
    a.label(f"L_{name}_k1")
    a("s_waitcnt lgkmcnt(0)")
    a("s_barrier")
    for g in range(4): a(f"ds_read_b128 {vr(ACC[1]+4*g,4)}, v9 offset:{g*1024}")
    a("s_waitcnt lgkmcnt(0)")
    for r in range(16): a(f"v_add_f32 v{H+r}, v{H+r}, v{ACC[1]+r}")
    a(f"v_add_f32 v16, v{H}, v{H+1}")
    a(f"v_mul_f32 v17, v{H}, v{H}")
    a(f"v_add_f32 v18, v{H+2}, v{H+3}")
    a(f"v_mul_f32 v19, v{H+2}, v{H+2}")
    a(f"v_fma_f32 v17, v{H+1}, v{H+1}, v17")
    a(f"v_fma_f32 v19, v{H+3}, v{H+3}, v19")
    for r in range(4, 16, 2):
        a(f"v_add_f32 v16, v16, v{H+r}")
        a(f"v_fma_f32 v17, v{H+r}, v{H+r}, v17")
        a(f"v_add_f32 v18, v18, v{H+r+1}")
        a(f"v_fma_f32 v19, v{H+r+1}, v{H+r+1}, v19")
    a("v_add_f32 v16, v16, v18")
    a("v_add_f32 v17, v17, v19")
    a("v_mov_b32 v18, v16"); a("v_mov_b32 v19, v17")
    a("v_permlane32_swap_b32 v16, v18"); a("v_permlane32_swap_b32 v17, v19")
    a("v_add_f32 v16, v16, v18"); a("v_add_f32 v17, v17, v19")
    a("v_min_u32 v16, 0xfffffffe, v16")
    a("v_min_u32 v17, 0xfffffffe, v17")
    a("s_lshl_b32 s34, s31, 12")
    a(f"s_add_u32 s34, s34, {WS_ST}")
    a("s_lshl_b32 s35, s23, 1")
    a("s_add_u32 s35, s35, s26")
    a("s_lshl_b32 s35, s35, 8")
    a("s_add_u32 s35, s35, s34")
    a("v_and_b32 v8, 31, v1")
    a("v_lshlrev_b32 v8, 3, v8")
    a("s_mov_b32 exec_hi, 0")
    a("buffer_store_dwordx2 v[16:17], v8, s[16:19], s35 offen sc0 sc1")
    a("s_mov_b64 exec, -1")
    if OPT.get("dbgH"):
        for i in range(8): a(f"v_cvt_pk_bf16_f32 v{24+i}, v{H+2*i}, v{H+2*i+1}")
        a("s_lshl_b32 s36, s24, 3"); a("s_add_u32 s36, s36, s23"); a("s_lshl_b32 s36, s36, 2")
        a("s_add_u32 s36, s36, s22"); a("s_lshl_b32 s36, s36, 11"); a(f"s_add_u32 s36, s36, {WS_H}")
        a(f"buffer_store_dwordx4 {vr(24,4)}, v2, s[16:19], s36 offen")
        a(f"buffer_store_dwordx4 {vr(28,4)}, v2, s[16:19], s36 offen offset:1024")
    a("v_lshrrev_b32 v9, 5, v1")
    a("v_lshl_add_u32 v8, v9, 11, v8")
    a(f"s_mov_b32 s37, {SPIN_MAX}")
    a.label(f"L_{name}_poll")
    for p in range(8):
        a(f"buffer_load_dwordx2 {vr(32+2*p,2)}, v8, s[16:19], s34 offen offset:{p*256} sc0 sc1")
    a("s_waitcnt vmcnt(0)")
    a("v_max_u32 v48, v32, v33")
    for p in range(1, 8):
        a(f"v_max3_u32 v48, v{32+2*p}, v{33+2*p}, v48")
    a("v_cmp_eq_u32 vcc, -1, v48")
    a("s_sub_u32 s37, s37, 1")
    a("s_cmp_eq_u32 s37, 0")
    a(f"s_cbranch_scc1 L_{name}_go")
    a("s_cmp_lg_u64 vcc, 0")
    a(f"s_cbranch_scc1 L_{name}_poll")
    a.label(f"L_{name}_go")
    stamp(a, 6)
    for st in (4, 2, 1):
        for p in range(st):
            a(f"v_add_f32 v{32+2*p}, v{32+2*p}, v{32+2*(p+st)}")
            a(f"v_add_f32 v{33+2*p}, v{33+2*p}, v{33+2*(p+st)}")
    a("v_mov_b32 v34, v32"); a("v_mov_b32 v35, v33")
    a("v_permlane32_swap_b32 v32, v34"); a("v_permlane32_swap_b32 v33, v35")
    a("v_add_f32 v32, v32, v34"); a("v_add_f32 v33, v33, v35")
    a(f"s_mov_b32 s30, {f2u(1.0/512):#x}")
    a("v_mul_f32 v32, s30, v32")
    a("v_mul_f32 v33, s30, v33")
    a("v_fma_f32 v33, -v32, v32, v33")
    a("v_max_f32 v33, 0, v33")
    a(f"v_add_f32 v34, {f2u(1e-5):#x}, v33")
    a("v_rsq_f32 v34, v34")
    a("s_nop 0")
    a("v_mul_f32 v35, v33, v34")
    a("v_mul_f32 v35, v35, v34")
    a(f"v_add_f32 v35, {f2u(1e-5):#x}, v35")
    a("v_rsq_f32 v35, v35")
    a("s_nop 0")
    a("v_mul_f32 v34, v34, v35")
    a("v_mul_f32 v36, v32, v34")
    a("v_sub_f32 v36, 0, v36")
    a("v_mov_b32 v35, v34")
    a("v_mov_b32 v37, v36")
    N = 160
    for r in range(0, 16, 2):
        a(f"v_pk_fma_f32 {vr(N+r,2)}, {vr(H+r,2)}, v[34:35], v[36:37]")
    for i in range(8): a(f"v_cvt_pk_bf16_f32 v{40+i}, v{N+2*i}, v{N+2*i+1}")
    T = ACC[1]
    a(f"{MF} {vr(T,16)}, {vr(40,4)}, {vr(IDS,4)}, 0")
    a(f"{MF} {vr(T,16)}, {vr(44,4)}, {vr(IDS+4,4)}, {vr(T,16)}")
    a("s_lshl_b32 s35, s23, 1")
    a("s_add_u32 s35, s35, s26")
    a("s_lshl_b32 s35, s35, 7")
    a("s_lshl_b32 s36, s31, 1")
    a("s_add_u32 s35, s35, s36")
    a("s_lshl_b32 s35, s35, 10")
    a(f"s_add_u32 s35, s35, {WS_HT}")
    for i in range(8): a(f"v_cvt_pk_bf16_f32 v{48+i}, v{T+2*i}, v{T+2*i+1}")
    a(f"buffer_store_dwordx4 {vr(48,4)}, v2, s[16:19], s35 offen sc1")
    a(f"buffer_store_dwordx4 {vr(52,4)}, v2, s[16:19], s35 offen offset:1024 sc1")
    a("s_lshl_b32 s34, s23, 8")
    a(f"s_add_u32 s34, s34, {WS_CNT + 4096}")
    arrive(a, "s34")
    stamp(a, 7)

RING = 9
def gemm_stream(a, nst, wstride, srd_w, s_wglob, s_aglob, ACC, w_is_A, s_cnt, ncnt, st0):
    SLOT = 16384; PD = 4; NB = 5; AF0 = 32; WF = [16, 24]
    vm = VM(a)
    def issue_w(s):
        slot = s % RING
        a(f"s_add_u32 s34, {s_wglob}, {s*64*wstride}")
        for n in range(4):
            a(f"s_add_u32 m0, s28, {slot*SLOT + n*1024}")
            a("s_nop 0")
            a(f"buffer_load_dwordx4 v{4+n}, {srd_w}, s34 offen lds")
        vm.op(("w", s), 4)
    def issue_a(s):
        a(f"s_add_u32 s35, {s_aglob}, {s*4096}")
        fb = AF0 + (s % NB) * 16
        for k in range(4):
            a(f"buffer_load_dwordx4 {vr(fb+4*k,4)}, v2, s[16:19], s35 offen offset:{k*1024} sc1")
        vm.op(("a", s), 4)
    for s in range(min(RING, nst)): issue_w(s)
    for b in ACC:
        for r in range(16): a(f"v_mov_b32 v{b+r}, 0")
    a("v_add_u32 v12, 0x10000, v10"); a("v_add_u32 v13, 0x10000, v11")
    a("v_add_u32 v14, 0x20000, v10"); a("v_add_u32 v15, 0x20000, v11")
    stamp(a, st0)
    await_cnt(a, s_cnt, ncnt)
    stamp(a, st0 + 1)
    for s in range(PD): issue_a(s)
    def reads(slot, k, buf):
        base = slot * SLOT + k * 2048
        for t in range(2):
            for q in range(2):
                off = base + q * 1024
                a(f"ds_read_b64_tr_b16 {vr(WF[buf]+4*t+2*q,2)}, v{10 + t + 2*(off >> 16)} offset:{off & 0xffff}")
    for s in range(nst):
        vm.wait(("w", s), ("a", s))
        a("s_barrier")
        slot = s % RING
        reads(slot, 0, 0)
        if s >= 1 and s + RING - 1 < nst: issue_w(s + RING - 1)
        if s + PD < nst: issue_a(s + PD)
        fb = AF0 + (s % NB) * 16
        for k in range(4):
            buf = k & 1
            if k < 3:
                reads(slot, k + 1, buf ^ 1)
                a("s_waitcnt lgkmcnt(4)")
            else:
                a("s_waitcnt lgkmcnt(0)")
            for t in range(2):
                if w_is_A:
                    a(f"{MF} {vr(ACC[t],16)}, {vr(WF[buf]+4*t,4)}, {vr(fb+4*k,4)}, {vr(ACC[t],16)}")
                else:
                    a(f"{MF} {vr(ACC[t],16)}, {vr(fb+4*k,4)}, {vr(WF[buf]+4*t,4)}, {vr(ACC[t],16)}")
    stamp(a, st0 + 2)

def pair_reduce(a, tag, ACC, s_keep, partner_xor):
    SCR = 147456
    a(f"s_xor_b32 s34, s22, {partner_xor}")
    a("s_lshl_b32 s34, s34, 12")
    a(f"s_add_u32 s34, s34, {SCR}")
    a("v_add_u32 v8, s34, v2")
    a("s_lshl_b32 s34, s22, 12")
    a(f"s_add_u32 s34, s34, {SCR}")
    a("v_add_u32 v9, s34, v2")
    a(f"s_cmp_eq_u32 {s_keep}, 0")
    a(f"s_cbranch_scc1 L_{tag}_k0")
    for g in range(4): a(f"ds_write_b128 v8, {vr(ACC[0]+4*g,4)} offset:{g*1024}")
    for r in range(16): a(f"v_mov_b32 v{ACC[0]+r}, v{ACC[1]+r}")
    a(f"s_branch L_{tag}_k1")
    a.label(f"L_{tag}_k0")
    a.nop(12)
    for g in range(4): a(f"ds_write_b128 v8, {vr(ACC[1]+4*g,4)} offset:{g*1024}")
    a.label(f"L_{tag}_k1")
    a("s_waitcnt lgkmcnt(0)")
    a("s_barrier")
    for g in range(4): a(f"ds_read_b128 {vr(ACC[1]+4*g,4)}, v9 offset:{g*1024}")
    a("s_waitcnt lgkmcnt(0)")
    for r in range(16): a(f"v_add_f32 v{ACC[0]+r}, v{ACC[0]+r}, v{ACC[1]+r}")

def phase_D(a):
    name = "kd"
    a("s_cmp_ge_u32 s2, 224")
    a(f"s_cbranch_scc1 L_{name}_skip")
    tile_map_D(a, 23, 24)
    wtile_dma_voffs(a, 4, 1, 3584, 8, 9, 4)
    srd(a, 8, S_W1, 2048 * 1792 * 2)
    a("s_lshl_b32 s27, s26, 10")
    a("s_lshl_b32 s28, s25, 5")
    a("s_add_u32 s27, s27, s28")
    a("s_mul_i32 s27, s27, 3584")
    a("s_lshl_b32 s28, s24, 7")
    a("s_add_u32 s27, s27, s28")
    a("s_lshl_b32 s28, s26, 13")
    a("s_lshl_b32 s29, s25, 12")
    a("s_add_u32 s28, s28, s29")
    a("s_lshl_b32 s31, s23, 1")
    a("s_add_u32 s31, s31, s25")
    a("s_lshl_b32 s32, s31, 17")
    a("s_lshl_b32 s33, s26, 16")
    a("s_add_u32 s32, s32, s33")
    a(f"s_add_u32 s32, s32, {WS_HT}")
    wtile_read_addrs(a, 10, 11, 1, 8, 9)
    a("s_lshl_b32 s34, s26, 13")
    a("v_add_u32 v10, s34, v10")
    a("v_add_u32 v11, s34, v11")
    a("s_lshl_b32 s36, s23, 8")
    a(f"s_add_u32 s36, s36, {WS_CNT + 4096}")
    ACC = [128, 144]
    gemm_stream(a, 16, 3584, "s[8:11]", "s27", "s32", ACC, True, "s36", 32, 8)
    pair_reduce(a, name, ACC, "s26", 1)
    U = ACC[0]
    for g in range(4):
        for i in range(2):
            r = VB1 + 2*g + i
            a(f"v_lshlrev_b32 v{184+4*g+2*i}, 16, v{r}")
            a(f"v_and_b32 v{185+4*g+2*i}, 0xffff0000, v{r}")
    for r in range(16): a(f"v_add_f32 v{U+r}, v{U+r}, v{184+r}")
    kk = -2.0 * 0.7978845608028654 * LOG2E
    a(f"s_mov_b32 s36, {f2u(kk*0.044715):#x}")
    a(f"s_mov_b32 s37, {f2u(kk):#x}")
    T = 184
    a("v_mov_b32 v16, s37")
    for r in range(16): a(f"v_mul_f32 v{T+r}, v{U+r}, v{U+r}")
    for r in range(16): a(f"v_fma_f32 v{T+r}, v{T+r}, s36, v16")
    for r in range(16): a(f"v_mul_f32 v{T+r}, v{T+r}, v{U+r}")
    for r in range(16): a(f"v_exp_f32 v{T+r}, v{T+r}")
    for r in range(16): a(f"v_add_f32 v{T+r}, 1.0, v{T+r}")
    for r in range(16): a(f"v_rcp_f32 v{T+r}, v{T+r}")
    for r in range(16): a(f"v_mul_f32 v{U+r}, v{U+r}, v{T+r}")
    for i in range(8): a(f"v_cvt_pk_bf16_f32 v{48+i}, v{U+2*i}, v{U+2*i+1}")
    a("s_mul_i32 s35, s31, 112")
    a("s_lshl_b32 s36, s24, 2")
    a("s_add_u32 s35, s35, s36")
    a("s_lshl_b32 s36, s26, 1")
    a("s_add_u32 s35, s35, s36")
    a("s_lshl_b32 s35, s35, 10")
    a(f"s_add_u32 s35, s35, {WS_U}")
    a(f"buffer_store_dwordx4 {vr(48,4)}, v2, s[16:19], s35 offen sc1")
    a(f"buffer_store_dwordx4 {vr(52,4)}, v2, s[16:19], s35 offen offset:1024 sc1")
    a("s_lshl_b32 s34, s23, 8")
    a(f"s_add_u32 s34, s34, {WS_CNT + 8192}")
    arrive(a, "s34")
    stamp(a, 11)
    a.label(f"L_{name}_skip")

def phase_E(a):
    name = "ke"
    tile_map_CE(a, 23, 24)
    a("s_and_b32 s25, s22, 1")
    a("s_lshr_b32 s26, s22, 1")
    wtile_dma_voffs(a, 4, 1, 4096, 8, 9, 4)
    srd(a, 8, S_W2, 1792 * 2048 * 2)
    srd(a, 12, S_OUT, 2048 * 512 * 2)
    a("s_mul_i32 s27, s26, 896")
    a("s_lshl_b32 s28, s25, 5")
    a("s_add_u32 s27, s27, s28")
    a("s_lshl_b32 s27, s27, 12")
    a("s_lshl_b32 s28, s24, 7")
    a("s_add_u32 s27, s27, s28")
    a("s_lshl_b32 s28, s26, 13")
    a("s_lshl_b32 s29, s25, 12")
    a("s_add_u32 s28, s28, s29")
    a("s_lshl_b32 s31, s23, 1")
    a("s_add_u32 s31, s31, s25")
    a("s_mul_i32 s32, s31, 112")
    a("s_mul_i32 s33, s26, 56")
    a("s_add_u32 s32, s32, s33")
    a("s_lshl_b32 s32, s32, 10")
    a(f"s_add_u32 s32, s32, {WS_U}")
    wtile_read_addrs(a, 10, 11, 1, 8, 9)
    a("s_lshl_b32 s34, s26, 13")
    a("v_add_u32 v10, s34, v10")
    a("v_add_u32 v11, s34, v11")
    a("s_lshl_b32 s36, s23, 8")
    a(f"s_add_u32 s36, s36, {WS_CNT + 8192}")
    ACC = [128, 144]
    gemm_stream(a, 14, 4096, "s[8:11]", "s27", "s32", ACC, False, "s36", 28, 12)
    pair_reduce(a, name, ACC, "s26", 2)
    Y = ACC[0]
    a(f"v_lshlrev_b32 v184, 16, v{VB1+8}")
    for r in range(16): a(f"v_add_f32 v{Y+r}, v{Y+r}, v{VH+r}")
    for r in range(16): a(f"v_add_f32 v{Y+r}, v{Y+r}, v184")
    for i in range(8): a(f"v_cvt_pk_bf16_f32 v{48+i}, v{Y+2*i}, v{Y+2*i+1}")
    a("v_and_b32 v8, 31, v1")
    a("v_lshlrev_b32 v8, 10, v8")
    a("v_lshrrev_b32 v9, 5, v1")
    a("v_lshl_add_u32 v8, v9, 4, v8")
    a("v_permlane32_swap_b32 v48, v50"); a("v_permlane32_swap_b32 v49, v51")
    a("v_permlane32_swap_b32 v52, v54"); a("v_permlane32_swap_b32 v53, v55")
    a("s_lshl_b32 s35, s24, 1")
    a("s_add_u32 s35, s35, s26")
    a("s_lshl_b32 s35, s35, 15")
    a("s_lshl_b32 s36, s31, 6")
    a("s_add_u32 s35, s35, s36")
    a(f"buffer_store_dwordx4 {vr(48,4)}, v8, s[12:15], s35 offen")
    a(f"buffer_store_dwordx4 {vr(52,4)}, v8, s[12:15], s35 offen offset:32")

def gen_K2():
    a = Asm(); name = "k2_kernel"
    cnt = [0]
    def uniq(p):
        cnt[0] += 1
        return f"L_{p}{cnt[0]}"
    a.uniq = uniq
    kernel_head(a, name, 256)
    a("s_load_dwordx16 s[40:55], s[0:1], 0")
    a(f"s_load_dwordx2 s[56:57], s[0:1], {KA_OUT}")
    a(f"s_load_dwordx2 s[20:21], s[0:1], {KA_WS}")
    a("v_lshrrev_b32 v2, 6, v0")
    a("v_and_b32 v1, 63, v0")
    a("v_readfirstlane_b32 s22, v2")
    a("v_lshlrev_b32 v2, 4, v1")
    a("s_waitcnt lgkmcnt(0)")
    srd(a, 16, 20, WS_SIZE)
    phase_B(a)
    phase_C(a)
    phase_D(a)
    phase_E(a)
    kernel_tail(a, name, 1)
    a.label("L_k2_code_end")
    return name, a.lines, 163840

def build(path):
    ks = [gen_K1(), gen_K2()]
    ref = open("cdna_kernels/" + NAME + ".s.ref").read().split("\n")
    hdr = [l for l in ref if l.startswith(";") and "@launch" not in l and not l.startswith("; Override") and not l.startswith("; grid=")]
    out = list(hdr)
    for name, lines, lds in ks:
        out.append(f"; @launch kernel={name} grid=(256,1,1) block=(256,1,1) lds={lds}")
    out.append('.amdgcn_target "amdgcn-amd-amdhsa--gfx950"')
    out.append(".text")
    tot = 0; body = []
    for name, lines, lds in ks:
        fixed, n = fix_hazards(lines)
        tot += n
        for p in check_backedges(fixed): print("BACKEDGE HAZARD", name, p)
        if name == "k2_kernel":
            k2size = sum(ins_sizes([l for l in fixed]))
        for l in fixed:
            body.append(l if (l.endswith(":") or l.startswith(".")) else "    " + l)
    k2size = (k2size + 63) // 64 * 64
    out.append(f".set K2_CODE_BYTES, {k2size - 128}")
    out += body
    out.append('.section .rodata,"a"')
    for name, lines, lds in ks:
        out.append(".p2align 6")
        out.append(kd(name))
    open(path, "w").write("\n".join(out) + "\n")
    print("wrote", path, "nops inserted:", tot, "k2 code bytes", k2size)

if __name__ == "__main__":
    args = sys.argv[2:]
    if "stamp" in args: STAMP = True
    for o in args: OPT[o] = 1
    build(sys.argv[1] if len(sys.argv) > 1 else "cdna_kernels/" + NAME + ".s")
```

```python
import sys
sys.path.insert(0, "dev")
from asmlib import *

NAME = "sequential_preLN__mha_block__mixer_token_mlp__prompt"
WS_Q   = 0
WS_KV  = 2 << 20
WS_NRM = 6 << 20
WS_CNT = (6 << 20) + (64 << 10)
WS_O   = 7 << 20
WS_ST  = 9 << 20
WS_H   = 10 << 20
WS_HT  = 12 << 20
WS_U   = 14 << 20
WS_SIZE = 16 << 20
KA_X, KA_WQKV, KA_WO, KA_W1, KA_B1, KA_W2, KA_B2, KA_OUT, KA_DBG, KA_WS = 0, 8, 16, 32, 40, 48, 56, 64, 72, 80
ONES = 0x3F803F80
LOG2E = 1.4426950408889634
MF = "v_mfma_f32_32x32x16_bf16"
OPT = {}
STAMP = False
STAMP_OFF = 32 << 20
SPIN_MAX = 0x40000

def f2u(x):
    import struct
    return struct.unpack("<I", struct.pack("<f", x))[0]

def srd(a, s, ptr, size):
    a(f"s_mov_b32 s{s}, s{ptr}")
    a(f"s_and_b32 s{s+1}, s{ptr+1}, 0xffff")
    a(f"s_mov_b32 s{s+2}, {size}")
    a(f"s_mov_b32 s{s+3}, 0x00020000")

class VM:
    def __init__(self, a): self.a = a; self.ops = []
    def op(self, tag, n=1): self.ops += [tag] * n
    def wait(self, *tags):
        last = -1
        for i, t in enumerate(self.ops):
            if t in tags: last = i
        assert last >= 0, tags
        n = len(self.ops) - 1 - last
        self.a(f"s_waitcnt vmcnt({min(n, 63)})")
        self.ops = self.ops[last + 1:]
    def drain(self):
        self.a("s_waitcnt vmcnt(0)"); self.ops = []

VST = 239
def stamp(a, k):
    if STAMP:
        a("s_memrealtime s[90:91]")
        a("s_waitcnt lgkmcnt(0)")
        a(f"v_writelane_b32 v{VST}, s90, {k}")

def cstamp(a, k=None):
    if STAMP:
        a("s_memtime s[90:91]")
        a("s_waitcnt lgkmcnt(0)")
        if k is None:
            a("s_add_u32 s91, s39, 20"); a("s_mov_b32 s89, m0"); a("s_mov_b32 m0, s91")
            a(f"v_writelane_b32 v{VST}, s90, m0"); a("s_mov_b32 m0, s89")
        else:
            a(f"v_writelane_b32 v{VST}, s90, {k}")

def kernel_head(a, name, nwg):
    a.lines.append(f".globl {name}")
    a.lines.append(".p2align 8")
    a.lines.append(f".type {name},@function")
    a.label(name)
    a(f"s_cmp_ge_u32 s2, {nwg}")
    a(f"s_cbranch_scc1 L_{name}_end")
    if STAMP:
        a(f"v_mov_b32 v{VST}, 0")
        a("s_memtime s[92:93]")
        stamp(a, 0)

def kernel_tail(a, name, kidx):
    if STAMP:
        a.label(f"L_{name}_stamp")
        a("s_waitcnt vmcnt(0) lgkmcnt(0)")
        a("s_memtime s[94:95]")
        stamp(a, 62)
        a("s_sub_u32 s94, s94, s92")
        a(f"v_writelane_b32 v{VST}, s94, 63")
        a("s_cmp_lg_u32 s22, 0")
        a(f"s_cbranch_scc1 L_{name}_end")
        a("s_mov_b64 exec, -1")
        a("s_lshl_b32 s30, s2, 8")
        a(f"s_add_u32 s30, s30, {STAMP_OFF + kidx*65536}")
        a("v_and_b32 v4, 63, v0")
        a("v_lshlrev_b32 v4, 2, v4")
        a("v_add_u32 v4, s30, v4")
        a(f"global_store_dword v4, v{VST}, s[20:21]")
        a("s_waitcnt vmcnt(0)")
    a.label(f"L_{name}_end")
    a("s_endpgm")

def kd(name, nv=256, acc=256, ns=100):
    return f""".amdhsa_kernel {name}
  .amdhsa_next_free_vgpr {nv}
  .amdhsa_next_free_sgpr {ns}
  .amdhsa_accum_offset {acc}
  .amdhsa_group_segment_fixed_size 0
  .amdhsa_kernarg_size 88
  .amdhsa_user_sgpr_count 2
  .amdhsa_user_sgpr_kernarg_segment_ptr 1
  .amdhsa_system_sgpr_workgroup_id_x 1
.end_amdhsa_kernel
"""

def emit_identity(a, base, vl, t0, t1, natural):
    a(f"v_mov_b32 v{t1+1}, 0x3f80")
    a(f"v_mov_b32 v{t1+2}, 0x3f800000")
    a(f"v_and_b32 v{t0}, 31, v{vl}")
    a(f"v_lshrrev_b32 v{t1}, 5, v{vl}")
    a(f"v_lshlrev_b32 v{t1}, {3 if natural else 2}, v{t1}")
    a(f"v_sub_u32 v{t0}, v{t0}, v{t1}")
    for q in range(2):
        for i in range(4):
            c = 16 * q + ((2 * i) if natural else (0, 2, 8, 10)[i])
            r = base + 4 * q + i
            a(f"v_cmp_eq_u32 vcc, {c}, v{t0}")
            a(f"v_cmp_eq_u32 s[58:59], {c+1}, v{t0}")
            a(f"v_cndmask_b32 v{r}, 0, v{t1+1}, vcc")
            a(f"v_cndmask_b32 v{r}, v{r}, v{t1+2}, s[58:59]")

def swap_add(a, v, t):
    a(f"v_mov_b32 v{t}, v{v}")
    a(f"v_permlane32_swap_b32 v{v}, v{t}")
    a(f"v_add_f32 v{v}, v{v}, v{t}")

def tile_map_CE(a, sct, srb):
    a(f"s_and_b32 s{sct}, s2, 1")
    a(f"s_lshl_b32 s{sct}, s{sct}, 2")
    a("s_lshr_b32 s68, s2, 3")
    a("s_and_b32 s69, s68, 3")
    a(f"s_add_u32 s{sct}, s{sct}, s69")
    a(f"s_bfe_u32 s{srb}, s2, 0x20001")
    a(f"s_lshl_b32 s{srb}, s{srb}, 3")
    a("s_lshr_b32 s69, s68, 2")
    a(f"s_add_u32 s{srb}, s{srb}, s69")

def tile_map_D(a, sdb, sfb):
    a(f"s_and_b32 s{sdb}, s2, 1")
    a(f"s_lshl_b32 s{sdb}, s{sdb}, 2")
    a("s_lshr_b32 s68, s2, 3")
    a("s_and_b32 s69, s68, 3")
    a(f"s_add_u32 s{sdb}, s{sdb}, s69")
    a(f"s_bfe_u32 s{sfb}, s2, 0x20001")
    a(f"s_mul_i32 s{sfb}, s{sfb}, 7")
    a("s_lshr_b32 s69, s68, 2")
    a(f"s_add_u32 s{sfb}, s{sfb}, s69")

def wtile_dma_voffs(a, base, vl, stride, t0, t1, n_regs=4):
    a(f"v_lshrrev_b32 v{t0}, 3, v{vl}")
    a(f"s_mov_b32 s69, {stride}")
    a(f"v_mul_lo_u32 v{t0}, v{t0}, s69")
    a(f"v_bfe_u32 v{t1}, v{vl}, 4, 1")
    a(f"v_lshlrev_b32 v{t1}, 2, v{t1}")
    a(f"v_and_b32 v{base}, 7, v{vl}")
    a(f"v_xor_b32 v{t1}, v{t1}, v{base}")
    a(f"v_lshl_add_u32 v{base}, v{t1}, 4, v{t0}")
    for n in range(1, n_regs):
        a(f"v_add_u32 v{base+n}, {n*8*stride - n*1024}, v{base}")

def wtile_read_addrs(a, r0, r1, vl, t0, t1):
    a(f"v_lshrrev_b32 v{t0}, 5, v{vl}")
    a(f"v_lshlrev_b32 v{t0}, 2, v{t0}")
    a(f"v_bfe_u32 v{t1}, v{vl}, 2, 2")
    a(f"v_add_u32 v{t0}, v{t0}, v{t1}")
    a(f"v_lshlrev_b32 v{t0}, 7, v{t0}")
    a(f"v_bfe_u32 v{t1}, v{vl}, 4, 1")
    a(f"v_lshlrev_b32 v{t1}, 1, v{t1}")
    a(f"v_bfe_u32 v{r1}, v{vl}, 1, 1")
    a(f"v_add_u32 v{t1}, v{t1}, v{r1}")
    a(f"v_bfe_u32 v{r1}, v{vl}, 3, 1")
    a(f"v_lshlrev_b32 v{r1}, 2, v{r1}")
    a(f"v_xor_b32 v{t1}, v{t1}, v{r1}")
    a(f"v_lshl_add_u32 v{t0}, v{t1}, 4, v{t0}")
    a(f"v_and_b32 v{t1}, 1, v{vl}")
    a(f"v_lshl_add_u32 v{r0}, v{t1}, 3, v{t0}")
    a(f"v_xor_b32 v{r1}, 64, v{r0}")

def gen_K1():
    global VST
    VST = 47
    a = Asm(); name = "k1_kernel"
    kernel_head(a, name, 256)
    a(f"s_load_dwordx4 s[4:7], s[0:1], {KA_X}")
    a(f"s_load_dwordx2 s[20:21], s[0:1], {KA_WS}")
    a("v_lshrrev_b32 v2, 6, v0")
    a("v_and_b32 v1, 63, v0")
    a("v_readfirstlane_b32 s22, v2")
    a("s_getpc_b64 s[32:33]")
    a.label("L_k1_pc")
    a("v_lshlrev_b32 v3, 6, v0")
    a("global_load_dword v8, v3, s[32:33]")
    a("s_add_u32 s34, s32, k2_kernel-L_k1_pc")
    a("s_addc_u32 s35, s33, 0")
    a("s_lshr_b32 s36, s2, 3")
    a("s_lshl_b32 s36, s36, 11")
    a("v_and_b32 v3, 31, v0")
    a("v_lshlrev_b32 v3, 6, v3")
    a("v_add_u32 v3, s36, v3")
    a("v_min_u32 v3, K2_CODE_BYTES, v3")
    a("global_load_dword v9, v3, s[34:35]")
    a("s_and_b32 s23, s2, 3")
    a("s_lshl_b32 s23, s23, 2")
    a("s_lshr_b32 s29, s2, 3")
    a("s_and_b32 s30, s29, 3")
    a("s_add_u32 s23, s23, s30")
    a("s_bfe_u32 s24, s2, 0x10002")
    a("s_lshl_b32 s24, s24, 3")
    a("s_lshr_b32 s30, s29, 2")
    a("s_add_u32 s24, s24, s30")
    a("s_lshl_b32 s25, s23, 17")
    a("s_lshl_b32 s30, s22, 15")
    a("s_add_u32 s25, s25, s30")
    a("s_mul_i32 s26, s22, 49152")
    a("s_lshl_b32 s30, s24, 6")
    a("s_add_u32 s26, s26, s30")
    SLOT = 28672; L0 = 1024
    a("s_lshl_b32 s27, s22, 12")
    a(f"s_add_u32 s27, s27, {L0}")
    a("s_lshl_b32 s28, s22, 10")
    a(f"s_add_u32 s28, s28, {L0 + 16384}")
    a("v_lshrrev_b32 v8, 3, v1") if False else None
    a("v_lshrrev_b32 v10, 3, v1")
    a("v_lshlrev_b32 v10, 10, v10")
    a("v_lshrrev_b32 v11, 4, v1")
    a("v_and_b32 v12, 7, v1")
    a("v_xor_b32 v11, v11, v12")
    for n in range(4):
        a(f"v_xor_b32 v12, {4*(n&1)}, v11")
        a(f"v_lshl_add_u32 v12, v12, 4, v10")
        a(f"v_add_u32 v{2+n}, {n*8192 - n*1024}, v12")
    a("v_lshrrev_b32 v10, 2, v1")
    a("s_movk_i32 s30, 3072")
    a("v_mul_lo_u32 v10, v10, s30")
    a("v_and_b32 v11, 3, v1")
    a("v_lshl_add_u32 v6, v11, 4, v10")
    a("s_waitcnt lgkmcnt(0)")
    srd(a, 8, 4, 2048 * 512 * 2)
    srd(a, 12, 6, 512 * 1536 * 2)
    srd(a, 16, 20, WS_SIZE)
    vm = VM(a); vm.op("code", 2)
    def dma_stage(s):
        slot = s % 5
        a(f"s_add_u32 m0, s27, {slot*SLOT - s*128}")
        a(f"s_add_u32 s29, s26, {s*196608}")
        for n in range(4):
            a(f"buffer_load_dwordx4 v{2+n}, s[8:11], s25 offen offset:{s*128 + n*1024} lds")
        for t in range(3):
            a(f"s_add_u32 m0, s28, {slot*SLOT + t*4096 - t*1024}")
            a("s_nop 0")
            a(f"buffer_load_dwordx4 v6, s[12:15], s29 offen offset:{t*1024} lds")
        vm.op(("st", s), 7)
    FILLF = 'sc1' if OPT.get('fillsc1') else ('' if OPT.get('fillplain') else 'nt')
    def fill_setup():
        for r in range(20, 24): a(f"v_mov_b32 v{r}, -1")
        a("v_lshlrev_b32 v24, 4, v1")
        a("v_lshlrev_b32 v25, 2, v1")
        a("s_lshl_b32 s36, s2, 13")
        a("s_lshl_b32 s33, s22, 11")
        a("s_add_u32 s36, s36, s33")
        a("s_lshl_b32 s37, s2, 10")
        a("s_lshl_b32 s33, s22, 8")
        a("s_add_u32 s37, s37, s33")
        a(f"s_add_u32 s37, s37, {WS_ST}")
    def fill(n):
        if n < 6:
            a(f"s_add_u32 s33, s36, {(WS_O, WS_HT, WS_U)[n >> 1]}")
            a(f"buffer_store_dwordx4 v[20:23], v24, s[16:19], s33 offen offset:{(n & 1)*1024} {FILLF}")
        else:
            a(f"buffer_store_dword v20, v25, s[16:19], s37 offen {FILLF}")
        vm.op("fill")
    for s in range(3): dma_stage(s)
    stamp(a, 1)
    a("v_and_b32 v10, 31, v1")
    a("v_lshrrev_b32 v11, 5, v1")
    a("v_bfe_u32 v16, v1, 1, 3")
    a("v_lshlrev_b32 v10, 7, v10")
    a("v_add_u32 v10, s27, v10")
    for ks in range(4):
        a(f"v_add_u32 v17, {2*ks}, v11")
        a("v_xor_b32 v17, v17, v16")
        a(f"v_lshl_add_u32 v{12+ks}, v17, 4, v10")
    a("v_bfe_u32 v10, v1, 2, 2")
    a("v_lshl_add_u32 v10, v11, 3, v10")
    a("v_lshlrev_b32 v10, 6, v10")
    a("v_bfe_u32 v16, v1, 4, 1")
    a("v_lshl_add_u32 v10, v16, 5, v10")
    a("v_and_b32 v16, 3, v1")
    a("v_lshl_add_u32 v10, v16, 3, v10")
    a(f"v_add_u32 v7, {L0 + 16384}, v10")
    a("s_lshl_b32 s30, s22, 10")
    a("v_add_u32 v11, s30, v7")
    FB = [128, 192]; CF = 48
    SUM = [60, 61]; SQ = [62, 63]; CS = [64, 65, 66, 67, 68, 69]
    ACC = [80, 96, 112]
    for r in SUM + SQ + CS: a(f"v_mov_b32 v{r}, 0")
    for b in ACC:
        for r in range(16): a(f"v_mov_b32 v{b+r}, 0")
    a(f"s_mov_b32 s31, {ONES:#x}")
    def rdx(ks, buf): a(f"ds_read_b128 {vr(FB[buf]+16*ks,4)}, v{12+ks}")
    def rdw(ks, buf, t):
        for q in range(2):
            a(f"ds_read_b64_tr_b16 {vr(FB[buf]+16*ks+4+4*t+2*q,2)}, v7 offset:{t*4096 + ks*1024 + q*256}")
    def creads():
        for t in range(3):
            for q in range(2):
                a(f"ds_read_b64_tr_b16 {vr(CF+4*t+2*q,2)}, v11 offset:{t*4096 + q*256}")
    def advance(s):
        d = ((s + 1) % 5 - s % 5) * SLOT
        for r in (12, 13, 14, 15, 7, 11):
            if d >= 0: a(f"v_add_u32 v{r}, {d}, v{r}")
            else: a(f"v_subrev_u32 v{r}, {-d}, v{r}")
    dma_stage(3)
    vm.wait(("st", 0))
    a("s_barrier")
    stamp(a, 2)
    for ks in range(4):
        if ks >= 2: a("s_waitcnt lgkmcnt(8)")
        rdx(ks, 0)
        for t in range(3): rdw(ks, 0, t)
    a("s_waitcnt lgkmcnt(9)")
    creads()
    dma_stage(4)
    for s_ in range(8):
        buf = s_ & 1; nb = buf ^ 1
        more = s_ < 7
        cstamp(a, 8 + 2*s_)
        a("s_waitcnt lgkmcnt(0)")
        if more:
            vm.wait(("st", s_ + 1))
            if not OPT.get("k1nobar"): a("s_barrier")
            cstamp(a, 9 + 2*s_)
            advance(s_)
        for ks in range(4):
            x = FB[buf] + 16*ks
            mf = lambda t: a(f"{MF} {vr(ACC[t],16)}, {vr(x+4+4*t,4)}, {vr(x,4)}, {vr(ACC[t],16)}")
            mf(0)
            if more and not OPT.get("k1nord"):
                if ks >= 2: a("s_waitcnt lgkmcnt(8)")
                rdx(ks, nb); rdw(ks, nb, 0)
            mf(1)
            if more and not OPT.get("k1nord"): rdw(ks, nb, 1); rdw(ks, nb, 2)
            mf(2)
            if ks == 0:
                if s_ + 5 <= 7 and s_ >= 0: dma_stage(s_ + 5)
                if s_ == 2: fill_setup()
                for t in range(3 if not OPT.get("k1nocs") else 0):
                    for i in range(4):
                        a(f"v_dot2c_f32_bf16 v{CS[2*t+(i&1)]}, s31, v{CF+4*t+i}")
            for i in range(4 if not OPT.get("k1nodot") else 0):
                a(f"v_dot2c_f32_bf16 v{SUM[i&1]}, s31, v{x+i}")
                a(f"v_dot2c_f32_bf16 v{SQ[i&1]}, v{x+i}, v{x+i}")
            if s_ in (3, 4) and 4*(s_-3)+ks < 7: fill(4*(s_-3)+ks)
            if ks == 3 and more and not OPT.get("k1nocs"):
                a("s_waitcnt lgkmcnt(9)")
                creads()
    stamp(a, 3)
    SCR = L0 + 5 * SLOT
    for t in range(3): a(f"v_add_f32 v{64+t*2}, v{64+t*2}, v{65+t*2}")
    for t in range(3): swap_add(a, 64 + 2*t, 72 + t)
    a("v_and_b32 v8, 31, v1")
    a("v_lshlrev_b32 v8, 2, v8")
    a("s_mul_i32 s30, s22, 384")
    a(f"s_add_u32 s30, s30, {SCR}")
    a("v_add_u32 v9, s30, v8")
    for t in range(3): a(f"ds_write_b32 v9, v{64+2*t} offset:{t*128}")
    a(f"v_add_f32 v60, v60, v61")
    a(f"v_add_f32 v62, v62, v63")
    swap_add(a, 60, 70); swap_add(a, 62, 71)
    a("s_waitcnt lgkmcnt(0)")
    a("s_barrier")
    a("v_lshlrev_b32 v10, 2, v1")
    a(f"v_add_u32 v10, {SCR}, v10")
    for w in range(4): a(f"ds_read_b32 v{64+w}, v10 offset:{w*384}")
    a(f"v_add_u32 v9, {SCR + 256}, v8")
    for w in range(4): a(f"ds_read_b32 v{68+w}, v9 offset:{w*384}")
    a(f"s_mov_b32 s30, {f2u(1.0/512):#x}")
    a("v_mul_f32 v60, s30, v60")
    a("v_mul_f32 v62, s30, v62")
    a("v_fma_f32 v62, -v60, v60, v62")
    a("v_max_f32 v62, 0, v62")
    a(f"v_add_f32 v62, {f2u(1e-5):#x}, v62")
    a("v_rsq_f32 v62, v62")
    a("v_sub_f32 v60, 0, v60")
    a("v_mov_b32 v61, v60")
    a("v_mov_b32 v63, v62")
    a(f"v_mul_f32 v74, {f2u(0.25*LOG2E):#x}, v62")
    a("v_mov_b32 v75, v74")
    a("s_waitcnt lgkmcnt(0)")
    a("v_add_f32 v64, v64, v65"); a("v_add_f32 v66, v66, v67"); a("v_add_f32 v68, v68, v69"); a("v_add_f32 v70, v70, v71")
    a("v_add_f32 v64, v64, v66"); a("v_add_f32 v68, v68, v70")
    a("s_lshl_b32 s30, s22, 9")
    a(f"s_add_u32 s30, s30, {SCR + 2048}")
    a("v_lshlrev_b32 v10, 2, v1")
    a("v_add_u32 v10, s30, v10")
    a("ds_write_b32 v10, v64")
    a("v_add_u32 v9, s30, v8")
    a("ds_write_b32 v9, v68 offset:256")
    a("v_lshrrev_b32 v9, 5, v1")
    a("v_lshlrev_b32 v9, 4, v9")
    a("v_add_u32 v9, s30, v9")
    a("s_waitcnt lgkmcnt(0)")
    CSR = 128
    for t in (2, 0, 1):
        for g in range(4):
            a(f"ds_read_b128 {vr(CSR+16*t+4*g,4)}, v9 offset:{t*128 + g*32}")
    IDS = 176
    emit_identity(a, IDS, 1, 76, 77, False)
    PK = 184
    QF = 'sc1' if OPT.get('qsc1') else ('nt' if OPT.get('qnt') else '')
    for n, t in enumerate((2, 0, 1)):
        a(f"s_waitcnt lgkmcnt({8 - 4*n})")
        for r in range(0, 16, 2):
            a(f"v_pk_fma_f32 {vr(ACC[t]+r,2)}, {vr(CSR+16*t+r,2)}, v[60:61], {vr(ACC[t]+r,2)}")
        sc = "v[74:75]" if t == 0 else "v[62:63]"
        for r in range(0, 16, 2):
            a(f"v_pk_mul_f32 {vr(ACC[t]+r,2)}, {vr(ACC[t]+r,2)}, {sc}")
        for i in range(8):
            a(f"v_cvt_pk_bf16_f32 v{PK+8*t+i}, v{ACC[t]+2*i}, v{ACC[t]+2*i+1}")
        if t == 2:
            a(f"{MF} {vr(208,16)}, {vr(PK+16,4)}, {vr(IDS,4)}, 0")
            a(f"{MF} {vr(208,16)}, {vr(PK+20,4)}, {vr(IDS+4,4)}, {vr(208,16)}")
        else:
            if t == 0:
                a("s_lshl_b32 s29, s23, 2")
                a("s_add_u32 s29, s29, s22")
                a("s_lshl_b32 s30, s24, 7")
                a("s_add_u32 s30, s30, s29")
                a("v_lshlrev_b32 v8, 4, v1")
                a("s_lshl_b32 s32, s30, 10")
                a(f"s_add_u32 s32, s32, {WS_Q}")
                a("s_add_u32 s33, s32, 65536")
                a(f"buffer_store_dwordx4 {vr(PK,4)}, v8, s[16:19], s32 offen {QF}")
                a(f"buffer_store_dwordx4 {vr(PK+4,4)}, v8, s[16:19], s33 offen {QF}")
            else:
                a("s_lshl_b32 s32, s30, 11")
                a(f"s_add_u32 s32, s32, {WS_KV}")
                a("s_add_u32 s33, s32, 131072")
                a(f"buffer_store_dwordx4 {vr(PK+8,4)}, v8, s[16:19], s32 offen {QF}")
                a(f"buffer_store_dwordx4 {vr(PK+12,4)}, v8, s[16:19], s33 offen {QF}")
    for i in range(8):
        a(f"v_cvt_pk_bf16_f32 v{PK+16+i}, v{208+2*i}, v{208+2*i+1}")
    a("v_bfe_u32 v9, v1, 4, 1")
    a("v_lshlrev_b32 v9, 17, v9")
    a("v_lshrrev_b32 v10, 5, v1")
    a("v_lshl_add_u32 v9, v10, 8, v9")
    a("v_and_b32 v10, 15, v1")
    a("v_lshl_add_u32 v9, v10, 4, v9")
    a(f"buffer_store_dwordx4 {vr(PK+16,4)}, v9, s[16:19], s32 offen offset:1024 {QF}")
    a(f"buffer_store_dwordx4 {vr(PK+20,4)}, v9, s[16:19], s32 offen offset:1536 {QF}")
    stamp(a, 4)
    for t in range(2):
        for hd in range(2):
            r = 64 + 2*t + hd; b = ACC[t] + 8*hd
            a(f"v_mul_f32 v{r}, v{b}, v{b}")
    for i in range(1, 8):
        for t in range(2):
            for hd in range(2):
                r = 64 + 2*t + hd; b = ACC[t] + 8*hd
                a(f"v_fma_f32 v{r}, v{b+i}, v{b+i}, v{r}")
    for k in range(4): a(f"v_mov_b32 v{70+k}, v{64+k}")
    for k in range(4): a(f"v_permlane32_swap_b32 v{64+k}, v{70+k}")
    for k in range(4): a(f"v_add_f32 v{64+k}, v{64+k}, v{70+k}")
    for sh in (1, 2, 4, 8):
        for k in range(4):
            a(f"v_max_u32_dpp v{64+k}, v{64+k}, v{64+k} row_ror:{sh} row_mask:0xf bank_mask:0xf")
    a("s_lshl_b32 s32, s23, 3")
    a("s_lshl_b32 s33, s22, 1")
    a("s_add_u32 s32, s32, s33")
    a("s_lshl_b32 s33, s24, 8")
    a("s_add_u32 s32, s32, s33")
    a("s_lshl_b32 s32, s32, 2")
    a(f"s_add_u32 s32, s32, {WS_NRM}")
    a("s_add_u32 s33, s32, 16384")
    a("v_lshrrev_b32 v10, 4, v1")
    a("v_lshlrev_b32 v10, 2, v10")
    a("s_mov_b32 exec_lo, 0x00010001")
    a("s_mov_b32 exec_hi, 0")
    for hd in range(2):
        a(f"buffer_store_dword v{64+hd}, v10, s[16:19], s32 offen offset:{hd*512}")
        a(f"buffer_store_dword v{66+hd}, v10, s[16:19], s33 offen offset:{hd*512}")
    a("s_mov_b64 exec, -1")
    kernel_tail(a, name, 0)
    return name, a.lines, 1024 + 5*SLOT + 4096

VH = 240
VB1 = 224
S_X, S_WO, S_W1, S_B1, S_W2, S_B2, S_OUT = 40, 44, 48, 50, 52, 54, 56

def arrive(a, s_off, tmpv=8):
    a("s_waitcnt vmcnt(0)")
    a("s_barrier")
    lab = a.uniq("arr")
    a("s_cmp_lg_u32 s22, 0")
    a(f"s_cbranch_scc1 {lab}")
    a(f"v_mov_b32 v{tmpv}, 0")
    a(f"v_mov_b32 v{tmpv+1}, 1")
    a("s_mov_b64 exec, 1")
    a(f"buffer_atomic_add v{tmpv+1}, v{tmpv}, s[16:19], {s_off} offen sc1")
    a("s_mov_b64 exec, -1")
    a.label(lab)

def await_cnt(a, s_off, n, tmpv=8):
    lab = a.uniq("pw"); done = a.uniq("pd")
    a("s_cmp_lg_u32 s22, 0")
    a(f"s_cbranch_scc1 {done}")
    a(f"v_mov_b32 v{tmpv}, 0")
    a(f"s_mov_b32 s37, {SPIN_MAX}")
    a.label(lab)
    a(f"buffer_load_dword v{tmpv+1}, v{tmpv}, s[16:19], {s_off} offen sc1")
    a("s_waitcnt vmcnt(0)")
    a(f"v_readfirstlane_b32 s38, v{tmpv+1}")
    a("s_sub_u32 s37, s37, 1")
    a("s_cmp_eq_u32 s37, 0")
    a(f"s_cbranch_scc1 {done}")
    a(f"s_cmp_lt_u32 s38, {n}")
    a(f"s_cbranch_scc1 {lab}")
    a.label(done)
    a("s_barrier")

def phase_B(a):
    name = "kb"
    a("s_and_b32 s23, s2, 31")
    a("s_lshr_b32 s24, s2, 5")
    a("s_lshr_b32 s25, s22, 1")
    a("s_and_b32 s26, s22, 1")
    Q = [4, 8, 12, 16]; KF = [20, 24]; VF = [[28, 32], [36, 40]]; S = [44, 60]; P = 76
    O = [84, 100, 116, 132]; NM = [148, 164, 180, 196]
    VK, VV, VPF1, VPF2, VDUM = 212, 213, 214, 215, 216
    a("s_lshl_b32 s28, s23, 9")
    a(f"s_add_u32 s28, s28, {WS_NRM}")
    a("v_lshlrev_b32 v3, 3, v1")
    a("s_add_u32 s29, s28, 16384")
    a("buffer_load_dwordx2 v[218:219], v3, s[16:19], s28 offen")
    a("buffer_load_dwordx2 v[220:221], v3, s[16:19], s29 offen")
    a("s_lshl_b32 s27, s24, 3")
    a("s_lshl_b32 s28, s25, 2")
    a("s_add_u32 s27, s27, s28")
    a("s_lshl_b32 s28, s27, 10")
    a("s_lshl_b32 s29, s23, 16")
    a("s_add_u32 s28, s28, s29")
    a(f"s_add_u32 s28, s28, {WS_Q}")
    for z in range(4):
        a(f"buffer_load_dwordx4 {vr(Q[z],4)}, v2, s[16:19], s28 offen offset:{z*1024}")
    a("s_lshl_b32 s31, s26, 16")
    a("s_lshl_b32 s28, s25, 13")
    a("s_add_u32 s31, s31, s28")
    a("s_lshl_b32 s30, s23, 17")
    a("s_add_u32 s30, s30, s31")
    a(f"s_add_u32 s30, s30, {WS_KV}")
    def dma_chunk():
        a("s_mov_b32 m0, s31")
        a("s_add_u32 s32, s30, 4096")
        for k in range(4): a(f"buffer_load_dwordx4 v2, s[16:19], s30 offen offset:{k*1024} lds")
        a("s_add_u32 m0, s31, 4096")
        a("s_add_u32 s30, s30, 16384")
        for k in range(4): a(f"buffer_load_dwordx4 v2, s[16:19], s32 offen offset:{k*1024} lds")
        a("s_add_u32 s31, s31, 16384")
    dma_chunk()
    tile_map_D(a, 33, 34)
    srd(a, 8, S_B1, 1792 * 2)
    a("v_lshrrev_b32 v3, 5, v1")
    a("v_lshlrev_b32 v3, 3, v3")
    a("s_lshl_b32 s35, s34, 7")
    a("s_lshl_b32 s36, s26, 6")
    a("s_add_u32 s35, s35, s36")
    for g in range(4):
        a(f"buffer_load_dwordx2 {vr(VB1+2*g,2)}, v3, s[8:11], s35 offen offset:{g*16}")
    tile_map_CE(a, 35, 36)
    srd(a, 12, S_B2, 2048 * 2)
    a("v_and_b32 v3, 31, v1")
    a("v_lshlrev_b32 v3, 1, v3")
    a("s_lshl_b32 s37, s36, 7")
    a("s_lshl_b32 s38, s25, 6")
    a("s_add_u32 s37, s37, s38")
    a(f"buffer_load_ushort v{VB1+8}, v3, s[12:15], s37 offen")
    a("s_lshl_b32 s37, s22, 8")
    a("v_add_u32 v3, s37, v1")
    a("v_lshrrev_b32 v217, 1, v3")
    a("v_and_b32 v3, 1, v3")
    a("v_lshlrev_b32 v3, 6, v3")
    a("s_and_b32 s37, s33, 3")
    a("s_lshl_b32 s37, s37, 9")
    a(f"v_add_u32 v{VPF1}, s37, v217")
    a("s_movk_i32 s38, 3584")
    a(f"v_mul_lo_u32 v{VPF1}, v{VPF1}, s38")
    a("s_lshl_b32 s37, s34, 7")
    a(f"v_add3_u32 v{VPF1}, v{VPF1}, s37, v3")
    a("s_and_b32 s37, s35, 3")
    a("s_mul_i32 s37, s37, 448")
    a(f"v_add_u32 v{VPF2}, s37, v217")
    a(f"v_lshlrev_b32 v{VPF2}, 12, v{VPF2}")
    a("s_lshl_b32 s37, s36, 7")
    a(f"v_add3_u32 v{VPF2}, v{VPF2}, s37, v3")
    srd(a, 8, S_W1, 2048 * 1792 * 2)
    srd(a, 12, S_W2, 1792 * 2048 * 2)
    srd(a, 4, S_WO, 512 * 512 * 2)
    for r in range(28, 44): a(f"v_mov_b32 v{r}, {ONES:#x}")
    a("v_and_b32 v3, 31, v1")
    a("v_cmp_eq_u32 vcc, 16, v3")
    a("v_cmp_eq_u32 s[58:59], 20, v3")
    a("s_or_b64 vcc, vcc, s[58:59]")
    for r in range(28, 44): a(f"v_cndmask_b32 v{r}, 0, v{r}, vcc")
    for r in range(P, P + 8): a(f"v_mov_b32 v{r}, 0")
    for z in range(4):
        for r in range(16): a(f"v_mov_b32 v{O[z]+r}, 0")
    a("s_lshl_b32 s28, s26, 16")
    a(f"v_add_u32 v{VK}, s28, v2")
    a(f"v_lshrrev_b32 v{VV}, 5, v1")
    a(f"v_lshlrev_b32 v{VV}, 8, v{VV}")
    a("v_and_b32 v3, 15, v1")
    a(f"v_lshl_add_u32 v{VV}, v3, 4, v{VV}")
    a("s_add_u32 s28, s28, 1024")
    a(f"v_add_u32 v{VV}, s28, v{VV}")
    a("s_mov_b32 s58, 0x0000ffff"); a("s_mov_b32 s59, 0x0000ffff")
    a("s_waitcnt vmcnt(17)")
    a("v_max_u32 v218, v218, v219")
    a("v_max_u32 v220, v220, v221")
    for sh in (1, 2, 4, 8):
        a(f"v_max_u32_dpp v218, v218, v218 row_ror:{sh} row_mask:0xf bank_mask:0xf")
        a(f"v_max_u32_dpp v220, v220, v220 row_ror:{sh} row_mask:0xf bank_mask:0xf")
    for k, r in ((0, 218), (1, 220)):
        for row in range(4):
            a(f"v_readlane_b32 s{60+4*k+row}, v{r}, {16*row}")
    a("s_max_u32 s60, s60, s61"); a("s_max_u32 s62, s62, s63"); a("s_max_u32 s60, s60, s62")
    a("s_max_u32 s64, s64, s65"); a("s_max_u32 s66, s66, s67"); a("s_max_u32 s64, s64, s66")
    a("v_mov_b32 v218, s60")
    a("v_mul_f32 v218, s64, v218")
    a(f"s_mov_b32 s61, {f2u(1600.0/1.03):#x}")
    a("v_cmp_ge_f32 vcc, s61, v218")
    a("s_cmp_eq_u64 vcc, 0")
    a(f"s_cbranch_scc1 L_{name}_slow")
    MASK_ON = "s_mov_b64 exec, s[58:59]"
    def wo_dma():
        wtile_dma_voffs(a, 218, 1, 1024, 222, 223, 4)
        a("s_lshl_b32 s37, s26, 8")
        a("s_lshl_b32 s38, s25, 5")
        a("s_add_u32 s37, s37, s38")
        a("s_lshl_b32 s37, s37, 10")
        a("s_lshl_b32 s28, s35, 7")
        a("s_add_u32 s37, s37, s28")
        a("s_lshl_b32 s28, s26, 16")
        a("s_lshl_b32 s38, s38, 7")
        a("s_add_u32 s38, s38, s28")
        for cc in range(4):
            a(f"s_add_u32 m0, s38, {cc*8192}")
            a(f"s_add_u32 s28, s37, {cc*65536}")
            for n in range(4):
                a(f"buffer_load_dwordx4 v{218+n}, s[4:7], s28 offen offset:{n*1024} lds")
    def first_reads():
        a(f"ds_read_b128 {vr(KF[0],4)}, v{VK}")
        a(MASK_ON)
        a(f"ds_read_b128 {vr(VF[0][0],4)}, v{VV}")
        a(f"ds_read_b128 {vr(VF[0][1],4)}, v{VV} offset:512")
        a("s_mov_b64 exec, -1")
        a("s_waitcnt lgkmcnt(0)")
    def main_loop(tag, slow):
        C = (lambda z: vr(NM[z], 16)) if slow else (lambda z: "0")
        first_reads()
        a(f"{MF} {vr(S[0],16)}, {vr(KF[0],4)}, {vr(Q[0],4)}, {C(0)}")
        a("s_mov_b32 s39, 0")
        a.nop(12)
        a.lines.append(".p2align 6")
        a.label(f"L_{name}_{tag}_loop")
        if not slow: cstamp(a)
        if not slow and not OPT.get("nodma"):
            a("s_cmp_eq_u32 s39, 3")
            a(f"s_cbranch_scc1 L_{name}_wo")
            dma_chunk()
            a.label(f"L_{name}_back")
        for t in range(8):
            for z in range(4):
                s = S[z & 1]; sn = S[(z + 1) & 1]
                pz = (z - 1) & 3; pt = t if z > 0 else t - 1
                nz = (z + 1) & 3; nt = t if z < 3 else t + 1
                e = lambda i: a(f"v_exp_f32 v{s+i}, v{s+i}")
                c = lambda i: a(f"v_cvt_pk_bf16_f32 v{P+i}, v{s+2*i}, v{s+2*i+1}")
                if z == 0 and t == 7 and not slow:
                    if not OPT.get("nobar"):
                        a("s_waitcnt vmcnt(0)")
                        a("s_barrier")
                    if not OPT.get("nopf"):
                        a(f"buffer_load_dword v{VDUM}, v{VPF1}, s[8:11], 0 offen")
                        a(f"buffer_load_dword v{VDUM}, v{VPF2}, s[12:15], 0 offen")
                e(0); e(1)
                a(f"{MF} {vr(O[pz],16)}, {vr(VF[pt&1][1],4)}, {vr(P+4,4)}, {vr(O[pz],16)}")
                if z == 0: a(f"ds_read_b128 {vr(KF[(t+1)&1],4)}, v{VK} offset:{(t+1)*2048}")
                e(2); e(3)
                if z == 0:
                    a(MASK_ON)
                    a(f"ds_read_b128 {vr(VF[(t+1)&1][0],4)}, v{VV} offset:{(t+1)*2048}")
                    a(f"ds_read_b128 {vr(VF[(t+1)&1][1],4)}, v{VV} offset:{(t+1)*2048+512}")
                    a("s_mov_b64 exec, -1")
                e(4); e(5); e(6)
                if z == 3: a("s_waitcnt lgkmcnt(0)")
                a(f"{MF} {vr(sn,16)}, {vr(KF[nt&1],4)}, {vr(Q[nz],4)}, {C(nz)}")
                e(7); c(0); c(1); c(2); c(3); e(8); e(9); e(10)
                a(f"{MF} {vr(O[z],16)}, {vr(VF[t&1][0],4)}, {vr(P,4)}, {vr(O[z],16)}")
                e(11); e(12); e(13); e(14); e(15); c(4); c(5); c(6); c(7)
        a(f"v_add_u32 v{VK}, 0x4000, v{VK}")
        a(f"v_add_u32 v{VV}, 0x4000, v{VV}")
        if not slow:
            a(f"v_add_u32 v{VPF1}, {32*3584}, v{VPF1}")
            a(f"v_add_u32 v{VPF2}, {32*4096}, v{VPF2}")
        a("s_add_u32 s39, s39, 1")
        a("s_cmp_lt_u32 s39, 4")
        a(f"s_cbranch_scc1 L_{name}_{tag}_loop")
    a("s_waitcnt vmcnt(5)")
    a("s_barrier")
    stamp(a, 1)
    main_loop("f", False)
    cstamp(a, 24)
    a(f"s_branch L_{name}_fin")
    a.label(f"L_{name}_wo")
    wo_dma()
    a(f"s_branch L_{name}_back")
    a.label(f"L_{name}_slow")
    for c in range(3): dma_chunk()
    a("s_waitcnt vmcnt(0)")
    a("s_barrier")
    for z in range(4): a(f"v_mov_b32 v{218+z}, 0xff800000")
    a("s_mov_b32 s39, 0")
    a("v_mov_b32 v222, v2")
    a.label(f"L_{name}_p1")
    a(f"ds_read_b128 {vr(KF[0],4)}, v222")
    a("v_add_u32 v222, 0x800, v222")
    a("s_waitcnt lgkmcnt(0)")
    for zz in range(2):
        a(f"{MF} {vr(S[0],16)}, {vr(KF[0],4)}, {vr(Q[2*zz],4)}, 0")
        a(f"{MF} {vr(S[1],16)}, {vr(KF[0],4)}, {vr(Q[2*zz+1],4)}, 0")
        for z in range(2):
            for r in range(0, 16, 2):
                a(f"v_max3_f32 v{218+2*zz+z}, v{S[z]+r}, v{S[z]+r+1}, v{218+2*zz+z}")
    a("s_add_u32 s39, s39, 1")
    a("s_cmp_lt_u32 s39, 64")
    a(f"s_cbranch_scc1 L_{name}_p1")
    for z in range(4):
        a(f"v_mov_b32 v222, v{218+z}")
        a(f"v_permlane32_swap_b32 v{218+z}, v222")
        a(f"v_max_f32 v{218+z}, v{218+z}, v222")
        a(f"v_sub_f32 v{218+z}, 0, v{218+z}")
        for r in range(16): a(f"v_mov_b32 v{NM[z]+r}, v{218+z}")
    main_loop("s", True)
    a("s_barrier")
    wo_dma()
    a("s_waitcnt vmcnt(0)")
    a.label(f"L_{name}_fin")
    stamp(a, 2)
    a.nop(2)
    a(f"{MF} {vr(O[3],16)}, {vr(VF[1][1],4)}, {vr(P+4,4)}, {vr(O[3],16)}")
    SCR = 131072
    a("s_xor_b32 s28, s22, 1")
    a("s_mul_i32 s28, s28, 6144")
    a(f"s_add_u32 s28, s28, {SCR}")
    a("v_add_u32 v218, s28, v2")
    a("s_mul_i32 s28, s22, 6144")
    a(f"s_add_u32 s28, s28, {SCR}")
    a("v_add_u32 v219, s28, v2")
    a("s_lshl_b32 s29, s27, 15")
    a("s_lshl_b32 s28, s23, 10")
    a("s_add_u32 s29, s29, s28")
    a(f"s_add_u32 s29, s29, {WS_O}")
    a("s_cmp_eq_u32 s26, 0")
    a(f"s_cbranch_scc0 L_{name}_x1")
    for kh in range(2):
        if kh == 1: a.label(f"L_{name}_x1")
        a.nop(12)
        for n in range(2):
            z = 2 * (1 - kh) + n
            for g in range(3): a(f"ds_write_b128 v218, {vr(O[z]+4*g,4)} offset:{n*3072+g*1024}")
        a("s_waitcnt lgkmcnt(0)")
        a("s_barrier")
        for n in range(2):
            for g in range(3): a(f"ds_read_b128 {vr(S[0]+12*n+4*g,4)}, v219 offset:{n*3072+g*1024}")
        a("s_waitcnt lgkmcnt(0)")
        a("s_barrier")
        for n in range(2):
            z = 2 * kh + n
            for r in range(9): a(f"v_add_f32 v{O[z]+r}, v{O[z]+r}, v{S[0]+12*n+r}")
            a(f"v_rcp_f32 v220, v{O[z]+8}")
            a("s_nop 0")
            for r in range(8): a(f"v_mul_f32 v{O[z]+r}, v{O[z]+r}, v220")
            for i in range(4): a(f"v_cvt_pk_bf16_f32 v{P+4*n+i}, v{O[z]+2*i}, v{O[z]+2*i+1}")
            a(f"s_add_u32 s28, s29, {z*32768}")
            a(f"v_min_u32 v{P+4*n}, 0xfffffffe, v{P+4*n}")
            a(f"buffer_store_dwordx4 {vr(P+4*n,4)}, v2, s[16:19], s28 offen sc1")
        if kh == 0: a(f"s_branch L_{name}_x2")
    a.label(f"L_{name}_x2")
    stamp(a, 3)

class Stager:
    def __init__(s, a, vm, tag, srd_w, sglob, stride, voff, vrd, sring):
        s.a, s.vm, s.tag, s.srd, s.sglob, s.stride, s.voff, s.vrd, s.sring = a, vm, tag, srd_w, sglob, stride, voff, vrd, sring
    def issue_half(s, c, slot, hh):
        a = s.a
        a(f"s_add_u32 m0, {s.sring}, {slot*8192 + hh*4096}")
        a(f"s_add_u32 s34, {s.sglob}, {(c*64 + hh*32)*s.stride}")
        for n in range(4):
            a(f"buffer_load_dwordx4 v{s.voff+n}, {s.srd}, s34 offen offset:{n*1024} lds")
        s.vm.op((s.tag, c), 4)
    def issue(s, c, slot):
        s.issue_half(c, slot, 0); s.issue_half(c, slot, 1)
    def singles(s, c, slot):
        a = s.a; out = []
        for hh in range(2):
            for n in range(4):
                def f(hh=hh, n=n):
                    if n == 0:
                        a(f"s_add_u32 m0, {s.sring}, {slot*8192 + hh*4096}")
                        a(f"s_add_u32 s34, {s.sglob}, {(c*64 + hh*32)*s.stride}")
                    a(f"buffer_load_dwordx4 v{s.voff+n}, {s.srd}, s34 offen offset:{n*1024} lds")
                    s.vm.op((s.tag, c))
                out.append(f)
        return out
    def read_k(s, slot, areg, kk):
        for t in range(2):
            for q in range(2):
                s.a(f"ds_read_b64_tr_b16 {ar(areg+8*kk+4*t+2*q,2)}, v{s.vrd+t} offset:{slot*8192 + kk*2048 + q*1024}")
    def read(s, c, slot, areg, wait=True):
        if wait: s.vm.wait((s.tag, c))
        s.a("s_waitcnt lgkmcnt(0)")
        for kk in range(4):
            if kk == 3: s.a("s_waitcnt lgkmcnt(8)")
            s.read_k(slot, areg, kk)

S_DB, S_FB, S_CT, S_RB, S_W1G, S_W2G, S_RING = 70, 71, 72, 73, 74, 75, 80
V_W1, V_W2, V_RDL, V_RD = 4, 20, 24, 26

def k2_roles(a):
    tile_map_D(a, S_DB, S_FB)
    tile_map_CE(a, S_CT, S_RB)
    a(f"s_mul_i32 s{S_W1G}, s22, {512*3584}")
    a(f"s_lshl_b32 s69, s{S_FB}, 7")
    a(f"s_add_u32 s{S_W1G}, s{S_W1G}, s69")
    a(f"s_mul_i32 s{S_W2G}, s22, {448*4096}")
    a(f"s_lshl_b32 s69, s{S_RB}, 7")
    a(f"s_add_u32 s{S_W2G}, s{S_W2G}, s69")

def set_ring(a, expr_lines):
    for l in expr_lines: a(l)
    a(f"v_add_u32 v{V_RD}, s{S_RING}, v{V_RDL}")
    a(f"v_add_u32 v{V_RD+1}, s{S_RING}, v{V_RDL+1}")

def check_frags(a, regs, lab_retry, lab_ok):
    r = list(regs)
    a(f"v_max3_u32 v17, v{r[0]}, v{r[1]}, v{r[2]}")
    a(f"v_max3_u32 v18, v{r[3]}, v{r[4]}, v{r[5]}")
    k = 6; tg = 17
    while k < len(r):
        grp = r[k:k+2]
        if len(grp) == 2: a(f"v_max3_u32 v{tg}, v{tg}, v{grp[0]}, v{grp[1]}")
        else: a(f"v_max_u32 v{tg}, v{tg}, v{grp[0]}")
        tg = 35 - tg; k += 2
    a("v_max_u32 v17, v17, v18")
    a("v_cmp_eq_u32 vcc, -1, v17")
    a(f"s_cbranch_vccnz {lab_retry}")
    a.label(lab_ok)

def emit_retry(a, lab_retry, lab_ok, s_base_line, vprobe, reload_fn, regs):
    a.label(lab_retry)
    a(f"s_mov_b32 s37, {SPIN_MAX}")
    a(s_base_line)
    spin = lab_retry + "_spin"
    a.label(spin)
    a(f"buffer_load_dword v17, v{vprobe}, s[16:19], s38 offen sc1")
    a("s_waitcnt vmcnt(0)")
    a("v_cmp_eq_u32 vcc, -1, v17")
    a("s_sub_u32 s37, s37, 1")
    a("s_cmp_eq_u32 s37, 0")
    a(f"s_cbranch_scc1 {lab_ok}")
    a(f"s_cbranch_vccnz {spin}")
    reload_fn()
    a("s_waitcnt vmcnt(0)")
    check_frags(a, regs, spin, lab_ok + "_x")
    a(f"s_branch {lab_ok}")

def phase_C(a, vm, late):
    name = "kc"
    a(f"s_mov_b32 s23, s{S_CT}")
    a(f"s_mov_b32 s24, s{S_RB}")
    a("s_lshl_b32 s31, s24, 1")
    a("s_add_u32 s31, s31, s25")
    srd(a, 4, S_X, 2048 * 512 * 2)
    XF = 96
    a("v_and_b32 v8, 31, v1")
    a("v_lshlrev_b32 v8, 10, v8")
    a("v_lshrrev_b32 v9, 5, v1")
    a("v_lshl_add_u32 v8, v9, 4, v8")
    a("s_lshl_b32 s33, s31, 15")
    a("s_lshl_b32 s34, s23, 7")
    a("s_add_u32 s33, s33, s34")
    a("s_lshl_b32 s34, s26, 6")
    a("s_add_u32 s33, s33, s34")
    a(f"buffer_load_dwordx4 {vr(XF,4)}, v8, s[4:7], s33 offen")
    a(f"buffer_load_dwordx4 {vr(XF+4,4)}, v8, s[4:7], s33 offen offset:32")
    vm.op("x", 2)
    wtile_dma_voffs(a, V_W1, 1, 3584, 8, 9, 4)
    wtile_dma_voffs(a, V_W2, 1, 4096, 8, 9, 4)
    wtile_read_addrs(a, V_RDL, V_RDL+1, 1, 8, 9)
    set_ring(a, [f"s_lshl_b32 s{S_RING}, s26, 14", "s_lshl_b32 s69, s25, 16", f"s_add_u32 s{S_RING}, s{S_RING}, s69",
                 f"s_add_u32 s{S_RING}, s{S_RING}, 32768"])
    w1 = Stager(a, vm, "w1", "s[8:11]", f"s{S_W1G}", 3584, V_W1, V_RD, f"s{S_RING}")
    w1.issue(4, 0); w1.issue(5, 1)
    a("s_lshl_b32 s34, s26, 16")
    a(f"v_add_u32 v10, s34, v{V_RDL}")
    a(f"v_add_u32 v11, s34, v{V_RDL+1}")
    IDN = 104; IDS = 112
    ACC = [128, 144]; OF = 32
    for ks in range(16):
        if ks >= 3 and ks % 2 == 1: a("s_waitcnt lgkmcnt(6)")
        for t in range(2):
            for q in range(2):
                a(f"ds_read_b64_tr_b16 {ar(8*ks+4*t+2*q,2)}, v{10+t} offset:{ks*2048 + q*1024}")
    emit_identity(a, IDN, 1, 12, 13, True)
    emit_identity(a, IDS, 1, 12, 13, False)
    for b in ACC:
        for r in range(16): a(f"v_mov_b32 v{b+r}, 0")
    vm.wait("x")
    a("s_cmp_eq_u32 s26, 0")
    a(f"s_cbranch_scc1 L_{name}_r0")
    a(f"{MF} {vr(ACC[1],16)}, {vr(IDN,4)}, {vr(XF,4)}, {vr(ACC[1],16)}")
    a(f"{MF} {vr(ACC[1],16)}, {vr(IDN+4,4)}, {vr(XF+4,4)}, {vr(ACC[1],16)}")
    a(f"s_branch L_{name}_r1")
    a.label(f"L_{name}_r0")
    a.nop(2)
    a(f"{MF} {vr(ACC[0],16)}, {vr(IDN,4)}, {vr(XF,4)}, {vr(ACC[0],16)}")
    a(f"{MF} {vr(ACC[0],16)}, {vr(IDN+4,4)}, {vr(XF+4,4)}, {vr(ACC[0],16)}")
    a.label(f"L_{name}_r1")
    a("s_lshl_b32 s32, s31, 15")
    a("s_lshl_b32 s33, s26, 14")
    a("s_add_u32 s32, s32, s33")
    a(f"s_add_u32 s32, s32, {WS_O}")
    a("v_and_b32 v16, 15, v1")
    a("v_lshlrev_b32 v16, 10, v16")
    a(f"s_mov_b32 s37, {SPIN_MAX}")
    a.label(f"L_{name}_probe")
    a("buffer_load_dword v9, v16, s[16:19], s32 offen sc1")
    a("s_waitcnt vmcnt(0)")
    a("v_cmp_eq_u32 vcc, -1, v9")
    a("s_sub_u32 s37, s37, 1")
    a("s_cmp_eq_u32 s37, 0")
    a(f"s_cbranch_scc1 L_{name}_load")
    a(f"s_cbranch_vccnz L_{name}_probe")
    a.label(f"L_{name}_load")
    vm.ops = []
    stamp(a, 4)
    def oloads():
        for cc in range(4):
            a(f"s_add_u32 s33, s32, {cc*4096}")
            for k in range(4):
                a(f"buffer_load_dwordx4 {vr(OF+16*cc+4*k,4)}, v2, s[16:19], s33 offen offset:{k*1024} sc1")
    oloads(); vm.op("o", 16)
    w1.read(4, 0, 128, wait=False); w1.read(5, 1, 160, wait=False)
    vm.wait("o")
    oregs = [OF + 4*k for k in range(16)]
    check_frags(a, oregs, f"L_{name}_retry", f"L_{name}_ok")
    late.append(lambda: emit_retry(a, f"L_{name}_retry", f"L_{name}_ok", "s_mov_b32 s38, s32", 16, oloads, oregs))
    for ks in range(16):
        for t in range(2):
            a(f"{MF} {vr(ACC[t],16)}, {ar(8*ks+4*t,4)}, {vr(OF+4*ks,4)}, {vr(ACC[t],16)}")
    stamp(a, 5)
    SCR = 131072
    a("s_xor_b32 s34, s22, 1")
    a("s_lshl_b32 s34, s34, 12")
    a(f"s_add_u32 s34, s34, {SCR}")
    a("v_add_u32 v8, s34, v2")
    a("s_lshl_b32 s34, s22, 12")
    a(f"s_add_u32 s34, s34, {SCR}")
    a("v_add_u32 v9, s34, v2")
    H = VH
    a("s_cmp_eq_u32 s26, 0")
    a(f"s_cbranch_scc1 L_{name}_k0")
    for g in range(4): a(f"ds_write_b128 v8, {vr(ACC[0]+4*g,4)} offset:{g*1024}")
    for r in range(16): a(f"v_mov_b32 v{H+r}, v{ACC[1]+r}")
    a(f"s_branch L_{name}_k1")
    a.label(f"L_{name}_k0")
    a.nop(12)
    for g in range(4): a(f"ds_write_b128 v8, {vr(ACC[1]+4*g,4)} offset:{g*1024}")
    for r in range(16): a(f"v_mov_b32 v{H+r}, v{ACC[0]+r}")
    a.label(f"L_{name}_k1")
    a("s_waitcnt lgkmcnt(0)")
    a("s_barrier")
    for g in range(4): a(f"ds_read_b128 {vr(ACC[1]+4*g,4)}, v9 offset:{g*1024}")
    a("s_waitcnt lgkmcnt(0)")
    for r in range(16): a(f"v_add_f32 v{H+r}, v{H+r}, v{ACC[1]+r}")
    a(f"v_add_f32 v16, v{H}, v{H+1}")
    a(f"v_mul_f32 v17, v{H}, v{H}")
    a(f"v_add_f32 v18, v{H+2}, v{H+3}")
    a(f"v_mul_f32 v19, v{H+2}, v{H+2}")
    a(f"v_fma_f32 v17, v{H+1}, v{H+1}, v17")
    a(f"v_fma_f32 v19, v{H+3}, v{H+3}, v19")
    for r in range(4, 16, 2):
        a(f"v_add_f32 v16, v16, v{H+r}")
        a(f"v_fma_f32 v17, v{H+r}, v{H+r}, v17")
        a(f"v_add_f32 v18, v18, v{H+r+1}")
        a(f"v_fma_f32 v19, v{H+r+1}, v{H+r+1}, v19")
    a("v_add_f32 v16, v16, v18")
    a("v_add_f32 v17, v17, v19")
    a("v_mov_b32 v18, v16"); a("v_mov_b32 v19, v17")
    a("v_permlane32_swap_b32 v16, v18"); a("v_permlane32_swap_b32 v17, v19")
    a("v_add_f32 v16, v16, v18"); a("v_add_f32 v17, v17, v19")
    a("v_min_u32 v16, 0xfffffffe, v16")
    a("v_min_u32 v17, 0xfffffffe, v17")
    a("s_lshl_b32 s34, s31, 12")
    a(f"s_add_u32 s39, s34, {WS_ST}")
    a("s_lshl_b32 s35, s23, 1")
    a("s_add_u32 s35, s35, s26")
    a("s_lshl_b32 s35, s35, 8")
    a("s_add_u32 s35, s35, s39")
    a("v_and_b32 v8, 31, v1")
    a("v_lshlrev_b32 v8, 3, v8")
    a("s_mov_b32 exec_hi, 0")
    a("buffer_store_dwordx2 v[16:17], v8, s[16:19], s35 offen sc0 sc1")
    a("s_mov_b64 exec, -1")
    vm.op("st")
    if OPT.get("dbgH"):
        for i in range(8): a(f"v_cvt_pk_bf16_f32 v{48+i}, v{H+2*i}, v{H+2*i+1}")
        a("s_lshl_b32 s36, s24, 3"); a("s_add_u32 s36, s36, s23"); a("s_lshl_b32 s36, s36, 2")
        a("s_add_u32 s36, s36, s22"); a("s_lshl_b32 s36, s36, 11"); a(f"s_add_u32 s36, s36, {WS_H}")
        a(f"buffer_store_dwordx4 {vr(48,4)}, v2, s[16:19], s36 offen")
        a(f"buffer_store_dwordx4 {vr(52,4)}, v2, s[16:19], s36 offen offset:1024")
        vm.op("dbg", 2)
    w1.issue(6, 0); w1.issue(7, 1)
    a("v_lshrrev_b32 v9, 5, v1")
    a("v_lshl_add_u32 v8, v9, 11, v8")
    a(f"s_mov_b32 s37, {SPIN_MAX}")
    a.label(f"L_{name}_poll")
    for p in range(8):
        a(f"buffer_load_dwordx2 {vr(32+2*p,2)}, v8, s[16:19], s39 offen offset:{p*256} sc0 sc1")
    a("s_waitcnt vmcnt(0)")
    a("v_max_u32 v48, v32, v33")
    for p in range(1, 8):
        a(f"v_max3_u32 v48, v{32+2*p}, v{33+2*p}, v48")
    a("v_cmp_eq_u32 vcc, -1, v48")
    a("s_sub_u32 s37, s37, 1")
    a("s_cmp_eq_u32 s37, 0")
    a(f"s_cbranch_scc1 L_{name}_go")
    a(f"s_cbranch_vccnz L_{name}_poll")
    a.label(f"L_{name}_go")
    vm.ops = []
    stamp(a, 6)
    for st in (4, 2, 1):
        for p in range(st):
            a(f"v_add_f32 v{32+2*p}, v{32+2*p}, v{32+2*(p+st)}")
            a(f"v_add_f32 v{33+2*p}, v{33+2*p}, v{33+2*(p+st)}")
    a("v_mov_b32 v34, v32"); a("v_mov_b32 v35, v33")
    a("v_permlane32_swap_b32 v32, v34"); a("v_permlane32_swap_b32 v33, v35")
    a("v_add_f32 v32, v32, v34"); a("v_add_f32 v33, v33, v35")
    a(f"s_mov_b32 s30, {f2u(1.0/512):#x}")
    a("v_mul_f32 v32, s30, v32")
    a("v_mul_f32 v33, s30, v33")
    a("v_fma_f32 v33, -v32, v32, v33")
    a("v_max_f32 v33, 0, v33")
    a(f"v_add_f32 v34, {f2u(1e-5):#x}, v33")
    a("v_rsq_f32 v34, v34")
    a("s_nop 0")
    a("v_mul_f32 v35, v33, v34")
    a("v_mul_f32 v35, v35, v34")
    a(f"v_add_f32 v35, {f2u(1e-5):#x}, v35")
    a("v_rsq_f32 v35, v35")
    a("s_nop 0")
    a("v_mul_f32 v34, v34, v35")
    a("v_mul_f32 v36, v32, v34")
    a("v_sub_f32 v36, 0, v36")
    a("v_mov_b32 v35, v34")
    a("v_mov_b32 v37, v36")
    N = 160
    for r in range(0, 16, 2):
        a(f"v_pk_fma_f32 {vr(N+r,2)}, {vr(H+r,2)}, v[34:35], v[36:37]")
    for i in range(8): a(f"v_cvt_pk_bf16_f32 v{40+i}, v{N+2*i}, v{N+2*i+1}")
    T = ACC[1]
    a(f"{MF} {vr(T,16)}, {vr(40,4)}, {vr(IDS,4)}, 0")
    a(f"{MF} {vr(T,16)}, {vr(44,4)}, {vr(IDS+4,4)}, {vr(T,16)}")
    a("s_lshl_b32 s35, s23, 1")
    a("s_add_u32 s35, s35, s26")
    a("s_lshl_b32 s35, s35, 7")
    a("s_lshl_b32 s36, s31, 1")
    a("s_add_u32 s35, s35, s36")
    a("s_lshl_b32 s35, s35, 10")
    a(f"s_add_u32 s35, s35, {WS_HT}")
    for i in range(8): a(f"v_cvt_pk_bf16_f32 v{48+i}, v{T+2*i}, v{T+2*i+1}")
    a("v_min_u32 v48, 0xfffffffe, v48")
    a("v_min_u32 v52, 0xfffffffe, v52")
    a(f"buffer_store_dwordx4 {vr(48,4)}, v2, s[16:19], s35 offen sc1")
    a(f"buffer_store_dwordx4 {vr(52,4)}, v2, s[16:19], s35 offen offset:1024 sc1")
    vm.op("ht", 2)
    w1.read(6, 0, 192, wait=False)
    w1.read(7, 1, 224, wait=False)
    a("s_waitcnt lgkmcnt(0)")
    a("s_barrier")
    set_ring(a, [f"s_mul_i32 s{S_RING}, s22, 24576"])
    stamp(a, 7)

AF0 = 32; ACC0 = 160; INBOX = 98304
class ActStream:
    def __init__(s, a, vm, name, s_act, stride, late):
        s.a, s.vm, s.name, s.s_act, s.stride, s.late = a, vm, name, s_act, stride, late
        a("v_bfe_u32 v16, v1, 2, 1")
        a(f"s_mov_b32 s69, {stride}")
        a("v_mul_lo_u32 v16, v16, s69")
        a("v_and_b32 v17, 3, v1")
        a("v_lshl_add_u32 v16, v17, 10, v16")
    def loads(s, b, part=None, sr0=35):
        a = s.a; fb = AF0 + (b % 4) * 32
        if part in (None, 0):
            a(f"s_add_u32 s{sr0}, {s.s_act}, {b*4096}")
            a(f"s_add_u32 s{sr0+1}, s{sr0}, {s.stride}")
        for kk in (range(4) if part is None else [part]):
            a(f"buffer_load_dwordx4 {vr(fb+8*kk,4)}, v2, s[16:19], s{sr0} offen offset:{kk*1024} sc1")
            a(f"buffer_load_dwordx4 {vr(fb+8*kk+4,4)}, v2, s[16:19], s{sr0+1} offen offset:{kk*1024} sc1")
    def issue(s, b, part=None):
        s.loads(b, part); s.vm.op(("a", b), 8 if part is None else 2)
    def singles(s, b):
        a = s.a; fb = AF0 + (b % 4) * 32
        out = []
        for kk in range(4):
            for t in range(2):
                def f(kk=kk, t=t):
                    if kk == 0 and t == 0:
                        a(f"s_add_u32 s35, {s.s_act}, {b*4096}")
                        a(f"s_add_u32 s36, s35, {s.stride}")
                    a(f"buffer_load_dwordx4 {vr(fb+8*kk+4*t,4)}, v2, s[16:19], s{35+t} offen offset:{kk*1024} sc1")
                    s.vm.op(("a", b))
                out.append(f)
        return out
    def probe_all(s, nk):
        a = s.a
        a("v_and_b32 v18, 1, v1")
        a(f"v_mul_lo_u32 v18, v18, s69")
        a("v_lshrrev_b32 v17, 1, v1")
        a(f"v_min_u32 v17, {nk-1}, v17")
        a("v_lshl_add_u32 v19, v17, 10, v18")
        lab = f"L_{s.name}_pall"
        a(f"s_mov_b32 s37, {SPIN_MAX}")
        a.label(lab)
        a(f"buffer_load_dword v17, v19, s[16:19], {s.s_act} offen sc1")
        a("s_waitcnt vmcnt(0)")
        a("v_cmp_eq_u32 vcc, -1, v17")
        a("s_sub_u32 s37, s37, 1")
        a("s_cmp_eq_u32 s37, 0")
        a(f"s_cbranch_scc1 {lab}_done")
        a(f"s_cbranch_vccnz {lab}")
        a.label(lab + "_done")
        s.vm.ops = []
    def check(s, b):
        s.vm.wait(("a", b))
        fb = AF0 + (b % 4) * 32
        regs = [fb + 4*i for i in range(8)]
        lr, lo = f"L_{s.name}_retry{b}", f"L_{s.name}_ok{b}"
        check_frags(s.a, regs, lr, lo)
        s.late.append(lambda: emit_retry(s.a, lr, lo, f"s_add_u32 s38, {s.s_act}, {b*4096}", 16, lambda: s.loads(b, None, 81), regs))

def gemm_main(a, act, nb, w_is_A, extra):
    for b in range(nb):
        cstamp(a, (30 if w_is_A else 40) + b)
        fb = AF0 + (b % 4) * 32
        q = []
        if b + 3 < nb: q += act.singles(b + 3)
        q += extra.get(b, [])
        for kk in range(4):
            for n, (t0, t1) in enumerate(((0, 0), (0, 1), (1, 0), (1, 1))):
                w = ar((4*b+kk)*8 + 4*t0, 4); x = vr(fb + 8*kk + 4*t1, 4)
                qd = t1*2 + t0 if w_is_A else t0*2 + t1
                acc = vr(ACC0 + 16*qd, 16)
                if w_is_A: a(f"{MF} {acc}, {w}, {x}, {acc}")
                else: a(f"{MF} {acc}, {x}, {w}, {acc}")
                if n in (0, 2) and q: q.pop(0)()
                if n == 3 and kk == 2 and b + 1 < nb: act.check(b + 1)
        assert not q
    cstamp(a, (30 if w_is_A else 40) + nb)

def quad_write(a):
    for qd in range(4):
        a(f"s_lshl_b32 s34, s22, 12")
        a(f"s_add_u32 s34, s34, {INBOX + qd*16384}")
        a("v_add_u32 v8, s34, v2")
        for g in range(4): a(f"ds_write_b128 v8, {vr(ACC0+16*qd+4*g,4)} offset:{g*1024}")
    a("s_lshl_b32 s34, s22, 14")
    a(f"s_add_u32 s34, s34, {INBOX}")
    a("v_add_u32 v9, s34, v2")
    a("s_waitcnt lgkmcnt(0)")
    a("s_barrier")
def quad_read(a, OUT):
    R = [OUT, 32, 48, 64]
    for src in range(4):
        if src == 3: a("s_waitcnt lgkmcnt(8)")
        for g in range(4): a(f"ds_read_b128 {vr(R[src]+4*g,4)}, v9 offset:{src*4096+g*1024}")
    a("s_waitcnt lgkmcnt(8)")
    for r in range(16): a(f"v_add_f32 v{OUT+r}, v{OUT+r}, v{R[1]+r}")
    a("s_waitcnt lgkmcnt(0)")
    for r in range(16): a(f"v_add_f32 v{R[2]+r}, v{R[2]+r}, v{R[3]+r}")
    for r in range(16): a(f"v_add_f32 v{OUT+r}, v{OUT+r}, v{R[2]+r}")

def phase_DE(a, vm, late):
    name = "kd"
    w1 = Stager(a, vm, "w1", "s[8:11]", f"s{S_W1G}", 3584, V_W1, V_RD, f"s{S_RING}")
    w2 = Stager(a, vm, "w2", "s[12:15]", f"s{S_W2G}", 4096, V_W2, V_RD, f"s{S_RING}")
    a("s_cmp_ge_u32 s2, 224")
    a(f"s_cbranch_scc1 L_{name}_skip")
    w1.issue(0, 0); w1.issue(1, 1); w1.issue(2, 2)
    a(f"s_lshl_b32 s32, s{S_DB}, 18")
    a("s_lshl_b32 s33, s22, 15")
    a("s_add_u32 s32, s32, s33")
    a(f"s_add_u32 s32, s32, {WS_HT}")
    act = ActStream(a, vm, "kd", "s32", 131072, late)
    for r in range(64): a(f"v_mov_b32 v{ACC0+r}, 0")
    stamp(a, 8)
    w1.read(0, 0, 0)
    a("s_waitcnt lgkmcnt(0)")
    w1.issue(3, 0)
    act.probe_all(32)
    act.issue(0); act.issue(1); act.issue(2)
    w1.read(1, 1, 32, wait=False); w1.read(2, 2, 64, wait=False); w1.read(3, 0, 96, wait=False)
    act.check(0)
    a("s_waitcnt lgkmcnt(0)")
    stamp(a, 9)
    gemm_main(a, act, 8, True, {5: w2.singles(0, 0), 6: w2.singles(1, 1), 7: w2.singles(2, 2)})
    stamp(a, 10)
    U = 128
    quad_write(a)
    quad_read(a, U)
    for g in range(4):
        for i in range(2):
            r = VB1 + 2*g + i
            a(f"v_lshlrev_b32 v{184+4*g+2*i}, 16, v{r}")
            a(f"v_and_b32 v{185+4*g+2*i}, 0xffff0000, v{r}")
    for r in range(16): a(f"v_add_f32 v{U+r}, v{U+r}, v{184+r}")
    kk = -2.0 * 0.7978845608028654 * LOG2E
    a(f"s_mov_b32 s36, {f2u(kk*0.044715):#x}")
    a(f"s_mov_b32 s37, {f2u(kk):#x}")
    T = 184
    a("v_mov_b32 v16, s37")
    for r in range(16): a(f"v_mul_f32 v{T+r}, v{U+r}, v{U+r}")
    for r in range(16): a(f"v_fma_f32 v{T+r}, v{T+r}, s36, v16")
    for r in range(16): a(f"v_mul_f32 v{T+r}, v{T+r}, v{U+r}")
    for r in range(16): a(f"v_exp_f32 v{T+r}, v{T+r}")
    for r in range(16): a(f"v_add_f32 v{T+r}, 1.0, v{T+r}")
    for r in range(16): a(f"v_rcp_f32 v{T+r}, v{T+r}")
    for r in range(16): a(f"v_mul_f32 v{U+r}, v{U+r}, v{T+r}")
    for i in range(8): a(f"v_cvt_pk_bf16_f32 v{48+i}, v{U+2*i}, v{U+2*i+1}")
    a(f"s_lshl_b32 s31, s{S_DB}, 1")
    a("s_lshr_b32 s36, s22, 1")
    a("s_add_u32 s31, s31, s36")
    a("s_mul_i32 s35, s31, 112")
    a(f"s_lshl_b32 s36, s{S_FB}, 2")
    a("s_add_u32 s35, s35, s36")
    a("s_and_b32 s36, s22, 1")
    a("s_lshl_b32 s36, s36, 1")
    a("s_add_u32 s35, s35, s36")
    a("s_lshl_b32 s35, s35, 10")
    a(f"s_add_u32 s35, s35, {WS_U}")
    a("v_min_u32 v48, 0xfffffffe, v48")
    a("v_min_u32 v52, 0xfffffffe, v52")
    a(f"buffer_store_dwordx4 {vr(48,4)}, v2, s[16:19], s35 offen sc1")
    a(f"buffer_store_dwordx4 {vr(52,4)}, v2, s[16:19], s35 offen offset:1024 sc1")
    vm.op("u", 2)
    a("s_barrier")
    stamp(a, 11)
    w2.read(0, 0, 0); w2.read(1, 1, 32); w2.read(2, 2, 64)
    a("s_waitcnt lgkmcnt(0)")
    w2.issue(3, 0); w2.issue(4, 1); w2.issue(5, 2)
    a(f"s_branch L_{name}_join")
    a.label(f"L_{name}_skip")
    vm2 = VM(a)
    w2b = Stager(a, vm2, "w2", "s[12:15]", f"s{S_W2G}", 4096, V_W2, V_RD, f"s{S_RING}")
    w2b.issue(0, 0); w2b.issue(1, 1); w2b.issue(2, 2)
    w2b.read(0, 0, 0); w2b.read(1, 1, 32); w2b.read(2, 2, 64)
    a("s_waitcnt lgkmcnt(0)")
    w2b.issue(3, 0); w2b.issue(4, 1); w2b.issue(5, 2)
    a.label(f"L_{name}_join")
    name = "ke"
    a(f"s_mov_b32 s23, s{S_CT}")
    a(f"s_mov_b32 s24, s{S_RB}")
    srd(a, 4, S_OUT, 2048 * 512 * 2)
    a("s_mul_i32 s32, s23, 2*112*1024")
    a("s_mul_i32 s33, s22, 28*1024")
    a("s_add_u32 s32, s32, s33")
    a(f"s_add_u32 s32, s32, {WS_U}")
    act = ActStream(a, vm, "ke", "s32", 112*1024, late)
    for r in range(64): a(f"v_mov_b32 v{ACC0+r}, 0")
    stamp(a, 12)
    w2.read(3, 0, 96)
    a("s_waitcnt lgkmcnt(0)")
    w2.issue(6, 0)
    act.probe_all(28)
    act.issue(0); act.issue(1); act.issue(2)
    w2.read(4, 1, 128, wait=False); w2.read(5, 2, 160, wait=False); w2.read(6, 0, 192, wait=False)
    act.check(0)
    a("s_waitcnt lgkmcnt(0)")
    stamp(a, 13)
    gemm_main(a, act, 7, False, {})
    stamp(a, 14)
    Y = 128
    quad_write(a)
    quad_read(a, Y)
    a(f"v_lshlrev_b32 v184, 16, v{VB1+8}")
    for r in range(16): a(f"v_add_f32 v{Y+r}, v{Y+r}, v{VH+r}")
    for r in range(16): a(f"v_add_f32 v{Y+r}, v{Y+r}, v184")
    for i in range(8): a(f"v_cvt_pk_bf16_f32 v{48+i}, v{Y+2*i}, v{Y+2*i+1}")
    a("v_and_b32 v8, 31, v1")
    a("v_lshlrev_b32 v8, 10, v8")
    a("v_lshrrev_b32 v9, 5, v1")
    a("v_lshl_add_u32 v8, v9, 4, v8")
    a("v_permlane32_swap_b32 v48, v50"); a("v_permlane32_swap_b32 v49, v51")
    a("v_permlane32_swap_b32 v52, v54"); a("v_permlane32_swap_b32 v53, v55")
    a("s_lshl_b32 s35, s24, 1")
    a("s_lshr_b32 s36, s22, 1")
    a("s_add_u32 s35, s35, s36")
    a("s_lshl_b32 s35, s35, 15")
    a("s_lshl_b32 s36, s23, 1")
    a("s_and_b32 s33, s22, 1")
    a("s_add_u32 s36, s36, s33")
    a("s_lshl_b32 s36, s36, 6")
    a("s_add_u32 s35, s35, s36")
    a(f"buffer_store_dwordx4 {vr(48,4)}, v8, s[4:7], s35 offen")
    a(f"buffer_store_dwordx4 {vr(52,4)}, v8, s[4:7], s35 offen offset:32")

def gen_K2():
    global VST
    VST = 239
    a = Asm(); name = "k2_kernel"
    cnt = [0]
    def uniq(p):
        cnt[0] += 1
        return f"L_{p}{cnt[0]}"
    a.uniq = uniq
    kernel_head(a, name, 256)
    a("s_load_dwordx16 s[40:55], s[0:1], 0")
    a(f"s_load_dwordx2 s[56:57], s[0:1], {KA_OUT}")
    a(f"s_load_dwordx2 s[20:21], s[0:1], {KA_WS}")
    a("v_lshrrev_b32 v2, 6, v0")
    a("v_and_b32 v1, 63, v0")
    a("v_readfirstlane_b32 s22, v2")
    a("v_lshlrev_b32 v2, 4, v1")
    a("s_waitcnt lgkmcnt(0)")
    srd(a, 16, 20, WS_SIZE)
    k2_roles(a)
    phase_B(a)
    vm = VM(a); late = []
    vm.op("ostore", 2)
    phase_C(a, vm, late)
    phase_DE(a, vm, late)
    a(f"s_branch L_{name}_fin")
    for f in late: f()
    a.label(f"L_{name}_fin")
    kernel_tail(a, name, 1)
    a.label("L_k2_code_end")
    return name, a.lines, 163840

def build(path):
    ks = [gen_K1(), gen_K2()]
    ref = open("cdna_kernels/" + NAME + ".s.ref").read().split("\n")
    hdr = [l for l in ref if l.startswith(";") and "@launch" not in l and not l.startswith("; Override") and not l.startswith("; grid=")]
    out = list(hdr)
    for name, lines, lds in ks:
        out.append(f"; @launch kernel={name} grid=(256,1,1) block=(256,1,1) lds={lds}")
    out.append('.amdgcn_target "amdgcn-amd-amdhsa--gfx950"')
    out.append(".text")
    tot = 0; body = []
    for name, lines, lds in ks:
        fixed, n = fix_hazards(lines)
        tot += n
        for p in check_backedges(fixed): print("BACKEDGE HAZARD", name, p)
        if name == "k2_kernel":
            k2size = sum(ins_sizes([l for l in fixed]))
        for l in fixed:
            body.append(l if (l.endswith(":") or l.startswith(".")) else "    " + l)
    k2size = (k2size + 63) // 64 * 64
    out.append(f".set K2_CODE_BYTES, {k2size - 128}")
    out += body
    out.append('.section .rodata,"a"')
    for name, lines, lds in ks:
        out.append(".p2align 6")
        out.append(kd(name, 512, 256) if name == "k2_kernel" else kd(name))
    open(path, "w").write("\n".join(out) + "\n")
    print("wrote", path, "nops inserted:", tot, "k2 code bytes", k2size)

if __name__ == "__main__":
    args = sys.argv[2:]
    if "stamp" in args: STAMP = True
    for o in args: OPT[o] = 1
    build(sys.argv[1] if len(sys.argv) > 1 else "cdna_kernels/" + NAME + ".s")
```

```python
import sys
sys.path.insert(0, "dev")
from asmlib import *

NAME = "sequential_preLN__mha_block__mixer_token_mlp__prompt"
WS_Q   = 0
WS_KV  = 2 << 20
WS_NRM = 6 << 20
WS_CNT = (6 << 20) + (64 << 10)
WS_O   = 7 << 20
WS_ST  = 9 << 20
WS_H   = 10 << 20
WS_HT  = 12 << 20
WS_U   = 14 << 20
WS_SIZE = 16 << 20
KA_X, KA_WQKV, KA_WO, KA_W1, KA_B1, KA_W2, KA_B2, KA_OUT, KA_DBG, KA_WS = 0, 8, 16, 32, 40, 48, 56, 64, 72, 80
ONES = 0x3F803F80
LOG2E = 1.4426950408889634
MF = "v_mfma_f32_32x32x16_bf16"
OPT = {}
STAMP = False
STAMP_OFF = 32 << 20
SPIN_MAX = 0x40000

def f2u(x):
    import struct
    return struct.unpack("<I", struct.pack("<f", x))[0]

def srd(a, s, ptr, size):
    a(f"s_mov_b32 s{s}, s{ptr}")
    a(f"s_and_b32 s{s+1}, s{ptr+1}, 0xffff")
    a(f"s_mov_b32 s{s+2}, {size}")
    a(f"s_mov_b32 s{s+3}, 0x00020000")

class VM:
    def __init__(self, a): self.a = a; self.ops = []
    def op(self, tag, n=1): self.ops += [tag] * n
    def wait(self, *tags):
        last = -1
        for i, t in enumerate(self.ops):
            if t in tags: last = i
        assert last >= 0, tags
        n = len(self.ops) - 1 - last
        self.a(f"s_waitcnt vmcnt({min(n, 63)})")
        self.ops = self.ops[last + 1:]
    def drain(self):
        self.a("s_waitcnt vmcnt(0)"); self.ops = []

VST = 239
def stamp(a, k):
    if STAMP:
        a("s_memrealtime s[90:91]")
        a("s_waitcnt lgkmcnt(0)")
        a(f"v_writelane_b32 v{VST}, s90, {k}")

def cstamp(a, k=None):
    if STAMP:
        a("s_memtime s[90:91]")
        a("s_waitcnt lgkmcnt(0)")
        if k is None:
            a("s_add_u32 s91, s39, 20"); a("s_mov_b32 s89, m0"); a("s_mov_b32 m0, s91")
            a(f"v_writelane_b32 v{VST}, s90, m0"); a("s_mov_b32 m0, s89")
        else:
            a(f"v_writelane_b32 v{VST}, s90, {k}")

def kernel_head(a, name, nwg):
    a.lines.append(f".globl {name}")
    a.lines.append(".p2align 8")
    a.lines.append(f".type {name},@function")
    a.label(name)
    a(f"s_cmp_ge_u32 s2, {nwg}")
    a(f"s_cbranch_scc1 L_{name}_end")
    if STAMP:
        a(f"v_mov_b32 v{VST}, 0")
        a("s_memtime s[92:93]")
        stamp(a, 0)

def kernel_tail(a, name, kidx):
    if STAMP:
        a.label(f"L_{name}_stamp")
        a("s_waitcnt vmcnt(0) lgkmcnt(0)")
        a("s_memtime s[94:95]")
        stamp(a, 62)
        a("s_sub_u32 s94, s94, s92")
        a(f"v_writelane_b32 v{VST}, s94, 63")
        a("s_cmp_lg_u32 s22, 0")
        a(f"s_cbranch_scc1 L_{name}_end")
        a("s_mov_b64 exec, -1")
        a("s_lshl_b32 s30, s2, 8")
        a(f"s_add_u32 s30, s30, {STAMP_OFF + kidx*65536}")
        a("v_and_b32 v4, 63, v0")
        a("v_lshlrev_b32 v4, 2, v4")
        a("v_add_u32 v4, s30, v4")
        a(f"global_store_dword v4, v{VST}, s[20:21]")
        a("s_waitcnt vmcnt(0)")
    a.label(f"L_{name}_end")
    a("s_endpgm")

def kd(name, nv=256, acc=256, ns=100):
    return f""".amdhsa_kernel {name}
  .amdhsa_next_free_vgpr {nv}
  .amdhsa_next_free_sgpr {ns}
  .amdhsa_accum_offset {acc}
  .amdhsa_group_segment_fixed_size 0
  .amdhsa_kernarg_size 88
  .amdhsa_user_sgpr_count 2
  .amdhsa_user_sgpr_kernarg_segment_ptr 1
  .amdhsa_system_sgpr_workgroup_id_x 1
.end_amdhsa_kernel
"""

def emit_identity(a, base, vl, t0, t1, natural):
    a(f"v_mov_b32 v{t1+1}, 0x3f80")
    a(f"v_mov_b32 v{t1+2}, 0x3f800000")
    a(f"v_and_b32 v{t0}, 31, v{vl}")
    a(f"v_lshrrev_b32 v{t1}, 5, v{vl}")
    a(f"v_lshlrev_b32 v{t1}, {3 if natural else 2}, v{t1}")
    a(f"v_sub_u32 v{t0}, v{t0}, v{t1}")
    for q in range(2):
        for i in range(4):
            c = 16 * q + ((2 * i) if natural else (0, 2, 8, 10)[i])
            r = base + 4 * q + i
            a(f"v_cmp_eq_u32 vcc, {c}, v{t0}")
            a(f"v_cmp_eq_u32 s[58:59], {c+1}, v{t0}")
            a(f"v_cndmask_b32 v{r}, 0, v{t1+1}, vcc")
            a(f"v_cndmask_b32 v{r}, v{r}, v{t1+2}, s[58:59]")

def swap_add(a, v, t):
    a(f"v_mov_b32 v{t}, v{v}")
    a(f"v_permlane32_swap_b32 v{v}, v{t}")
    a(f"v_add_f32 v{v}, v{v}, v{t}")

def tile_map_CE(a, sct, srb):
    a(f"s_and_b32 s{sct}, s2, 1")
    a(f"s_lshl_b32 s{sct}, s{sct}, 2")
    a("s_lshr_b32 s68, s2, 3")
    a("s_and_b32 s69, s68, 3")
    a(f"s_add_u32 s{sct}, s{sct}, s69")
    a(f"s_bfe_u32 s{srb}, s2, 0x20001")
    a(f"s_lshl_b32 s{srb}, s{srb}, 3")
    a("s_lshr_b32 s69, s68, 2")
    if not OPT.get("noswap"):
        a("s_and_b32 s68, s69, 3")
        a("s_cmp_eq_u32 s68, 3")
        a("s_cselect_b32 s68, 4, 0")
        a("s_xor_b32 s69, s69, s68")
    a(f"s_add_u32 s{srb}, s{srb}, s69")

def tile_map_D(a, sdb, sfb):
    a(f"s_and_b32 s{sdb}, s2, 1")
    a(f"s_lshl_b32 s{sdb}, s{sdb}, 2")
    a("s_lshr_b32 s68, s2, 3")
    a("s_and_b32 s69, s68, 3")
    a(f"s_add_u32 s{sdb}, s{sdb}, s69")
    a(f"s_bfe_u32 s{sfb}, s2, 0x20001")
    a(f"s_mul_i32 s{sfb}, s{sfb}, 7")
    a("s_lshr_b32 s69, s68, 2")
    a(f"s_add_u32 s{sfb}, s{sfb}, s69")

def wtile_dma_voffs(a, base, vl, stride, t0, t1, n_regs=4):
    a(f"v_lshrrev_b32 v{t0}, 3, v{vl}")
    a(f"s_mov_b32 s69, {stride}")
    a(f"v_mul_lo_u32 v{t0}, v{t0}, s69")
    a(f"v_bfe_u32 v{t1}, v{vl}, 4, 1")
    a(f"v_lshlrev_b32 v{t1}, 2, v{t1}")
    a(f"v_and_b32 v{base}, 7, v{vl}")
    a(f"v_xor_b32 v{t1}, v{t1}, v{base}")
    a(f"v_lshl_add_u32 v{base}, v{t1}, 4, v{t0}")
    for n in range(1, n_regs):
        a(f"v_add_u32 v{base+n}, {n*8*stride - n*1024}, v{base}")

def wtile_read_addrs(a, r0, r1, vl, t0, t1):
    a(f"v_lshrrev_b32 v{t0}, 5, v{vl}")
    a(f"v_lshlrev_b32 v{t0}, 2, v{t0}")
    a(f"v_bfe_u32 v{t1}, v{vl}, 2, 2")
    a(f"v_add_u32 v{t0}, v{t0}, v{t1}")
    a(f"v_lshlrev_b32 v{t0}, 7, v{t0}")
    a(f"v_bfe_u32 v{t1}, v{vl}, 4, 1")
    a(f"v_lshlrev_b32 v{t1}, 1, v{t1}")
    a(f"v_bfe_u32 v{r1}, v{vl}, 1, 1")
    a(f"v_add_u32 v{t1}, v{t1}, v{r1}")
    a(f"v_bfe_u32 v{r1}, v{vl}, 3, 1")
    a(f"v_lshlrev_b32 v{r1}, 2, v{r1}")
    a(f"v_xor_b32 v{t1}, v{t1}, v{r1}")
    a(f"v_lshl_add_u32 v{t0}, v{t1}, 4, v{t0}")
    a(f"v_and_b32 v{t1}, 1, v{vl}")
    a(f"v_lshl_add_u32 v{r0}, v{t1}, 3, v{t0}")
    a(f"v_xor_b32 v{r1}, 64, v{r0}")

def gen_K1():
    global VST
    VST = 47
    a = Asm(); name = "k1_kernel"
    kernel_head(a, name, 256)
    a(f"s_load_dwordx4 s[4:7], s[0:1], {KA_X}")
    a(f"s_load_dwordx2 s[20:21], s[0:1], {KA_WS}")
    a("v_lshrrev_b32 v2, 6, v0")
    a("v_and_b32 v1, 63, v0")
    a("v_readfirstlane_b32 s22, v2")
    a("s_getpc_b64 s[32:33]")
    a.label("L_k1_pc")
    a("v_lshlrev_b32 v3, 6, v0")
    a("global_load_dword v8, v3, s[32:33]")
    a("s_add_u32 s34, s32, k2_kernel-L_k1_pc")
    a("s_addc_u32 s35, s33, 0")
    a("s_lshr_b32 s36, s2, 3")
    a("s_lshl_b32 s36, s36, 11")
    a("v_and_b32 v3, 31, v0")
    a("v_lshlrev_b32 v3, 6, v3")
    a("v_add_u32 v3, s36, v3")
    a("v_min_u32 v3, K2_CODE_BYTES, v3")
    a("global_load_dword v9, v3, s[34:35]")
    a("s_and_b32 s23, s2, 3")
    a("s_lshl_b32 s23, s23, 2")
    a("s_lshr_b32 s29, s2, 3")
    a("s_and_b32 s30, s29, 3")
    a("s_add_u32 s23, s23, s30")
    a("s_bfe_u32 s24, s2, 0x10002")
    a("s_lshl_b32 s24, s24, 3")
    a("s_lshr_b32 s30, s29, 2")
    a("s_add_u32 s24, s24, s30")
    a("s_lshl_b32 s25, s23, 17")
    a("s_lshl_b32 s30, s22, 15")
    a("s_add_u32 s25, s25, s30")
    JO = 0 if OPT.get("nojoff") else 5
    a(f"s_add_u32 s38, s24, {JO}"); a("s_and_b32 s38, s38, 15")
    a(f"s_add_u32 s39, s24, {2*JO}"); a("s_and_b32 s39, s39, 15")
    a("s_mul_i32 s30, s22, 49152")
    for t, sj in enumerate((24, 38, 39)):
        a(f"s_lshl_b32 s{70+t}, s{sj}, 6")
        a(f"s_add_u32 s{70+t}, s{70+t}, s30")
    SLOT = 28672; L0 = 1024
    a("s_lshl_b32 s27, s22, 12")
    a(f"s_add_u32 s27, s27, {L0}")
    a("s_lshl_b32 s28, s22, 10")
    a(f"s_add_u32 s28, s28, {L0 + 16384}")
    a("v_lshrrev_b32 v8, 3, v1") if False else None
    a("v_lshrrev_b32 v10, 3, v1")
    a("v_lshlrev_b32 v10, 10, v10")
    a("v_lshrrev_b32 v11, 4, v1")
    a("v_and_b32 v12, 7, v1")
    a("v_xor_b32 v11, v11, v12")
    for n in range(4):
        a(f"v_xor_b32 v12, {4*(n&1)}, v11")
        a(f"v_lshl_add_u32 v12, v12, 4, v10")
        a(f"v_add_u32 v{2+n}, {n*8192 - n*1024}, v12")
    a("v_lshrrev_b32 v10, 2, v1")
    a("s_movk_i32 s30, 3072")
    a("v_mul_lo_u32 v10, v10, s30")
    a("v_and_b32 v11, 3, v1")
    a("v_lshl_add_u32 v6, v11, 4, v10")
    a("s_waitcnt lgkmcnt(0)")
    srd(a, 8, 4, 2048 * 512 * 2)
    srd(a, 12, 6, 512 * 1536 * 2)
    srd(a, 16, 20, WS_SIZE)
    vm = VM(a); vm.op("code", 2)
    KORD = [0, 1, 2, 3, 4, 5, 6, 7] if OPT.get('nokord') else [0, 1, 2, 4, 5, 6, 7, 3]
    def dma_stage(s):
        for f in dma_singles(s): f()
    def dma_singles(s):
        slot = s % 5; out = []; kb = KORD[s]
        for n in range(4):
            def f(n=n):
                if n == 0:
                    a(f"s_add_u32 m0, s27, {slot*SLOT - kb*128}")
                    a("s_nop 0")
                a(f"buffer_load_dwordx4 v{2+n}, s[8:11], s25 offen offset:{kb*128 + n*1024} lds")
                vm.op(("st", s))
            out.append(f)
        for t in range(3):
            def f(t=t):
                a(f"s_add_u32 m0, s28, {slot*SLOT + t*4096 - t*1024}")
                a(f"s_add_u32 s29, s{70+t}, {kb*196608}")
                a(f"buffer_load_dwordx4 v6, s[12:15], s29 offen offset:{t*1024} lds")
                vm.op(("st", s))
            out.append(f)
        return out
    FILLF = 'sc1' if OPT.get('fillsc1') else ('' if OPT.get('fillplain') else 'nt')
    def fill_setup():
        for r in range(20, 24): a(f"v_mov_b32 v{r}, -1")
        a("v_lshlrev_b32 v24, 4, v1")
        a("v_lshlrev_b32 v25, 2, v1")
        a("s_lshl_b32 s36, s2, 13")
        a("s_lshl_b32 s33, s22, 11")
        a("s_add_u32 s36, s36, s33")
        a("s_lshl_b32 s37, s2, 10")
        a("s_lshl_b32 s33, s22, 8")
        a("s_add_u32 s37, s37, s33")
        a(f"s_add_u32 s37, s37, {WS_ST}")
    def fill(n):
        if n < 6:
            a(f"s_add_u32 s33, s36, {(WS_O, WS_HT, WS_U)[n >> 1]}")
            a(f"buffer_store_dwordx4 v[20:23], v24, s[16:19], s33 offen offset:{(n & 1)*1024} {FILLF}")
        else:
            a(f"buffer_store_dword v20, v25, s[16:19], s37 offen {FILLF}")
        vm.op("fill")
    for s in range(3): dma_stage(s)
    stamp(a, 1)
    a("v_and_b32 v10, 31, v1")
    a("v_lshrrev_b32 v11, 5, v1")
    a("v_bfe_u32 v16, v1, 1, 3")
    a("v_lshlrev_b32 v10, 7, v10")
    a("v_add_u32 v10, s27, v10")
    for ks in range(4):
        a(f"v_add_u32 v17, {2*ks}, v11")
        a("v_xor_b32 v17, v17, v16")
        a(f"v_lshl_add_u32 v{12+ks}, v17, 4, v10")
    a("v_bfe_u32 v10, v1, 2, 2")
    a("v_lshl_add_u32 v10, v11, 3, v10")
    a("v_lshlrev_b32 v10, 6, v10")
    a("v_bfe_u32 v16, v1, 4, 1")
    a("v_lshl_add_u32 v10, v16, 5, v10")
    a("v_and_b32 v16, 3, v1")
    a("v_lshl_add_u32 v10, v16, 3, v10")
    a(f"v_add_u32 v7, {L0 + 16384}, v10")
    a("s_lshl_b32 s30, s22, 10")
    a("v_add_u32 v11, s30, v7")
    FB = [128, 192]; CF = 48
    SUM = [60, 61]; SQ = [62, 63]; CS = [64, 65, 66, 67, 68, 69]
    ACC = [80, 96, 112]
    for r in SUM + SQ + CS: a(f"v_mov_b32 v{r}, 0")
    for b in ACC:
        for r in range(16): a(f"v_mov_b32 v{b+r}, 0")
    a(f"s_mov_b32 s31, {ONES:#x}")
    def rdx(ks, buf): a(f"ds_read_b128 {vr(FB[buf]+16*ks,4)}, v{12+ks}")
    def rdw(ks, buf, t):
        for q in range(2):
            a(f"ds_read_b64_tr_b16 {vr(FB[buf]+16*ks+4+4*t+2*q,2)}, v7 offset:{t*4096 + ks*1024 + q*256}")
    def creads():
        for t in range(3):
            for q in range(2):
                a(f"ds_read_b64_tr_b16 {vr(CF+4*t+2*q,2)}, v11 offset:{t*4096 + q*256}")
    def advance(s):
        d = ((s + 1) % 5 - s % 5) * SLOT
        for r in (12, 13, 14, 15, 7, 11):
            if d >= 0: a(f"v_add_u32 v{r}, {d}, v{r}")
            else: a(f"v_subrev_u32 v{r}, {-d}, v{r}")
    dma_stage(3)
    vm.wait(("st", 0))
    a("s_barrier")
    stamp(a, 2)
    for ks in range(4):
        if ks >= 2: a("s_waitcnt lgkmcnt(8)")
        rdx(ks, 0)
        for t in range(3): rdw(ks, 0, t)
    a("s_waitcnt lgkmcnt(9)")
    creads()
    dma_stage(4)
    for s_ in range(8):
        buf = s_ & 1; nb = buf ^ 1
        more = s_ < 7
        cstamp(a, 8 + 2*s_)
        a("s_waitcnt lgkmcnt(0)")
        if more:
            vm.wait(("st", s_ + 1))
            if not OPT.get("k1nobar"): a("s_barrier")
            cstamp(a, 9 + 2*s_)
            advance(s_)
        vq = dma_singles(s_ + 5) if s_ + 5 <= 7 else []
        if s_ == 2: fill_setup()
        if s_ == 3: vq = [lambda n=n: fill(n) for n in range(4)]
        if s_ == 4: vq = [lambda n=n: fill(n) for n in range(4, 7)]
        def pop():
            if vq: vq.pop(0)()
        for ks in range(4):
            x = FB[buf] + 16*ks
            mf = lambda t: a(f"{MF} {vr(ACC[t],16)}, {vr(x+4+4*t,4)}, {vr(x,4)}, {vr(ACC[t],16)}")
            mf(0)
            if more and not OPT.get("k1nord"):
                if ks >= 2: a("s_waitcnt lgkmcnt(8)")
                rdx(ks, nb); rdw(ks, nb, 0)
            mf(1)
            if more and not OPT.get("k1nord"): rdw(ks, nb, 1); rdw(ks, nb, 2)
            mf(2)
            pop()
            if ks == 0:
                for t in range(3 if not OPT.get("k1nocs") else 0):
                    for i in range(4):
                        a(f"v_dot2c_f32_bf16 v{CS[2*t+(i&1)]}, s31, v{CF+4*t+i}")
            for i in range(4 if not OPT.get("k1nodot") else 0):
                a(f"v_dot2c_f32_bf16 v{SUM[i&1]}, s31, v{x+i}")
                a(f"v_dot2c_f32_bf16 v{SQ[i&1]}, v{x+i}, v{x+i}")
                if i == 1: pop()
            if ks == 3 and more and not OPT.get("k1nocs"):
                a("s_waitcnt lgkmcnt(9)")
                creads()
        assert not vq
    stamp(a, 3)
    SCR = L0 + 5 * SLOT
    for t in range(3): a(f"v_add_f32 v{64+t*2}, v{64+t*2}, v{65+t*2}")
    for t in range(3): swap_add(a, 64 + 2*t, 72 + t)
    a("v_and_b32 v8, 31, v1")
    a("v_lshlrev_b32 v8, 2, v8")
    a("s_mul_i32 s30, s22, 384")
    a(f"s_add_u32 s30, s30, {SCR}")
    a("v_add_u32 v9, s30, v8")
    for t in range(3): a(f"ds_write_b32 v9, v{64+2*t} offset:{t*128}")
    a(f"v_add_f32 v60, v60, v61")
    a(f"v_add_f32 v62, v62, v63")
    swap_add(a, 60, 70); swap_add(a, 62, 71)
    a("s_waitcnt lgkmcnt(0)")
    a("s_barrier")
    a("v_lshlrev_b32 v10, 2, v1")
    a(f"v_add_u32 v10, {SCR}, v10")
    for w in range(4): a(f"ds_read_b32 v{64+w}, v10 offset:{w*384}")
    a(f"v_add_u32 v9, {SCR + 256}, v8")
    for w in range(4): a(f"ds_read_b32 v{68+w}, v9 offset:{w*384}")
    a(f"s_mov_b32 s30, {f2u(1.0/512):#x}")
    a("v_mul_f32 v60, s30, v60")
    a("v_mul_f32 v62, s30, v62")
    a("v_fma_f32 v62, -v60, v60, v62")
    a("v_max_f32 v62, 0, v62")
    a(f"v_add_f32 v62, {f2u(1e-5):#x}, v62")
    a("v_rsq_f32 v62, v62")
    a("v_sub_f32 v60, 0, v60")
    a("v_mov_b32 v61, v60")
    a("v_mov_b32 v63, v62")
    a(f"v_mul_f32 v74, {f2u(0.25*LOG2E):#x}, v62")
    a("v_mov_b32 v75, v74")
    a("s_waitcnt lgkmcnt(0)")
    a("v_add_f32 v64, v64, v65"); a("v_add_f32 v66, v66, v67"); a("v_add_f32 v68, v68, v69"); a("v_add_f32 v70, v70, v71")
    a("v_add_f32 v64, v64, v66"); a("v_add_f32 v68, v68, v70")
    a("s_lshl_b32 s30, s22, 9")
    a(f"s_add_u32 s30, s30, {SCR + 2048}")
    a("v_lshlrev_b32 v10, 2, v1")
    a("v_add_u32 v10, s30, v10")
    a("ds_write_b32 v10, v64")
    a("v_add_u32 v9, s30, v8")
    a("ds_write_b32 v9, v68 offset:256")
    a("v_lshrrev_b32 v9, 5, v1")
    a("v_lshlrev_b32 v9, 4, v9")
    a("v_add_u32 v9, s30, v9")
    a("s_waitcnt lgkmcnt(0)")
    CSR = 128
    for t in (2, 0, 1):
        for g in range(4):
            a(f"ds_read_b128 {vr(CSR+16*t+4*g,4)}, v9 offset:{t*128 + g*32}")
    IDS = 176
    emit_identity(a, IDS, 1, 76, 77, False)
    PK = 184
    QF = 'sc1' if OPT.get('qsc1') else ('nt' if OPT.get('qnt') else '')
    for n, t in enumerate((2, 0, 1)):
        a(f"s_waitcnt lgkmcnt({8 - 4*n})")
        for r in range(0, 16, 2):
            a(f"v_pk_fma_f32 {vr(ACC[t]+r,2)}, {vr(CSR+16*t+r,2)}, v[60:61], {vr(ACC[t]+r,2)}")
        sc = "v[74:75]" if t == 0 else "v[62:63]"
        for r in range(0, 16, 2):
            a(f"v_pk_mul_f32 {vr(ACC[t]+r,2)}, {vr(ACC[t]+r,2)}, {sc}")
        for i in range(8):
            a(f"v_cvt_pk_bf16_f32 v{PK+8*t+i}, v{ACC[t]+2*i}, v{ACC[t]+2*i+1}")
        if t == 2:
            a(f"{MF} {vr(208,16)}, {vr(PK+16,4)}, {vr(IDS,4)}, 0")
            a(f"{MF} {vr(208,16)}, {vr(PK+20,4)}, {vr(IDS+4,4)}, {vr(208,16)}")
        else:
            if t == 0:
                a("s_lshl_b32 s29, s23, 2")
                a("s_add_u32 s29, s29, s22")
                a("s_lshl_b32 s30, s24, 7")
                a("s_add_u32 s30, s30, s29")
                a("v_lshlrev_b32 v8, 4, v1")
                a("s_lshl_b32 s32, s30, 10")
                a(f"s_add_u32 s32, s32, {WS_Q}")
                a("s_add_u32 s33, s32, 65536")
                a(f"buffer_store_dwordx4 {vr(PK,4)}, v8, s[16:19], s32 offen {QF}")
                a(f"buffer_store_dwordx4 {vr(PK+4,4)}, v8, s[16:19], s33 offen {QF}")
            else:
                a("s_lshl_b32 s30, s38, 7")
                a("s_add_u32 s30, s30, s29")
                a("s_lshl_b32 s32, s30, 11")
                a(f"s_add_u32 s32, s32, {WS_KV}")
                a("s_add_u32 s33, s32, 131072")
                a(f"buffer_store_dwordx4 {vr(PK+8,4)}, v8, s[16:19], s32 offen {QF}")
                a(f"buffer_store_dwordx4 {vr(PK+12,4)}, v8, s[16:19], s33 offen {QF}")
    for i in range(8):
        a(f"v_cvt_pk_bf16_f32 v{PK+16+i}, v{208+2*i}, v{208+2*i+1}")
    a("v_bfe_u32 v9, v1, 4, 1")
    a("v_lshlrev_b32 v9, 17, v9")
    a("v_lshrrev_b32 v10, 5, v1")
    a("v_lshl_add_u32 v9, v10, 8, v9")
    a("v_and_b32 v10, 15, v1")
    a("v_lshl_add_u32 v9, v10, 4, v9")
    a("s_lshl_b32 s30, s39, 7")
    a("s_add_u32 s30, s30, s29")
    a("s_lshl_b32 s32, s30, 11")
    a(f"s_add_u32 s32, s32, {WS_KV}")
    a(f"buffer_store_dwordx4 {vr(PK+16,4)}, v9, s[16:19], s32 offen offset:1024 {QF}")
    a(f"buffer_store_dwordx4 {vr(PK+20,4)}, v9, s[16:19], s32 offen offset:1536 {QF}")
    stamp(a, 4)
    for t in range(2):
        for hd in range(2):
            r = 64 + 2*t + hd; b = ACC[t] + 8*hd
            a(f"v_mul_f32 v{r}, v{b}, v{b}")
    for i in range(1, 8):
        for t in range(2):
            for hd in range(2):
                r = 64 + 2*t + hd; b = ACC[t] + 8*hd
                a(f"v_fma_f32 v{r}, v{b+i}, v{b+i}, v{r}")
    for k in range(4): a(f"v_mov_b32 v{70+k}, v{64+k}")
    for k in range(4): a(f"v_permlane32_swap_b32 v{64+k}, v{70+k}")
    for k in range(4): a(f"v_add_f32 v{64+k}, v{64+k}, v{70+k}")
    for sh in (1, 2, 4, 8):
        for k in range(4):
            a(f"v_max_u32_dpp v{64+k}, v{64+k}, v{64+k} row_ror:{sh} row_mask:0xf bank_mask:0xf")
    a("s_lshl_b32 s32, s23, 3")
    a("s_lshl_b32 s33, s22, 1")
    a("s_add_u32 s32, s32, s33")
    a("s_lshl_b32 s33, s38, 8")
    a("s_add_u32 s33, s33, s32")
    a("s_lshl_b32 s33, s33, 2")
    a(f"s_add_u32 s33, s33, {WS_NRM + 16384}")
    a("s_lshl_b32 s30, s24, 8")
    a("s_add_u32 s32, s32, s30")
    a("s_lshl_b32 s32, s32, 2")
    a(f"s_add_u32 s32, s32, {WS_NRM}")
    a("v_lshrrev_b32 v10, 4, v1")
    a("v_lshlrev_b32 v10, 2, v10")
    a("s_mov_b32 exec_lo, 0x00010001")
    a("s_mov_b32 exec_hi, 0")
    for hd in range(2):
        a(f"buffer_store_dword v{64+hd}, v10, s[16:19], s32 offen offset:{hd*512}")
        a(f"buffer_store_dword v{66+hd}, v10, s[16:19], s33 offen offset:{hd*512}")
    a("s_mov_b64 exec, -1")
    kernel_tail(a, name, 0)
    return name, a.lines, 1024 + 5*SLOT + 4096

VH = 240
VB1 = 224
S_X, S_WO, S_W1, S_B1, S_W2, S_B2, S_OUT = 40, 44, 48, 50, 52, 54, 56

def arrive(a, s_off, tmpv=8):
    a("s_waitcnt vmcnt(0)")
    a("s_barrier")
    lab = a.uniq("arr")
    a("s_cmp_lg_u32 s22, 0")
    a(f"s_cbranch_scc1 {lab}")
    a(f"v_mov_b32 v{tmpv}, 0")
    a(f"v_mov_b32 v{tmpv+1}, 1")
    a("s_mov_b64 exec, 1")
    a(f"buffer_atomic_add v{tmpv+1}, v{tmpv}, s[16:19], {s_off} offen sc1")
    a("s_mov_b64 exec, -1")
    a.label(lab)

def await_cnt(a, s_off, n, tmpv=8):
    lab = a.uniq("pw"); done = a.uniq("pd")
    a("s_cmp_lg_u32 s22, 0")
    a(f"s_cbranch_scc1 {done}")
    a(f"v_mov_b32 v{tmpv}, 0")
    a(f"s_mov_b32 s37, {SPIN_MAX}")
    a.label(lab)
    a(f"buffer_load_dword v{tmpv+1}, v{tmpv}, s[16:19], {s_off} offen sc1")
    a("s_waitcnt vmcnt(0)")
    a(f"v_readfirstlane_b32 s38, v{tmpv+1}")
    a("s_sub_u32 s37, s37, 1")
    a("s_cmp_eq_u32 s37, 0")
    a(f"s_cbranch_scc1 {done}")
    a(f"s_cmp_lt_u32 s38, {n}")
    a(f"s_cbranch_scc1 {lab}")
    a.label(done)
    a("s_barrier")

def phase_B(a):
    name = "kb"
    a("s_and_b32 s23, s2, 31")
    a("s_lshr_b32 s24, s2, 5")
    a("s_lshr_b32 s25, s22, 1")
    a("s_and_b32 s26, s22, 1")
    Q = [4, 8, 12, 16]; KF = [20, 24]; VF = [[28, 32], [36, 40]]; S = [44, 60]; P = 76
    O = [84, 100, 116, 132]; NM = [148, 164, 180, 196]
    VK, VV, VPF1, VPF2, VDUM = 212, 213, 214, 215, 216
    a("s_lshl_b32 s28, s23, 9")
    a(f"s_add_u32 s28, s28, {WS_NRM}")
    a("v_lshlrev_b32 v3, 3, v1")
    a("s_add_u32 s29, s28, 16384")
    a("buffer_load_dwordx2 v[218:219], v3, s[16:19], s28 offen")
    a("buffer_load_dwordx2 v[220:221], v3, s[16:19], s29 offen")
    a("s_lshl_b32 s27, s24, 3")
    a("s_lshl_b32 s28, s25, 2")
    a("s_add_u32 s27, s27, s28")
    a("s_lshl_b32 s28, s27, 10")
    a("s_lshl_b32 s29, s23, 16")
    a("s_add_u32 s28, s28, s29")
    a(f"s_add_u32 s28, s28, {WS_Q}")
    for z in range(4):
        a(f"buffer_load_dwordx4 {vr(Q[z],4)}, v2, s[16:19], s28 offen offset:{z*1024}")
    a("s_lshl_b32 s31, s26, 16")
    a("s_lshl_b32 s28, s25, 13")
    a("s_add_u32 s31, s31, s28")
    a("s_lshl_b32 s30, s23, 17")
    a("s_add_u32 s30, s30, s31")
    a(f"s_add_u32 s30, s30, {WS_KV}")
    def dma_chunk():
        a("s_mov_b32 m0, s31")
        a("s_add_u32 s32, s30, 4096")
        for k in range(4): a(f"buffer_load_dwordx4 v2, s[16:19], s30 offen offset:{k*1024} lds")
        a("s_add_u32 m0, s31, 4096")
        a("s_add_u32 s30, s30, 16384")
        for k in range(4): a(f"buffer_load_dwordx4 v2, s[16:19], s32 offen offset:{k*1024} lds")
        a("s_add_u32 s31, s31, 16384")
    dma_chunk()
    tile_map_D(a, 33, 34)
    srd(a, 8, S_B1, 1792 * 2)
    a("v_lshrrev_b32 v3, 5, v1")
    a("v_lshlrev_b32 v3, 3, v3")
    a("s_lshl_b32 s35, s34, 7")
    a("s_lshl_b32 s36, s26, 6")
    a("s_add_u32 s35, s35, s36")
    for g in range(4):
        a(f"buffer_load_dwordx2 {vr(VB1+2*g,2)}, v3, s[8:11], s35 offen offset:{g*16}")
    tile_map_CE(a, 35, 36)
    srd(a, 12, S_B2, 2048 * 2)
    a("v_and_b32 v3, 31, v1")
    a("v_lshlrev_b32 v3, 1, v3")
    a("s_lshl_b32 s37, s36, 7")
    a("s_lshl_b32 s38, s25, 6")
    a("s_add_u32 s37, s37, s38")
    a(f"buffer_load_ushort v{VB1+8}, v3, s[12:15], s37 offen")
    a("s_lshl_b32 s37, s22, 8")
    a("v_add_u32 v3, s37, v1")
    a("v_lshrrev_b32 v217, 1, v3")
    a("v_and_b32 v3, 1, v3")
    a("v_lshlrev_b32 v3, 6, v3")
    a("s_and_b32 s37, s33, 3")
    a("s_lshl_b32 s37, s37, 9")
    a(f"v_add_u32 v{VPF1}, s37, v217")
    a("s_movk_i32 s38, 3584")
    a(f"v_mul_lo_u32 v{VPF1}, v{VPF1}, s38")
    a("s_lshl_b32 s37, s34, 7")
    a(f"v_add3_u32 v{VPF1}, v{VPF1}, s37, v3")
    a("s_and_b32 s37, s35, 3")
    a("s_mul_i32 s37, s37, 448")
    a(f"v_add_u32 v{VPF2}, s37, v217")
    a(f"v_lshlrev_b32 v{VPF2}, 12, v{VPF2}")
    a("s_lshl_b32 s37, s36, 7")
    a(f"v_add3_u32 v{VPF2}, v{VPF2}, s37, v3")
    srd(a, 8, S_W1, 2048 * 1792 * 2)
    srd(a, 12, S_W2, 1792 * 2048 * 2)
    srd(a, 4, S_WO, 512 * 512 * 2)
    VPF3 = 217
    a("s_lshl_b32 s37, s26, 8")
    a("s_lshl_b32 s38, s25, 5")
    a("s_add_u32 s37, s37, s38")
    a("v_lshrrev_b32 v3, 5, v1")
    a("v_lshlrev_b32 v3, 6, v3")
    a(f"v_and_b32 v{VPF3}, 31, v1")
    a(f"v_add3_u32 v{VPF3}, v{VPF3}, v3, s37")
    a(f"v_lshlrev_b32 v{VPF3}, 10, v{VPF3}")
    a("s_lshl_b32 s37, s35, 7")
    a(f"v_add_u32 v{VPF3}, s37, v{VPF3}")
    for r in range(28, 44): a(f"v_mov_b32 v{r}, {ONES:#x}")
    a("v_and_b32 v3, 31, v1")
    a("v_cmp_eq_u32 vcc, 16, v3")
    a("v_cmp_eq_u32 s[58:59], 20, v3")
    a("s_or_b64 vcc, vcc, s[58:59]")
    for r in range(28, 44): a(f"v_cndmask_b32 v{r}, 0, v{r}, vcc")
    for r in range(P, P + 8): a(f"v_mov_b32 v{r}, 0")
    for z in range(4):
        for r in range(16): a(f"v_mov_b32 v{O[z]+r}, 0")
    a("s_lshl_b32 s28, s26, 16")
    a(f"v_add_u32 v{VK}, s28, v2")
    a(f"v_lshrrev_b32 v{VV}, 5, v1")
    a(f"v_lshlrev_b32 v{VV}, 8, v{VV}")
    a("v_and_b32 v3, 15, v1")
    a(f"v_lshl_add_u32 v{VV}, v3, 4, v{VV}")
    a("s_add_u32 s28, s28, 1024")
    a(f"v_add_u32 v{VV}, s28, v{VV}")
    a("s_mov_b32 s58, 0x0000ffff"); a("s_mov_b32 s59, 0x0000ffff")
    a("s_waitcnt vmcnt(17)")
    a("v_max_u32 v218, v218, v219")
    a("v_max_u32 v220, v220, v221")
    for sh in (1, 2, 4, 8):
        a(f"v_max_u32_dpp v218, v218, v218 row_ror:{sh} row_mask:0xf bank_mask:0xf")
        a(f"v_max_u32_dpp v220, v220, v220 row_ror:{sh} row_mask:0xf bank_mask:0xf")
    for k, r in ((0, 218), (1, 220)):
        for row in range(4):
            a(f"v_readlane_b32 s{60+4*k+row}, v{r}, {16*row}")
    a("s_max_u32 s60, s60, s61"); a("s_max_u32 s62, s62, s63"); a("s_max_u32 s60, s60, s62")
    a("s_max_u32 s64, s64, s65"); a("s_max_u32 s66, s66, s67"); a("s_max_u32 s64, s64, s66")
    a("v_mov_b32 v218, s60")
    a("v_mul_f32 v218, s64, v218")
    a(f"s_mov_b32 s61, {f2u(1600.0/1.03):#x}")
    a("v_cmp_ge_f32 vcc, s61, v218")
    a("s_cmp_eq_u64 vcc, 0")
    a(f"s_cbranch_scc1 L_{name}_slow")
    MASK_ON = "s_mov_b64 exec, s[58:59]"
    def wo_dma():
        wtile_dma_voffs(a, 218, 1, 1024, 222, 223, 4)
        a("s_lshl_b32 s37, s26, 8")
        a("s_lshl_b32 s38, s25, 5")
        a("s_add_u32 s37, s37, s38")
        a("s_lshl_b32 s37, s37, 10")
        a("s_lshl_b32 s28, s35, 7")
        a("s_add_u32 s37, s37, s28")
        a("s_lshl_b32 s28, s26, 16")
        a("s_lshl_b32 s38, s38, 7")
        a("s_add_u32 s38, s38, s28")
        for cc in range(4):
            a(f"s_add_u32 m0, s38, {cc*8192}")
            a(f"s_add_u32 s28, s37, {cc*65536}")
            for n in range(4):
                a(f"buffer_load_dwordx4 v{218+n}, s[4:7], s28 offen offset:{n*1024} lds")
    def first_reads():
        a(f"ds_read_b128 {vr(KF[0],4)}, v{VK}")
        a(MASK_ON)
        a(f"ds_read_b128 {vr(VF[0][0],4)}, v{VV}")
        a(f"ds_read_b128 {vr(VF[0][1],4)}, v{VV} offset:512")
        a("s_mov_b64 exec, -1")
        a("s_waitcnt lgkmcnt(0)")
    def main_loop(tag, slow):
        C = (lambda z: vr(NM[z], 16)) if slow else (lambda z: "0")
        first_reads()
        a(f"{MF} {vr(S[0],16)}, {vr(KF[0],4)}, {vr(Q[0],4)}, {C(0)}")
        a("s_mov_b32 s39, 0")
        a.nop(12)
        a.lines.append(".p2align 6")
        a.label(f"L_{name}_{tag}_loop")
        if not slow: cstamp(a)
        if not slow and not OPT.get("nodma"):
            a("s_cmp_eq_u32 s39, 3")
            a(f"s_cbranch_scc1 L_{name}_wo")
            dma_chunk()
            a.label(f"L_{name}_back")
            if not OPT.get("nopf"):
                a(f"buffer_load_dword v{VDUM}, v{VPF1}, s[8:11], 0 offen")
                a(f"buffer_load_dword v{VDUM}, v{VPF2}, s[12:15], 0 offen")
                a(f"buffer_load_dword v{VDUM}, v{VPF3}, s[4:7], 0 offen")
        for t in range(8):
            for z in range(4):
                s = S[z & 1]; sn = S[(z + 1) & 1]
                pz = (z - 1) & 3; pt = t if z > 0 else t - 1
                nz = (z + 1) & 3; nt = t if z < 3 else t + 1
                e = lambda i: a(f"v_exp_f32 v{s+i}, v{s+i}")
                c = lambda i: a(f"v_cvt_pk_bf16_f32 v{P+i}, v{s+2*i}, v{s+2*i+1}")
                if z == 0 and t == 7 and not slow:
                    if not OPT.get("nobar"):
                        a(f"s_waitcnt vmcnt({0 if OPT.get('nopf') else 3})")
                        a("s_barrier")
                e(0); e(1)
                a(f"{MF} {vr(O[pz],16)}, {vr(VF[pt&1][1],4)}, {vr(P+4,4)}, {vr(O[pz],16)}")
                if z == 0: a(f"ds_read_b128 {vr(KF[(t+1)&1],4)}, v{VK} offset:{(t+1)*2048}")
                e(2); e(3)
                if z == 0:
                    a(MASK_ON)
                    a(f"ds_read_b128 {vr(VF[(t+1)&1][0],4)}, v{VV} offset:{(t+1)*2048}")
                    a(f"ds_read_b128 {vr(VF[(t+1)&1][1],4)}, v{VV} offset:{(t+1)*2048+512}")
                    a("s_mov_b64 exec, -1")
                e(4); e(5); e(6)
                if z == 3: a("s_waitcnt lgkmcnt(0)")
                a(f"{MF} {vr(sn,16)}, {vr(KF[nt&1],4)}, {vr(Q[nz],4)}, {C(nz)}")
                e(7); c(0); c(1); c(2); c(3); e(8); e(9); e(10)
                a(f"{MF} {vr(O[z],16)}, {vr(VF[t&1][0],4)}, {vr(P,4)}, {vr(O[z],16)}")
                e(11); e(12); e(13); e(14); e(15); c(4); c(5); c(6); c(7)
        a(f"v_add_u32 v{VK}, 0x4000, v{VK}")
        a(f"v_add_u32 v{VV}, 0x4000, v{VV}")
        if not slow:
            a(f"v_add_u32 v{VPF1}, {32*3584}, v{VPF1}")
            a(f"v_add_u32 v{VPF2}, {32*4096}, v{VPF2}")
            a(f"v_add_u32 v{VPF3}, {128*1024}, v{VPF3}")
        a("s_add_u32 s39, s39, 1")
        a("s_cmp_lt_u32 s39, 4")
        a(f"s_cbranch_scc1 L_{name}_{tag}_loop")
    a("s_waitcnt vmcnt(5)")
    a("s_barrier")
    stamp(a, 1)
    main_loop("f", False)
    cstamp(a, 24)
    a(f"s_branch L_{name}_fin")
    a.label(f"L_{name}_wo")
    wo_dma()
    a(f"s_branch L_{name}_back")
    a.label(f"L_{name}_slow")
    for c in range(3): dma_chunk()
    a("s_waitcnt vmcnt(0)")
    a("s_barrier")
    for z in range(4): a(f"v_mov_b32 v{218+z}, 0xff800000")
    a("s_mov_b32 s39, 0")
    a("v_mov_b32 v222, v2")
    a.label(f"L_{name}_p1")
    a(f"ds_read_b128 {vr(KF[0],4)}, v222")
    a("v_add_u32 v222, 0x800, v222")
    a("s_waitcnt lgkmcnt(0)")
    for zz in range(2):
        a(f"{MF} {vr(S[0],16)}, {vr(KF[0],4)}, {vr(Q[2*zz],4)}, 0")
        a(f"{MF} {vr(S[1],16)}, {vr(KF[0],4)}, {vr(Q[2*zz+1],4)}, 0")
        for z in range(2):
            for r in range(0, 16, 2):
                a(f"v_max3_f32 v{218+2*zz+z}, v{S[z]+r}, v{S[z]+r+1}, v{218+2*zz+z}")
    a("s_add_u32 s39, s39, 1")
    a("s_cmp_lt_u32 s39, 64")
    a(f"s_cbranch_scc1 L_{name}_p1")
    for z in range(4):
        a(f"v_mov_b32 v222, v{218+z}")
        a(f"v_permlane32_swap_b32 v{218+z}, v222")
        a(f"v_max_f32 v{218+z}, v{218+z}, v222")
        a(f"v_sub_f32 v{218+z}, 0, v{218+z}")
        for r in range(16): a(f"v_mov_b32 v{NM[z]+r}, v{218+z}")
    main_loop("s", True)
    a("s_barrier")
    wo_dma()
    a("s_waitcnt vmcnt(0)")
    a.label(f"L_{name}_fin")
    stamp(a, 2)
    a.nop(2)
    a(f"{MF} {vr(O[3],16)}, {vr(VF[1][1],4)}, {vr(P+4,4)}, {vr(O[3],16)}")
    SCR = 131072
    a("s_xor_b32 s28, s22, 1")
    a("s_mul_i32 s28, s28, 6144")
    a(f"s_add_u32 s28, s28, {SCR}")
    a("v_add_u32 v218, s28, v2")
    a("s_mul_i32 s28, s22, 6144")
    a(f"s_add_u32 s28, s28, {SCR}")
    a("v_add_u32 v219, s28, v2")
    a("s_lshl_b32 s29, s27, 15")
    a("s_lshl_b32 s28, s23, 10")
    a("s_add_u32 s29, s29, s28")
    a(f"s_add_u32 s29, s29, {WS_O}")
    a("s_cmp_eq_u32 s26, 0")
    a(f"s_cbranch_scc0 L_{name}_x1")
    for kh in range(2):
        if kh == 1: a.label(f"L_{name}_x1")
        a.nop(12)
        for n in range(2):
            z = 2 * (1 - kh) + n
            for g in range(3): a(f"ds_write_b128 v218, {vr(O[z]+4*g,4)} offset:{n*3072+g*1024}")
        a("s_waitcnt lgkmcnt(0)")
        a("s_barrier")
        for n in range(2):
            for g in range(3): a(f"ds_read_b128 {vr(S[0]+12*n+4*g,4)}, v219 offset:{n*3072+g*1024}")
        a("s_waitcnt lgkmcnt(0)")
        a("s_barrier")
        for n in range(2):
            z = 2 * kh + n
            for r in range(9): a(f"v_add_f32 v{O[z]+r}, v{O[z]+r}, v{S[0]+12*n+r}")
            a(f"v_rcp_f32 v220, v{O[z]+8}")
            a("s_nop 0")
            for r in range(8): a(f"v_mul_f32 v{O[z]+r}, v{O[z]+r}, v220")
            for i in range(4): a(f"v_cvt_pk_bf16_f32 v{P+4*n+i}, v{O[z]+2*i}, v{O[z]+2*i+1}")
            a(f"s_add_u32 s28, s29, {z*32768}")
            a(f"v_min_u32 v{P+4*n}, 0xfffffffe, v{P+4*n}")
            a(f"buffer_store_dwordx4 {vr(P+4*n,4)}, v2, s[16:19], s28 offen sc1")
        if kh == 0: a(f"s_branch L_{name}_x2")
    a.label(f"L_{name}_x2")
    stamp(a, 3)

class Stager:
    def __init__(s, a, vm, tag, srd_w, sglob, stride, voff, vrd, sring):
        s.a, s.vm, s.tag, s.srd, s.sglob, s.stride, s.voff, s.vrd, s.sring = a, vm, tag, srd_w, sglob, stride, voff, vrd, sring
    def issue_half(s, c, slot, hh):
        a = s.a
        a(f"s_add_u32 m0, {s.sring}, {slot*8192 + hh*4096}")
        a(f"s_add_u32 s34, {s.sglob}, {(c*64 + hh*32)*s.stride}")
        for n in range(4):
            a(f"buffer_load_dwordx4 v{s.voff+n}, {s.srd}, s34 offen offset:{n*1024} lds")
        s.vm.op((s.tag, c), 4)
    def issue(s, c, slot):
        s.issue_half(c, slot, 0); s.issue_half(c, slot, 1)
    def singles(s, c, slot):
        a = s.a; out = []
        for hh in range(2):
            for n in range(4):
                def f(hh=hh, n=n):
                    if n == 0:
                        a(f"s_add_u32 m0, {s.sring}, {slot*8192 + hh*4096}")
                        a(f"s_add_u32 s34, {s.sglob}, {(c*64 + hh*32)*s.stride}")
                    a(f"buffer_load_dwordx4 v{s.voff+n}, {s.srd}, s34 offen offset:{n*1024} lds")
                    s.vm.op((s.tag, c))
                out.append(f)
        return out
    def read_k(s, slot, areg, kk):
        for t in range(2):
            for q in range(2):
                s.a(f"ds_read_b64_tr_b16 {ar(areg+8*kk+4*t+2*q,2)}, v{s.vrd+t} offset:{slot*8192 + kk*2048 + q*1024}")
    def read(s, c, slot, areg, wait=True):
        if wait: s.vm.wait((s.tag, c))
        s.a("s_waitcnt lgkmcnt(0)")
        for kk in range(4):
            if kk == 3: s.a("s_waitcnt lgkmcnt(8)")
            s.read_k(slot, areg, kk)

S_DB, S_FB, S_CT, S_RB, S_W1G, S_W2G, S_RING = 70, 71, 72, 73, 74, 75, 80
V_W1, V_W2, V_RDL, V_RD = 4, 20, 24, 26

def k2_roles(a):
    tile_map_D(a, S_DB, S_FB)
    tile_map_CE(a, S_CT, S_RB)
    a(f"s_mul_i32 s{S_W1G}, s22, {512*3584}")
    a(f"s_lshl_b32 s69, s{S_FB}, 7")
    a(f"s_add_u32 s{S_W1G}, s{S_W1G}, s69")
    a(f"s_mul_i32 s{S_W2G}, s22, {448*4096}")
    a(f"s_lshl_b32 s69, s{S_RB}, 7")
    a(f"s_add_u32 s{S_W2G}, s{S_W2G}, s69")

def set_ring(a, expr_lines):
    for l in expr_lines: a(l)
    a(f"v_add_u32 v{V_RD}, s{S_RING}, v{V_RDL}")
    a(f"v_add_u32 v{V_RD+1}, s{S_RING}, v{V_RDL+1}")

def check_frags(a, regs, lab_retry, lab_ok):
    r = list(regs)
    a(f"v_max3_u32 v17, v{r[0]}, v{r[1]}, v{r[2]}")
    a(f"v_max3_u32 v18, v{r[3]}, v{r[4]}, v{r[5]}")
    k = 6; tg = 17
    while k < len(r):
        grp = r[k:k+2]
        if len(grp) == 2: a(f"v_max3_u32 v{tg}, v{tg}, v{grp[0]}, v{grp[1]}")
        else: a(f"v_max_u32 v{tg}, v{tg}, v{grp[0]}")
        tg = 35 - tg; k += 2
    a("v_max_u32 v17, v17, v18")
    a("v_cmp_eq_u32 vcc, -1, v17")
    a(f"s_cbranch_vccnz {lab_retry}")
    a.label(lab_ok)

def emit_retry(a, lab_retry, lab_ok, s_base_line, vprobe, reload_fn, regs):
    a.label(lab_retry)
    a(f"s_mov_b32 s37, {SPIN_MAX}")
    a(s_base_line)
    spin = lab_retry + "_spin"
    a.label(spin)
    a(f"buffer_load_dword v17, v{vprobe}, s[16:19], s38 offen sc1")
    a("s_waitcnt vmcnt(0)")
    a("v_cmp_eq_u32 vcc, -1, v17")
    a("s_sub_u32 s37, s37, 1")
    a("s_cmp_eq_u32 s37, 0")
    a(f"s_cbranch_scc1 {lab_ok}")
    a(f"s_cbranch_vccnz {spin}")
    reload_fn()
    a("s_waitcnt vmcnt(0)")
    check_frags(a, regs, spin, lab_ok + "_x")
    a(f"s_branch {lab_ok}")

def phase_C(a, vm, late):
    name = "kc"
    a(f"s_mov_b32 s23, s{S_CT}")
    a(f"s_mov_b32 s24, s{S_RB}")
    a("s_lshl_b32 s31, s24, 1")
    a("s_add_u32 s31, s31, s25")
    srd(a, 4, S_X, 2048 * 512 * 2)
    XF = 96
    a("v_and_b32 v8, 31, v1")
    a("v_lshlrev_b32 v8, 10, v8")
    a("v_lshrrev_b32 v9, 5, v1")
    a("v_lshl_add_u32 v8, v9, 4, v8")
    a("s_lshl_b32 s33, s31, 15")
    a("s_lshl_b32 s34, s23, 7")
    a("s_add_u32 s33, s33, s34")
    a("s_lshl_b32 s34, s26, 6")
    a("s_add_u32 s33, s33, s34")
    a(f"buffer_load_dwordx4 {vr(XF,4)}, v8, s[4:7], s33 offen")
    a(f"buffer_load_dwordx4 {vr(XF+4,4)}, v8, s[4:7], s33 offen offset:32")
    vm.op("x", 2)
    wtile_dma_voffs(a, V_W1, 1, 3584, 8, 9, 4)
    wtile_dma_voffs(a, V_W2, 1, 4096, 8, 9, 4)
    wtile_read_addrs(a, V_RDL, V_RDL+1, 1, 8, 9)
    set_ring(a, [f"s_lshl_b32 s{S_RING}, s26, 14", "s_lshl_b32 s69, s25, 16", f"s_add_u32 s{S_RING}, s{S_RING}, s69",
                 f"s_add_u32 s{S_RING}, s{S_RING}, 32768"])
    w1 = Stager(a, vm, "w1", "s[8:11]", f"s{S_W1G}", 3584, V_W1, V_RD, f"s{S_RING}")
    w1.issue(4, 0); w1.issue(5, 1)
    a("s_lshl_b32 s34, s26, 16")
    a(f"v_add_u32 v10, s34, v{V_RDL}")
    a(f"v_add_u32 v11, s34, v{V_RDL+1}")
    IDN = 104; IDS = 112
    ACC = [128, 144]; OF = 32
    for ks in range(16):
        if ks >= 3 and ks % 2 == 1: a("s_waitcnt lgkmcnt(6)")
        for t in range(2):
            for q in range(2):
                a(f"ds_read_b64_tr_b16 {ar(8*ks+4*t+2*q,2)}, v{10+t} offset:{ks*2048 + q*1024}")
    emit_identity(a, IDN, 1, 12, 13, True)
    emit_identity(a, IDS, 1, 12, 13, False)
    for b in ACC:
        for r in range(16): a(f"v_mov_b32 v{b+r}, 0")
    vm.wait("x")
    a("s_cmp_eq_u32 s26, 0")
    a(f"s_cbranch_scc1 L_{name}_r0")
    a(f"{MF} {vr(ACC[1],16)}, {vr(IDN,4)}, {vr(XF,4)}, {vr(ACC[1],16)}")
    a(f"{MF} {vr(ACC[1],16)}, {vr(IDN+4,4)}, {vr(XF+4,4)}, {vr(ACC[1],16)}")
    a(f"s_branch L_{name}_r1")
    a.label(f"L_{name}_r0")
    a.nop(2)
    a(f"{MF} {vr(ACC[0],16)}, {vr(IDN,4)}, {vr(XF,4)}, {vr(ACC[0],16)}")
    a(f"{MF} {vr(ACC[0],16)}, {vr(IDN+4,4)}, {vr(XF+4,4)}, {vr(ACC[0],16)}")
    a.label(f"L_{name}_r1")
    a("s_lshl_b32 s32, s31, 15")
    a("s_lshl_b32 s33, s26, 14")
    a("s_add_u32 s32, s32, s33")
    a(f"s_add_u32 s32, s32, {WS_O}")
    a("v_and_b32 v16, 15, v1")
    a("v_lshlrev_b32 v16, 10, v16")
    def oloads():
        for cc in range(4):
            a(f"s_add_u32 s33, s32, {cc*4096}")
            for k in range(4):
                a(f"buffer_load_dwordx4 {vr(OF+16*cc+4*k,4)}, v2, s[16:19], s33 offen offset:{k*1024} sc1")
    oregs = [OF + 4*k for k in range(16)]
    if OPT.get("cprobe"):
        a(f"s_mov_b32 s37, {SPIN_MAX}")
        a.label(f"L_{name}_probe")
        a("buffer_load_dword v9, v16, s[16:19], s32 offen sc1")
        a("s_waitcnt vmcnt(0)")
        a("v_cmp_eq_u32 vcc, -1, v9")
        a("s_sub_u32 s37, s37, 1")
        a("s_cmp_eq_u32 s37, 0")
        a(f"s_cbranch_scc1 L_{name}_load")
        a(f"s_cbranch_vccnz L_{name}_probe")
        a.label(f"L_{name}_load")
        vm.ops = []
        stamp(a, 4)
        oloads(); vm.op("o", 16)
        w1.read(4, 0, 128, wait=False); w1.read(5, 1, 160, wait=False)
        vm.wait("o")
        check_frags(a, oregs, f"L_{name}_retry", f"L_{name}_ok")
        late.append(lambda: emit_retry(a, f"L_{name}_retry", f"L_{name}_ok", "s_mov_b32 s38, s32", 16, oloads, oregs))
    else:
        w1.read(4, 0, 128); w1.read(5, 1, 160)
        a(f"s_mov_b32 s37, {SPIN_MAX}")
        a.label(f"L_{name}_spin")
        oloads()
        a("s_waitcnt vmcnt(0)")
        a("s_sub_u32 s37, s37, 1")
        a("s_cmp_eq_u32 s37, 0")
        a(f"s_cbranch_scc1 L_{name}_ok")
        check_frags(a, oregs, f"L_{name}_spin", f"L_{name}_ok")
        vm.ops = []
        stamp(a, 4)
    for ks in range(16):
        for t in range(2):
            a(f"{MF} {vr(ACC[t],16)}, {ar(8*ks+4*t,4)}, {vr(OF+4*ks,4)}, {vr(ACC[t],16)}")
    stamp(a, 5)
    SCR = 131072
    a("s_xor_b32 s34, s22, 1")
    a("s_lshl_b32 s34, s34, 12")
    a(f"s_add_u32 s34, s34, {SCR}")
    a("v_add_u32 v8, s34, v2")
    a("s_lshl_b32 s34, s22, 12")
    a(f"s_add_u32 s34, s34, {SCR}")
    a("v_add_u32 v9, s34, v2")
    H = VH
    a("s_cmp_eq_u32 s26, 0")
    a(f"s_cbranch_scc1 L_{name}_k0")
    for g in range(4): a(f"ds_write_b128 v8, {vr(ACC[0]+4*g,4)} offset:{g*1024}")
    for r in range(16): a(f"v_mov_b32 v{H+r}, v{ACC[1]+r}")
    a(f"s_branch L_{name}_k1")
    a.label(f"L_{name}_k0")
    a.nop(12)
    for g in range(4): a(f"ds_write_b128 v8, {vr(ACC[1]+4*g,4)} offset:{g*1024}")
    for r in range(16): a(f"v_mov_b32 v{H+r}, v{ACC[0]+r}")
    a.label(f"L_{name}_k1")
    a("s_waitcnt lgkmcnt(0)")
    a("s_barrier")
    for g in range(4): a(f"ds_read_b128 {vr(ACC[1]+4*g,4)}, v9 offset:{g*1024}")
    a("s_waitcnt lgkmcnt(0)")
    for r in range(16): a(f"v_add_f32 v{H+r}, v{H+r}, v{ACC[1]+r}")
    a(f"v_add_f32 v16, v{H}, v{H+1}")
    a(f"v_mul_f32 v17, v{H}, v{H}")
    a(f"v_add_f32 v18, v{H+2}, v{H+3}")
    a(f"v_mul_f32 v19, v{H+2}, v{H+2}")
    a(f"v_fma_f32 v17, v{H+1}, v{H+1}, v17")
    a(f"v_fma_f32 v19, v{H+3}, v{H+3}, v19")
    for r in range(4, 16, 2):
        a(f"v_add_f32 v16, v16, v{H+r}")
        a(f"v_fma_f32 v17, v{H+r}, v{H+r}, v17")
        a(f"v_add_f32 v18, v18, v{H+r+1}")
        a(f"v_fma_f32 v19, v{H+r+1}, v{H+r+1}, v19")
    a("v_add_f32 v16, v16, v18")
    a("v_add_f32 v17, v17, v19")
    a("v_mov_b32 v18, v16"); a("v_mov_b32 v19, v17")
    a("v_permlane32_swap_b32 v16, v18"); a("v_permlane32_swap_b32 v17, v19")
    a("v_add_f32 v16, v16, v18"); a("v_add_f32 v17, v17, v19")
    a("v_min_u32 v16, 0xfffffffe, v16")
    a("v_min_u32 v17, 0xfffffffe, v17")
    a("s_lshl_b32 s34, s31, 12")
    a(f"s_add_u32 s39, s34, {WS_ST}")
    a("s_lshl_b32 s35, s23, 1")
    a("s_add_u32 s35, s35, s26")
    a("s_lshl_b32 s35, s35, 8")
    a("s_add_u32 s35, s35, s39")
    a("v_and_b32 v8, 31, v1")
    a("v_lshlrev_b32 v8, 3, v8")
    a("s_mov_b32 exec_hi, 0")
    a("buffer_store_dwordx2 v[16:17], v8, s[16:19], s35 offen sc0 sc1")
    a("s_mov_b64 exec, -1")
    vm.op("st")
    if OPT.get("dbgH"):
        for i in range(8): a(f"v_cvt_pk_bf16_f32 v{48+i}, v{H+2*i}, v{H+2*i+1}")
        a("s_lshl_b32 s36, s24, 3"); a("s_add_u32 s36, s36, s23"); a("s_lshl_b32 s36, s36, 2")
        a("s_add_u32 s36, s36, s22"); a("s_lshl_b32 s36, s36, 11"); a(f"s_add_u32 s36, s36, {WS_H}")
        a(f"buffer_store_dwordx4 {vr(48,4)}, v2, s[16:19], s36 offen")
        a(f"buffer_store_dwordx4 {vr(52,4)}, v2, s[16:19], s36 offen offset:1024")
        vm.op("dbg", 2)
    w1.issue(6, 0); w1.issue(7, 1)
    a("v_lshrrev_b32 v9, 5, v1")
    a("v_lshl_add_u32 v8, v9, 11, v8")
    a(f"s_mov_b32 s37, {SPIN_MAX}")
    a.label(f"L_{name}_poll")
    for p in range(8):
        a(f"buffer_load_dwordx2 {vr(32+2*p,2)}, v8, s[16:19], s39 offen offset:{p*256} sc0 sc1")
    a("s_waitcnt vmcnt(0)")
    a("v_max_u32 v48, v32, v33")
    for p in range(1, 8):
        a(f"v_max3_u32 v48, v{32+2*p}, v{33+2*p}, v48")
    a("v_cmp_eq_u32 vcc, -1, v48")
    a("s_sub_u32 s37, s37, 1")
    a("s_cmp_eq_u32 s37, 0")
    a(f"s_cbranch_scc1 L_{name}_go")
    a(f"s_cbranch_vccnz L_{name}_poll")
    a.label(f"L_{name}_go")
    vm.ops = []
    stamp(a, 6)
    for st in (4, 2, 1):
        for p in range(st):
            a(f"v_add_f32 v{32+2*p}, v{32+2*p}, v{32+2*(p+st)}")
            a(f"v_add_f32 v{33+2*p}, v{33+2*p}, v{33+2*(p+st)}")
    a("v_mov_b32 v34, v32"); a("v_mov_b32 v35, v33")
    a("v_permlane32_swap_b32 v32, v34"); a("v_permlane32_swap_b32 v33, v35")
    a("v_add_f32 v32, v32, v34"); a("v_add_f32 v33, v33, v35")
    a(f"s_mov_b32 s30, {f2u(1.0/512):#x}")
    a("v_mul_f32 v32, s30, v32")
    a("v_mul_f32 v33, s30, v33")
    a("v_fma_f32 v33, -v32, v32, v33")
    a("v_max_f32 v33, 0, v33")
    a(f"v_add_f32 v34, {f2u(1e-5):#x}, v33")
    a("v_rsq_f32 v34, v34")
    a("s_nop 0")
    a("v_mul_f32 v35, v33, v34")
    a("v_mul_f32 v35, v35, v34")
    a(f"v_add_f32 v35, {f2u(1e-5):#x}, v35")
    a("v_rsq_f32 v35, v35")
    a("s_nop 0")
    a("v_mul_f32 v34, v34, v35")
    a("v_mul_f32 v36, v32, v34")
    a("v_sub_f32 v36, 0, v36")
    a("v_mov_b32 v35, v34")
    a("v_mov_b32 v37, v36")
    N = 160
    for r in range(0, 16, 2):
        a(f"v_pk_fma_f32 {vr(N+r,2)}, {vr(H+r,2)}, v[34:35], v[36:37]")
    for i in range(8): a(f"v_cvt_pk_bf16_f32 v{40+i}, v{N+2*i}, v{N+2*i+1}")
    T = ACC[1]
    a(f"{MF} {vr(T,16)}, {vr(40,4)}, {vr(IDS,4)}, 0")
    a(f"{MF} {vr(T,16)}, {vr(44,4)}, {vr(IDS+4,4)}, {vr(T,16)}")
    a("s_lshl_b32 s35, s23, 1")
    a("s_add_u32 s35, s35, s26")
    a("s_lshl_b32 s35, s35, 7")
    a("s_lshl_b32 s36, s31, 1")
    a("s_add_u32 s35, s35, s36")
    a("s_lshl_b32 s35, s35, 10")
    a(f"s_add_u32 s35, s35, {WS_HT}")
    for i in range(8): a(f"v_cvt_pk_bf16_f32 v{48+i}, v{T+2*i}, v{T+2*i+1}")
    a("v_min_u32 v48, 0xfffffffe, v48")
    a("v_min_u32 v52, 0xfffffffe, v52")
    a(f"buffer_store_dwordx4 {vr(48,4)}, v2, s[16:19], s35 offen sc1")
    a(f"buffer_store_dwordx4 {vr(52,4)}, v2, s[16:19], s35 offen offset:1024 sc1")
    vm.op("ht", 2)
    w1.read(6, 0, 192, wait=False)
    w1.read(7, 1, 224, wait=False)
    a("s_waitcnt lgkmcnt(0)")
    a("s_barrier")
    set_ring(a, [f"s_mul_i32 s{S_RING}, s22, 24576"])
    stamp(a, 7)

AF0 = 32; ACC0 = 160; INBOX = 98304
class ActStream:
    def __init__(s, a, vm, name, s_act, stride, late):
        s.a, s.vm, s.name, s.s_act, s.stride, s.late = a, vm, name, s_act, stride, late
        a("v_bfe_u32 v16, v1, 2, 1")
        a(f"s_mov_b32 s69, {stride}")
        a("v_mul_lo_u32 v16, v16, s69")
        a("v_and_b32 v17, 3, v1")
        a("v_lshl_add_u32 v16, v17, 10, v16")
    def loads(s, b, part=None, sr0=35):
        a = s.a; fb = AF0 + (b % 4) * 32
        if part in (None, 0):
            a(f"s_add_u32 s{sr0}, {s.s_act}, {b*4096}")
            a(f"s_add_u32 s{sr0+1}, s{sr0}, {s.stride}")
        for kk in (range(4) if part is None else [part]):
            a(f"buffer_load_dwordx4 {vr(fb+8*kk,4)}, v2, s[16:19], s{sr0} offen offset:{kk*1024} sc1")
            a(f"buffer_load_dwordx4 {vr(fb+8*kk+4,4)}, v2, s[16:19], s{sr0+1} offen offset:{kk*1024} sc1")
    def issue(s, b, part=None):
        s.loads(b, part); s.vm.op(("a", b), 8 if part is None else 2)
    def singles(s, b):
        a = s.a; fb = AF0 + (b % 4) * 32
        out = []
        for kk in range(4):
            for t in range(2):
                def f(kk=kk, t=t):
                    if kk == 0 and t == 0:
                        a(f"s_add_u32 s35, {s.s_act}, {b*4096}")
                        a(f"s_add_u32 s36, s35, {s.stride}")
                    a(f"buffer_load_dwordx4 {vr(fb+8*kk+4*t,4)}, v2, s[16:19], s{35+t} offen offset:{kk*1024} sc1")
                    s.vm.op(("a", b))
                out.append(f)
        return out
    def spin_first(s):
        a = s.a
        lab = f"L_{s.name}_first"
        a(f"s_mov_b32 s37, {SPIN_MAX}")
        a.label(lab)
        s.loads(0); s.loads(1)
        a("s_waitcnt vmcnt(8)")
        a("s_sub_u32 s37, s37, 1")
        a("s_cmp_eq_u32 s37, 0")
        a(f"s_cbranch_scc1 {lab}_ok")
        check_frags(a, [AF0 + 4*i for i in range(8)], lab + "_again", lab + "_ok")
        s.late.append(lambda: (a.label(lab + "_again"), a("s_waitcnt vmcnt(0)"), a("s_sleep 1"), a(f"s_branch {lab}")))
        s.vm.ops = [("a", 1)] * 8
    def probe_all(s, nk):
        a = s.a
        a("v_and_b32 v18, 1, v1")
        a(f"v_mul_lo_u32 v18, v18, s69")
        a("v_lshrrev_b32 v17, 1, v1")
        a(f"v_min_u32 v17, {nk-1}, v17")
        a("v_lshl_add_u32 v19, v17, 10, v18")
        lab = f"L_{s.name}_pall"
        a(f"s_mov_b32 s37, {SPIN_MAX}")
        a.label(lab)
        a(f"buffer_load_dword v17, v19, s[16:19], {s.s_act} offen sc1")
        a("s_waitcnt vmcnt(0)")
        a("v_cmp_eq_u32 vcc, -1, v17")
        a("s_sub_u32 s37, s37, 1")
        a("s_cmp_eq_u32 s37, 0")
        a(f"s_cbranch_scc1 {lab}_done")
        a(f"s_cbranch_vccnz {lab}")
        a.label(lab + "_done")
        s.vm.ops = []
    def check(s, b):
        s.vm.wait(("a", b))
        fb = AF0 + (b % 4) * 32
        regs = [fb + 4*i for i in range(8)]
        lr, lo = f"L_{s.name}_retry{b}", f"L_{s.name}_ok{b}"
        check_frags(s.a, regs, lr, lo)
        s.late.append(lambda: emit_retry(s.a, lr, lo, f"s_add_u32 s38, {s.s_act}, {b*4096}", 16, lambda: s.loads(b, None, 81), regs))

def gemm_main(a, act, nb, w_is_A, extra):
    for b in range(nb):
        cstamp(a, (30 if w_is_A else 40) + b)
        fb = AF0 + (b % 4) * 32
        q = []
        if b + 3 < nb: q += act.singles(b + 3)
        q += extra.get(b, [])
        for kk in range(4):
            for n, (t0, t1) in enumerate(((0, 0), (0, 1), (1, 0), (1, 1))):
                w = ar((4*b+kk)*8 + 4*t0, 4); x = vr(fb + 8*kk + 4*t1, 4)
                qd = t1*2 + t0 if w_is_A else t0*2 + t1
                acc = vr(ACC0 + 16*qd, 16)
                if w_is_A: a(f"{MF} {acc}, {w}, {x}, {acc}")
                else: a(f"{MF} {acc}, {x}, {w}, {acc}")
                if n in (0, 2) and q: q.pop(0)()
                if n == 3 and kk == 2 and b + 1 < nb: act.check(b + 1)
        assert not q
    cstamp(a, (30 if w_is_A else 40) + nb)

def quad_write(a):
    for qd in range(4):
        a(f"s_lshl_b32 s34, s22, 12")
        a(f"s_add_u32 s34, s34, {INBOX + qd*16384}")
        a("v_add_u32 v8, s34, v2")
        for g in range(4): a(f"ds_write_b128 v8, {vr(ACC0+16*qd+4*g,4)} offset:{g*1024}")
    a("s_lshl_b32 s34, s22, 14")
    a(f"s_add_u32 s34, s34, {INBOX}")
    a("v_add_u32 v9, s34, v2")
    a("s_waitcnt lgkmcnt(0)")
    a("s_barrier")
def quad_read(a, OUT):
    R = [OUT, 32, 48, 64]
    for src in range(4):
        if src == 3: a("s_waitcnt lgkmcnt(8)")
        for g in range(4): a(f"ds_read_b128 {vr(R[src]+4*g,4)}, v9 offset:{src*4096+g*1024}")
    a("s_waitcnt lgkmcnt(8)")
    for r in range(16): a(f"v_add_f32 v{OUT+r}, v{OUT+r}, v{R[1]+r}")
    a("s_waitcnt lgkmcnt(0)")
    for r in range(16): a(f"v_add_f32 v{R[2]+r}, v{R[2]+r}, v{R[3]+r}")
    for r in range(16): a(f"v_add_f32 v{OUT+r}, v{OUT+r}, v{R[2]+r}")

def phase_DE(a, vm, late):
    name = "kd"
    w1 = Stager(a, vm, "w1", "s[8:11]", f"s{S_W1G}", 3584, V_W1, V_RD, f"s{S_RING}")
    w2 = Stager(a, vm, "w2", "s[12:15]", f"s{S_W2G}", 4096, V_W2, V_RD, f"s{S_RING}")
    a("s_cmp_ge_u32 s2, 224")
    a(f"s_cbranch_scc1 L_{name}_skip")
    w1.issue(0, 0); w1.issue(1, 1); w1.issue(2, 2)
    a(f"s_lshl_b32 s32, s{S_DB}, 18")
    a("s_lshl_b32 s33, s22, 15")
    a("s_add_u32 s32, s32, s33")
    a(f"s_add_u32 s32, s32, {WS_HT}")
    act = ActStream(a, vm, "kd", "s32", 131072, late)
    for r in range(64): a(f"v_mov_b32 v{ACC0+r}, 0")
    stamp(a, 8)
    w1.read(0, 0, 0)
    a("s_waitcnt lgkmcnt(0)")
    w1.issue(3, 0)
    if OPT.get("probeall"):
        act.probe_all(32)
        act.issue(0); act.issue(1); act.issue(2)
        w1.read(1, 1, 32, wait=False); w1.read(2, 2, 64, wait=False); w1.read(3, 0, 96, wait=False)
        act.check(0)
    else:
        w1.read(1, 1, 32); w1.read(2, 2, 64); w1.read(3, 0, 96)
        act.spin_first()
        act.issue(2)
    a("s_waitcnt lgkmcnt(0)")
    stamp(a, 9)
    gemm_main(a, act, 8, True, {5: w2.singles(0, 0), 6: w2.singles(1, 1), 7: w2.singles(2, 2)})
    stamp(a, 10)
    U = 128
    quad_write(a)
    quad_read(a, U)
    for g in range(4):
        for i in range(2):
            r = VB1 + 2*g + i
            a(f"v_lshlrev_b32 v{184+4*g+2*i}, 16, v{r}")
            a(f"v_and_b32 v{185+4*g+2*i}, 0xffff0000, v{r}")
    for r in range(16): a(f"v_add_f32 v{U+r}, v{U+r}, v{184+r}")
    kk = -2.0 * 0.7978845608028654 * LOG2E
    a(f"s_mov_b32 s36, {f2u(kk*0.044715):#x}")
    a(f"s_mov_b32 s37, {f2u(kk):#x}")
    T = 184
    a("v_mov_b32 v16, s37")
    for r in range(16): a(f"v_mul_f32 v{T+r}, v{U+r}, v{U+r}")
    for r in range(16): a(f"v_fma_f32 v{T+r}, v{T+r}, s36, v16")
    for r in range(16): a(f"v_mul_f32 v{T+r}, v{T+r}, v{U+r}")
    for r in range(16): a(f"v_exp_f32 v{T+r}, v{T+r}")
    for r in range(16): a(f"v_add_f32 v{T+r}, 1.0, v{T+r}")
    for r in range(16): a(f"v_rcp_f32 v{T+r}, v{T+r}")
    for r in range(16): a(f"v_mul_f32 v{U+r}, v{U+r}, v{T+r}")
    for i in range(8): a(f"v_cvt_pk_bf16_f32 v{48+i}, v{U+2*i}, v{U+2*i+1}")
    a(f"s_lshl_b32 s31, s{S_DB}, 1")
    a("s_lshr_b32 s36, s22, 1")
    a("s_add_u32 s31, s31, s36")
    a("s_mul_i32 s35, s31, 112")
    a(f"s_lshl_b32 s36, s{S_FB}, 2")
    a("s_add_u32 s35, s35, s36")
    a("s_and_b32 s36, s22, 1")
    a("s_lshl_b32 s36, s36, 1")
    a("s_add_u32 s35, s35, s36")
    a("s_lshl_b32 s35, s35, 10")
    a(f"s_add_u32 s35, s35, {WS_U}")
    a("v_min_u32 v48, 0xfffffffe, v48")
    a("v_min_u32 v52, 0xfffffffe, v52")
    a(f"buffer_store_dwordx4 {vr(48,4)}, v2, s[16:19], s35 offen sc1")
    a(f"buffer_store_dwordx4 {vr(52,4)}, v2, s[16:19], s35 offen offset:1024 sc1")
    vm.op("u", 2)
    a("s_barrier")
    stamp(a, 11)
    w2.read(0, 0, 0); w2.read(1, 1, 32); w2.read(2, 2, 64)
    a("s_waitcnt lgkmcnt(0)")
    w2.issue(3, 0); w2.issue(4, 1); w2.issue(5, 2)
    a(f"s_branch L_{name}_join")
    a.label(f"L_{name}_skip")
    vm2 = VM(a)
    w2b = Stager(a, vm2, "w2", "s[12:15]", f"s{S_W2G}", 4096, V_W2, V_RD, f"s{S_RING}")
    w2b.issue(0, 0); w2b.issue(1, 1); w2b.issue(2, 2)
    w2b.read(0, 0, 0); w2b.read(1, 1, 32); w2b.read(2, 2, 64)
    a("s_waitcnt lgkmcnt(0)")
    w2b.issue(3, 0); w2b.issue(4, 1); w2b.issue(5, 2)
    a.label(f"L_{name}_join")
    name = "ke"
    a(f"s_mov_b32 s23, s{S_CT}")
    a(f"s_mov_b32 s24, s{S_RB}")
    srd(a, 4, S_OUT, 2048 * 512 * 2)
    a("s_mul_i32 s32, s23, 2*112*1024")
    a("s_mul_i32 s33, s22, 28*1024")
    a("s_add_u32 s32, s32, s33")
    a(f"s_add_u32 s32, s32, {WS_U}")
    act = ActStream(a, vm, "ke", "s32", 112*1024, late)
    for r in range(64): a(f"v_mov_b32 v{ACC0+r}, 0")
    stamp(a, 12)
    w2.read(3, 0, 96)
    a("s_waitcnt lgkmcnt(0)")
    w2.issue(6, 0)
    if OPT.get("probeall"):
        act.probe_all(28)
        act.issue(0); act.issue(1); act.issue(2)
        w2.read(4, 1, 128, wait=False); w2.read(5, 2, 160, wait=False); w2.read(6, 0, 192, wait=False)
        act.check(0)
    else:
        w2.read(4, 1, 128); w2.read(5, 2, 160); w2.read(6, 0, 192)
        act.spin_first()
        act.issue(2)
    a("s_waitcnt lgkmcnt(0)")
    stamp(a, 13)
    gemm_main(a, act, 7, False, {})
    stamp(a, 14)
    Y = 128
    quad_write(a)
    quad_read(a, Y)
    a(f"v_lshlrev_b32 v184, 16, v{VB1+8}")
    for r in range(16): a(f"v_add_f32 v{Y+r}, v{Y+r}, v{VH+r}")
    for r in range(16): a(f"v_add_f32 v{Y+r}, v{Y+r}, v184")
    for i in range(8): a(f"v_cvt_pk_bf16_f32 v{48+i}, v{Y+2*i}, v{Y+2*i+1}")
    a("v_and_b32 v8, 31, v1")
    a("v_lshlrev_b32 v8, 10, v8")
    a("v_lshrrev_b32 v9, 5, v1")
    a("v_lshl_add_u32 v8, v9, 4, v8")
    a("v_permlane32_swap_b32 v48, v50"); a("v_permlane32_swap_b32 v49, v51")
    a("v_permlane32_swap_b32 v52, v54"); a("v_permlane32_swap_b32 v53, v55")
    a("s_lshl_b32 s35, s24, 1")
    a("s_lshr_b32 s36, s22, 1")
    a("s_add_u32 s35, s35, s36")
    a("s_lshl_b32 s35, s35, 15")
    a("s_lshl_b32 s36, s23, 1")
    a("s_and_b32 s33, s22, 1")
    a("s_add_u32 s36, s36, s33")
    a("s_lshl_b32 s36, s36, 6")
    a("s_add_u32 s35, s35, s36")
    a(f"buffer_store_dwordx4 {vr(48,4)}, v8, s[4:7], s35 offen")
    a(f"buffer_store_dwordx4 {vr(52,4)}, v8, s[4:7], s35 offen offset:32")

def gen_K2():
    global VST
    VST = 239
    a = Asm(); name = "k2_kernel"
    cnt = [0]
    def uniq(p):
        cnt[0] += 1
        return f"L_{p}{cnt[0]}"
    a.uniq = uniq
    kernel_head(a, name, 256)
    a("s_load_dwordx16 s[40:55], s[0:1], 0")
    a(f"s_load_dwordx2 s[56:57], s[0:1], {KA_OUT}")
    a(f"s_load_dwordx2 s[20:21], s[0:1], {KA_WS}")
    a("v_lshrrev_b32 v2, 6, v0")
    a("v_and_b32 v1, 63, v0")
    a("v_readfirstlane_b32 s22, v2")
    a("v_lshlrev_b32 v2, 4, v1")
    a("s_waitcnt lgkmcnt(0)")
    srd(a, 16, 20, WS_SIZE)
    k2_roles(a)
    phase_B(a)
    vm = VM(a); late = []
    vm.op("ostore", 2)
    phase_C(a, vm, late)
    phase_DE(a, vm, late)
    a(f"s_branch L_{name}_fin")
    for f in late: f()
    a.label(f"L_{name}_fin")
    kernel_tail(a, name, 1)
    a.label("L_k2_code_end")
    return name, a.lines, 163840

def build(path):
    ks = [gen_K1(), gen_K2()]
    ref = open("cdna_kernels/" + NAME + ".s.ref").read().split("\n")
    hdr = [l for l in ref if l.startswith(";") and "@launch" not in l and not l.startswith("; Override") and not l.startswith("; grid=")]
    out = list(hdr)
    for name, lines, lds in ks:
        out.append(f"; @launch kernel={name} grid=(256,1,1) block=(256,1,1) lds={lds}")
    out.append('.amdgcn_target "amdgcn-amd-amdhsa--gfx950"')
    out.append(".text")
    tot = 0; body = []
    for name, lines, lds in ks:
        fixed, n = fix_hazards(lines)
        tot += n
        for p in check_backedges(fixed): print("BACKEDGE HAZARD", name, p)
        if name == "k2_kernel":
            k2size = sum(ins_sizes([l for l in fixed]))
        for l in fixed:
            body.append(l if (l.endswith(":") or l.startswith(".")) else "    " + l)
    k2size = (k2size + 63) // 64 * 64
    out.append(f".set K2_CODE_BYTES, {k2size - 128}")
    out += body
    out.append('.section .rodata,"a"')
    for name, lines, lds in ks:
        out.append(".p2align 6")
        out.append(kd(name, 512, 256) if name == "k2_kernel" else kd(name))
    open(path, "w").write("\n".join(out) + "\n")
    print("wrote", path, "nops inserted:", tot, "k2 code bytes", k2size)

if __name__ == "__main__":
    args = sys.argv[2:]
    if "stamp" in args: STAMP = True
    for o in args: OPT[o] = 1
    build(sys.argv[1] if len(sys.argv) > 1 else "cdna_kernels/" + NAME + ".s")
```

```python
import sys
sys.path.insert(0, "dev")
from asmlib import *

NAME = "sequential_preLN__mha_block__mixer_token_mlp__prompt"
WS_Q   = 0
WS_KV  = 2 << 20
WS_NRM = 6 << 20
WS_CNT = (6 << 20) + (64 << 10)
WS_O   = 7 << 20
WS_ST  = 9 << 20
WS_H   = 10 << 20
WS_HT  = 12 << 20
WS_U   = 14 << 20
WS_SIZE = 16 << 20
KA_X, KA_WQKV, KA_WO, KA_W1, KA_B1, KA_W2, KA_B2, KA_OUT, KA_DBG, KA_WS = 0, 8, 16, 32, 40, 48, 56, 64, 72, 80
ONES = 0x3F803F80
LOG2E = 1.4426950408889634
MF = "v_mfma_f32_32x32x16_bf16"
OPT = {}
STAMP = False
STAMP_OFF = 32 << 20
SPIN_MAX = 0x40000

def f2u(x):
    import struct
    return struct.unpack("<I", struct.pack("<f", x))[0]

def srd(a, s, ptr, size):
    a(f"s_mov_b32 s{s}, s{ptr}")
    a(f"s_and_b32 s{s+1}, s{ptr+1}, 0xffff")
    a(f"s_mov_b32 s{s+2}, {size}")
    a(f"s_mov_b32 s{s+3}, 0x00020000")

class VM:
    def __init__(self, a): self.a = a; self.ops = []
    def op(self, tag, n=1): self.ops += [tag] * n
    def wait(self, *tags):
        last = -1
        for i, t in enumerate(self.ops):
            if t in tags: last = i
        assert last >= 0, tags
        n = len(self.ops) - 1 - last
        self.a(f"s_waitcnt vmcnt({min(n, 63)})")
        self.ops = self.ops[last + 1:]
    def drain(self):
        self.a("s_waitcnt vmcnt(0)"); self.ops = []

VST = 239
def stamp(a, k):
    if STAMP:
        a("s_memrealtime s[90:91]")
        a("s_waitcnt lgkmcnt(0)")
        a(f"v_writelane_b32 v{VST}, s90, {k}")

def cstamp(a, k=None):
    if STAMP:
        a("s_memtime s[90:91]")
        a("s_waitcnt lgkmcnt(0)")
        if k is None:
            a("s_add_u32 s91, s39, 20"); a("s_mov_b32 s89, m0"); a("s_mov_b32 m0, s91")
            a(f"v_writelane_b32 v{VST}, s90, m0"); a("s_mov_b32 m0, s89")
        else:
            a(f"v_writelane_b32 v{VST}, s90, {k}")

def kernel_head(a, name, nwg):
    a.lines.append(f".globl {name}")
    a.lines.append(".p2align 8")
    a.lines.append(f".type {name},@function")
    a.label(name)
    a(f"s_cmp_ge_u32 s2, {nwg}")
    a(f"s_cbranch_scc1 L_{name}_end")
    if STAMP:
        a(f"v_mov_b32 v{VST}, 0")
        a("s_memtime s[92:93]")
        stamp(a, 0)
    dbg_time(a, 0 if name.startswith("k1") else 1, 0 if name.startswith("k1") else 2, True)

def kernel_tail(a, name, kidx):
    if STAMP:
        a.label(f"L_{name}_stamp")
        a("s_waitcnt vmcnt(0) lgkmcnt(0)")
        a("s_memtime s[94:95]")
        stamp(a, 62)
        a("s_sub_u32 s94, s94, s92")
        a(f"v_writelane_b32 v{VST}, s94, 63")
        a("s_cmp_lg_u32 s22, 0")
        a(f"s_cbranch_scc1 L_{name}_end")
        a("s_mov_b64 exec, -1")
        a("s_lshl_b32 s30, s2, 8")
        a(f"s_add_u32 s30, s30, {STAMP_OFF + kidx*65536}")
        a("v_and_b32 v4, 63, v0")
        a("v_lshlrev_b32 v4, 2, v4")
        a("v_add_u32 v4, s30, v4")
        a(f"global_store_dword v4, v{VST}, s[20:21]")
        a("s_waitcnt vmcnt(0)")
    if OPT.get("dbgtime"):
        a("s_waitcnt vmcnt(0)")
        dbg_time(a, kidx, 1 + 2*kidx, False)
        a("s_waitcnt vmcnt(0)")
    a.label(f"L_{name}_end")
    a("s_endpgm")

def dbg_time(a, kidx, slot, invert):
    if not OPT.get("dbgtime"): return
    lab = f"L_dbgt_{kidx}_{slot}"
    if invert:
        a("s_cmp_ge_u32 s2, 8"); a(f"s_cbranch_scc1 {lab}")
    else:
        a("s_cmp_lg_u32 s22, 0"); a(f"s_cbranch_scc1 {lab}")
    a("s_load_dwordx2 s[96:97], s[0:1], 72")
    a("s_memrealtime s[90:91]")
    a("s_waitcnt lgkmcnt(0)")
    if kidx:
        a(f"s_sub_u32 s96, s96, {512*kidx}"); a("s_subb_u32 s97, s97, 0")
    if invert: a("s_not_b32 s90, s90")
    a("v_mov_b32 v46, s90")
    a(f"v_mov_b32 v45, {slot*4}")
    a("s_mov_b64 exec, 1")
    a("global_atomic_umax v45, v46, s[96:97]")
    a("s_mov_b64 exec, -1")
    a.label(lab)

def kd(name, nv=256, acc=256, ns=100):
    return f""".amdhsa_kernel {name}
  .amdhsa_next_free_vgpr {nv}
  .amdhsa_next_free_sgpr {ns}
  .amdhsa_accum_offset {acc}
  .amdhsa_group_segment_fixed_size 0
  .amdhsa_kernarg_size 88
  .amdhsa_user_sgpr_count 2
  .amdhsa_user_sgpr_kernarg_segment_ptr 1
  .amdhsa_system_sgpr_workgroup_id_x 1
.end_amdhsa_kernel
"""

def emit_identity(a, base, vl, t0, t1, natural):
    a(f"v_mov_b32 v{t1+1}, 0x3f80")
    a(f"v_mov_b32 v{t1+2}, 0x3f800000")
    a(f"v_and_b32 v{t0}, 31, v{vl}")
    a(f"v_lshrrev_b32 v{t1}, 5, v{vl}")
    a(f"v_lshlrev_b32 v{t1}, {3 if natural else 2}, v{t1}")
    a(f"v_sub_u32 v{t0}, v{t0}, v{t1}")
    for q in range(2):
        for i in range(4):
            c = 16 * q + ((2 * i) if natural else (0, 2, 8, 10)[i])
            r = base + 4 * q + i
            a(f"v_cmp_eq_u32 vcc, {c}, v{t0}")
            a(f"v_cmp_eq_u32 s[58:59], {c+1}, v{t0}")
            a(f"v_cndmask_b32 v{r}, 0, v{t1+1}, vcc")
            a(f"v_cndmask_b32 v{r}, v{r}, v{t1+2}, s[58:59]")

def swap_add(a, v, t):
    a(f"v_mov_b32 v{t}, v{v}")
    a(f"v_permlane32_swap_b32 v{v}, v{t}")
    a(f"v_add_f32 v{v}, v{v}, v{t}")

def tile_map_CE(a, sct, srb):
    a(f"s_and_b32 s{sct}, s2, 1")
    a(f"s_lshl_b32 s{sct}, s{sct}, 2")
    a("s_lshr_b32 s68, s2, 3")
    a("s_and_b32 s69, s68, 3")
    a(f"s_add_u32 s{sct}, s{sct}, s69")
    a(f"s_bfe_u32 s{srb}, s2, 0x20001")
    a(f"s_lshl_b32 s{srb}, s{srb}, 3")
    a("s_lshr_b32 s69, s68, 2")
    if not OPT.get("noswap"):
        a("s_and_b32 s68, s69, 3")
        a("s_cmp_eq_u32 s68, 3")
        a("s_cselect_b32 s68, 4, 0")
        a("s_xor_b32 s69, s69, s68")
    a(f"s_add_u32 s{srb}, s{srb}, s69")

def tile_map_D(a, sdb, sfb):
    a(f"s_and_b32 s{sdb}, s2, 1")
    a(f"s_lshl_b32 s{sdb}, s{sdb}, 2")
    a("s_lshr_b32 s68, s2, 3")
    a("s_and_b32 s69, s68, 3")
    a(f"s_add_u32 s{sdb}, s{sdb}, s69")
    a(f"s_bfe_u32 s{sfb}, s2, 0x20001")
    a(f"s_mul_i32 s{sfb}, s{sfb}, 7")
    a("s_lshr_b32 s69, s68, 2")
    a(f"s_add_u32 s{sfb}, s{sfb}, s69")

def wtile_dma_voffs(a, base, vl, stride, t0, t1, n_regs=4):
    a(f"v_lshrrev_b32 v{t0}, 3, v{vl}")
    a(f"s_mov_b32 s69, {stride}")
    a(f"v_mul_lo_u32 v{t0}, v{t0}, s69")
    a(f"v_bfe_u32 v{t1}, v{vl}, 4, 1")
    a(f"v_lshlrev_b32 v{t1}, 2, v{t1}")
    a(f"v_and_b32 v{base}, 7, v{vl}")
    a(f"v_xor_b32 v{t1}, v{t1}, v{base}")
    a(f"v_lshl_add_u32 v{base}, v{t1}, 4, v{t0}")
    for n in range(1, n_regs):
        a(f"v_add_u32 v{base+n}, {n*8*stride - n*1024}, v{base}")

def wtile_read_addrs(a, r0, r1, vl, t0, t1):
    a(f"v_lshrrev_b32 v{t0}, 5, v{vl}")
    a(f"v_lshlrev_b32 v{t0}, 2, v{t0}")
    a(f"v_bfe_u32 v{t1}, v{vl}, 2, 2")
    a(f"v_add_u32 v{t0}, v{t0}, v{t1}")
    a(f"v_lshlrev_b32 v{t0}, 7, v{t0}")
    a(f"v_bfe_u32 v{t1}, v{vl}, 4, 1")
    a(f"v_lshlrev_b32 v{t1}, 1, v{t1}")
    a(f"v_bfe_u32 v{r1}, v{vl}, 1, 1")
    a(f"v_add_u32 v{t1}, v{t1}, v{r1}")
    a(f"v_bfe_u32 v{r1}, v{vl}, 3, 1")
    a(f"v_lshlrev_b32 v{r1}, 2, v{r1}")
    a(f"v_xor_b32 v{t1}, v{t1}, v{r1}")
    a(f"v_lshl_add_u32 v{t0}, v{t1}, 4, v{t0}")
    a(f"v_and_b32 v{t1}, 1, v{vl}")
    a(f"v_lshl_add_u32 v{r0}, v{t1}, 3, v{t0}")
    a(f"v_xor_b32 v{r1}, 64, v{r0}")

def gen_K1():
    global VST
    VST = 47
    a = Asm(); name = "k1_kernel"
    kernel_head(a, name, 256)
    a(f"s_load_dwordx4 s[4:7], s[0:1], {KA_X}")
    a(f"s_load_dwordx2 s[20:21], s[0:1], {KA_WS}")
    a("v_lshrrev_b32 v2, 6, v0")
    a("v_and_b32 v1, 63, v0")
    a("v_readfirstlane_b32 s22, v2")
    a("s_getpc_b64 s[32:33]")
    a.label("L_k1_pc")
    a("v_lshlrev_b32 v3, 6, v0")
    a("global_load_dword v8, v3, s[32:33]")
    a("s_add_u32 s34, s32, k2_kernel-L_k1_pc")
    a("s_addc_u32 s35, s33, 0")
    a("s_lshr_b32 s36, s2, 3")
    a("s_lshl_b32 s36, s36, 11")
    a("v_and_b32 v3, 31, v0")
    a("v_lshlrev_b32 v3, 6, v3")
    a("v_add_u32 v3, s36, v3")
    a("v_min_u32 v3, K2_CODE_BYTES, v3")
    a("global_load_dword v9, v3, s[34:35]")
    a("s_and_b32 s23, s2, 3")
    a("s_lshl_b32 s23, s23, 2")
    a("s_lshr_b32 s29, s2, 3")
    a("s_and_b32 s30, s29, 3")
    a("s_add_u32 s23, s23, s30")
    a("s_bfe_u32 s24, s2, 0x10002")
    a("s_lshl_b32 s24, s24, 3")
    a("s_lshr_b32 s30, s29, 2")
    a("s_add_u32 s24, s24, s30")
    a("s_lshl_b32 s25, s23, 17")
    a("s_lshl_b32 s30, s22, 15")
    a("s_add_u32 s25, s25, s30")
    JO = 0 if OPT.get("nojoff") else 5
    a(f"s_add_u32 s38, s24, {JO}"); a("s_and_b32 s38, s38, 15")
    a(f"s_add_u32 s39, s24, {2*JO}"); a("s_and_b32 s39, s39, 15")
    a("s_mul_i32 s30, s22, 49152")
    for t, sj in enumerate((24, 38, 39)):
        a(f"s_lshl_b32 s{70+t}, s{sj}, 6")
        a(f"s_add_u32 s{70+t}, s{70+t}, s30")
    SLOT = 28672; L0 = 1024
    a("s_lshl_b32 s27, s22, 12")
    a(f"s_add_u32 s27, s27, {L0}")
    a("s_lshl_b32 s28, s22, 10")
    a(f"s_add_u32 s28, s28, {L0 + 16384}")
    a("v_lshrrev_b32 v8, 3, v1") if False else None
    a("v_lshrrev_b32 v10, 3, v1")
    a("v_lshlrev_b32 v10, 10, v10")
    a("v_lshrrev_b32 v11, 4, v1")
    a("v_and_b32 v12, 7, v1")
    a("v_xor_b32 v11, v11, v12")
    for n in range(4):
        a(f"v_xor_b32 v12, {4*(n&1)}, v11")
        a(f"v_lshl_add_u32 v12, v12, 4, v10")
        a(f"v_add_u32 v{2+n}, {n*8192 - n*1024}, v12")
    a("v_lshrrev_b32 v10, 2, v1")
    a("s_movk_i32 s30, 3072")
    a("v_mul_lo_u32 v10, v10, s30")
    a("v_and_b32 v11, 3, v1")
    a("v_lshl_add_u32 v6, v11, 4, v10")
    a("s_waitcnt lgkmcnt(0)")
    srd(a, 8, 4, 2048 * 512 * 2)
    srd(a, 12, 6, 512 * 1536 * 2)
    srd(a, 16, 20, WS_SIZE)
    vm = VM(a); vm.op("code", 2)
    KORD = [0, 1, 2, 3, 4, 5, 6, 7] if OPT.get('nokord') else [0, 1, 2, 4, 5, 6, 7, 3]
    def dma_stage(s):
        for f in dma_singles(s): f()
    def dma_singles(s):
        slot = s % 5; out = []; kb = KORD[s]
        for n in range(4):
            def f(n=n):
                if n == 0:
                    a(f"s_add_u32 m0, s27, {slot*SLOT - kb*128}")
                    a("s_nop 0")
                a(f"buffer_load_dwordx4 v{2+n}, s[8:11], s25 offen offset:{kb*128 + n*1024} lds")
                vm.op(("st", s))
            out.append(f)
        for t in range(3):
            def f(t=t):
                a(f"s_add_u32 m0, s28, {slot*SLOT + t*4096 - t*1024}")
                a(f"s_add_u32 s29, s{70+t}, {kb*196608}")
                a(f"buffer_load_dwordx4 v6, s[12:15], s29 offen offset:{t*1024} lds")
                vm.op(("st", s))
            out.append(f)
        return out
    FILLF = 'sc1' if OPT.get('fillsc1') else ('' if OPT.get('fillplain') else 'nt')
    def fill_setup():
        for r in range(20, 24): a(f"v_mov_b32 v{r}, -1")
        a("v_lshlrev_b32 v24, 4, v1")
        a("v_lshlrev_b32 v25, 2, v1")
        a("s_lshl_b32 s36, s2, 13")
        a("s_lshl_b32 s33, s22, 11")
        a("s_add_u32 s36, s36, s33")
        a("s_lshl_b32 s37, s2, 10")
        a("s_lshl_b32 s33, s22, 8")
        a("s_add_u32 s37, s37, s33")
        a(f"s_add_u32 s37, s37, {WS_ST}")
    def fill(n):
        if n < 6:
            a(f"s_add_u32 s33, s36, {(WS_O, WS_HT, WS_U)[n >> 1]}")
            a(f"buffer_store_dwordx4 v[20:23], v24, s[16:19], s33 offen offset:{(n & 1)*1024} {FILLF}")
        else:
            a(f"buffer_store_dword v20, v25, s[16:19], s37 offen {FILLF}")
        vm.op("fill")
    for s in range(3): dma_stage(s)
    stamp(a, 1)
    a("v_and_b32 v10, 31, v1")
    a("v_lshrrev_b32 v11, 5, v1")
    a("v_bfe_u32 v16, v1, 1, 3")
    a("v_lshlrev_b32 v10, 7, v10")
    a("v_add_u32 v10, s27, v10")
    for ks in range(4):
        a(f"v_add_u32 v17, {2*ks}, v11")
        a("v_xor_b32 v17, v17, v16")
        a(f"v_lshl_add_u32 v{12+ks}, v17, 4, v10")
    a("v_bfe_u32 v10, v1, 2, 2")
    a("v_lshl_add_u32 v10, v11, 3, v10")
    a("v_lshlrev_b32 v10, 6, v10")
    a("v_bfe_u32 v16, v1, 4, 1")
    a("v_lshl_add_u32 v10, v16, 5, v10")
    a("v_and_b32 v16, 3, v1")
    a("v_lshl_add_u32 v10, v16, 3, v10")
    a(f"v_add_u32 v7, {L0 + 16384}, v10")
    a("s_lshl_b32 s30, s22, 10")
    a("v_add_u32 v11, s30, v7")
    FB = [128, 192]; CF = 48
    SUM = [60, 61]; SQ = [62, 63]; CS = [64, 65, 66, 67, 68, 69]
    ACC = [80, 96, 112]
    for r in SUM + SQ + CS: a(f"v_mov_b32 v{r}, 0")
    for b in ACC:
        for r in range(16): a(f"v_mov_b32 v{b+r}, 0")
    a(f"s_mov_b32 s31, {ONES:#x}")
    def rdx(ks, buf): a(f"ds_read_b128 {vr(FB[buf]+16*ks,4)}, v{12+ks}")
    def rdw(ks, buf, t):
        for q in range(2):
            a(f"ds_read_b64_tr_b16 {vr(FB[buf]+16*ks+4+4*t+2*q,2)}, v7 offset:{t*4096 + ks*1024 + q*256}")
    def creads():
        for t in range(3):
            for q in range(2):
                a(f"ds_read_b64_tr_b16 {vr(CF+4*t+2*q,2)}, v11 offset:{t*4096 + q*256}")
    def advance(s):
        d = ((s + 1) % 5 - s % 5) * SLOT
        for r in (12, 13, 14, 15, 7, 11):
            if d >= 0: a(f"v_add_u32 v{r}, {d}, v{r}")
            else: a(f"v_subrev_u32 v{r}, {-d}, v{r}")
    dma_stage(3)
    vm.wait(("st", 0))
    a("s_barrier")
    stamp(a, 2)
    for ks in range(4):
        if ks >= 2: a("s_waitcnt lgkmcnt(8)")
        rdx(ks, 0)
        for t in range(3): rdw(ks, 0, t)
    a("s_waitcnt lgkmcnt(9)")
    creads()
    dma_stage(4)
    for s_ in range(8):
        buf = s_ & 1; nb = buf ^ 1
        more = s_ < 7
        cstamp(a, 8 + 2*s_)
        a("s_waitcnt lgkmcnt(0)")
        if more:
            vm.wait(("st", s_ + 1))
            if not OPT.get("k1nobar"): a("s_barrier")
            cstamp(a, 9 + 2*s_)
            advance(s_)
        vq = dma_singles(s_ + 5) if s_ + 5 <= 7 else []
        if s_ == 2: fill_setup()
        if s_ == 3: vq = [lambda n=n: fill(n) for n in range(4)]
        if s_ == 4: vq = [lambda n=n: fill(n) for n in range(4, 7)]
        def pop():
            if vq: vq.pop(0)()
        for ks in range(4):
            x = FB[buf] + 16*ks
            mf = lambda t: a(f"{MF} {vr(ACC[t],16)}, {vr(x+4+4*t,4)}, {vr(x,4)}, {vr(ACC[t],16)}")
            mf(0)
            if more and not OPT.get("k1nord"):
                if ks >= 2: a("s_waitcnt lgkmcnt(8)")
                rdx(ks, nb); rdw(ks, nb, 0)
            mf(1)
            if more and not OPT.get("k1nord"): rdw(ks, nb, 1); rdw(ks, nb, 2)
            mf(2)
            pop()
            if ks == 0:
                for t in range(3 if not OPT.get("k1nocs") else 0):
                    for i in range(4):
                        a(f"v_dot2c_f32_bf16 v{CS[2*t+(i&1)]}, s31, v{CF+4*t+i}")
            for i in range(4 if not OPT.get("k1nodot") else 0):
                a(f"v_dot2c_f32_bf16 v{SUM[i&1]}, s31, v{x+i}")
                a(f"v_dot2c_f32_bf16 v{SQ[i&1]}, v{x+i}, v{x+i}")
                if i == 1: pop()
            if ks == 3 and more and not OPT.get("k1nocs"):
                a("s_waitcnt lgkmcnt(9)")
                creads()
        assert not vq
    stamp(a, 3)
    SCR = L0 + 5 * SLOT
    for t in range(3): a(f"v_add_f32 v{64+t*2}, v{64+t*2}, v{65+t*2}")
    for t in range(3): swap_add(a, 64 + 2*t, 72 + t)
    a("v_and_b32 v8, 31, v1")
    a("v_lshlrev_b32 v8, 2, v8")
    a("s_mul_i32 s30, s22, 384")
    a(f"s_add_u32 s30, s30, {SCR}")
    a("v_add_u32 v9, s30, v8")
    for t in range(3): a(f"ds_write_b32 v9, v{64+2*t} offset:{t*128}")
    a(f"v_add_f32 v60, v60, v61")
    a(f"v_add_f32 v62, v62, v63")
    swap_add(a, 60, 70); swap_add(a, 62, 71)
    a("s_waitcnt lgkmcnt(0)")
    a("s_barrier")
    a("v_lshlrev_b32 v10, 2, v1")
    a(f"v_add_u32 v10, {SCR}, v10")
    for w in range(4): a(f"ds_read_b32 v{64+w}, v10 offset:{w*384}")
    a(f"v_add_u32 v9, {SCR + 256}, v8")
    for w in range(4): a(f"ds_read_b32 v{68+w}, v9 offset:{w*384}")
    a(f"s_mov_b32 s30, {f2u(1.0/512):#x}")
    a("v_mul_f32 v60, s30, v60")
    a("v_mul_f32 v62, s30, v62")
    a("v_fma_f32 v62, -v60, v60, v62")
    a("v_max_f32 v62, 0, v62")
    a(f"v_add_f32 v62, {f2u(1e-5):#x}, v62")
    a("v_rsq_f32 v62, v62")
    a("v_sub_f32 v60, 0, v60")
    a("v_mov_b32 v61, v60")
    a("v_mov_b32 v63, v62")
    a(f"v_mul_f32 v74, {f2u(0.25*LOG2E):#x}, v62")
    a("v_mov_b32 v75, v74")
    a("s_waitcnt lgkmcnt(0)")
    a("v_add_f32 v64, v64, v65"); a("v_add_f32 v66, v66, v67"); a("v_add_f32 v68, v68, v69"); a("v_add_f32 v70, v70, v71")
    a("v_add_f32 v64, v64, v66"); a("v_add_f32 v68, v68, v70")
    a("s_lshl_b32 s30, s22, 9")
    a(f"s_add_u32 s30, s30, {SCR + 2048}")
    a("v_lshlrev_b32 v10, 2, v1")
    a("v_add_u32 v10, s30, v10")
    a("ds_write_b32 v10, v64")
    a("v_add_u32 v9, s30, v8")
    a("ds_write_b32 v9, v68 offset:256")
    a("v_lshrrev_b32 v9, 5, v1")
    a("v_lshlrev_b32 v9, 4, v9")
    a("v_add_u32 v9, s30, v9")
    a("s_waitcnt lgkmcnt(0)")
    CSR = 128
    for t in (2, 0, 1):
        for g in range(4):
            a(f"ds_read_b128 {vr(CSR+16*t+4*g,4)}, v9 offset:{t*128 + g*32}")
    IDS = 176
    emit_identity(a, IDS, 1, 76, 77, False)
    PK = 184
    QF = 'sc1' if OPT.get('qsc1') else ('nt' if OPT.get('qnt') else '')
    for n, t in enumerate((2, 0, 1)):
        a(f"s_waitcnt lgkmcnt({8 - 4*n})")
        for r in range(0, 16, 2):
            a(f"v_pk_fma_f32 {vr(ACC[t]+r,2)}, {vr(CSR+16*t+r,2)}, v[60:61], {vr(ACC[t]+r,2)}")
        sc = "v[74:75]" if t == 0 else "v[62:63]"
        for r in range(0, 16, 2):
            a(f"v_pk_mul_f32 {vr(ACC[t]+r,2)}, {vr(ACC[t]+r,2)}, {sc}")
        for i in range(8):
            a(f"v_cvt_pk_bf16_f32 v{PK+8*t+i}, v{ACC[t]+2*i}, v{ACC[t]+2*i+1}")
        if t == 2:
            a(f"{MF} {vr(208,16)}, {vr(PK+16,4)}, {vr(IDS,4)}, 0")
            a(f"{MF} {vr(208,16)}, {vr(PK+20,4)}, {vr(IDS+4,4)}, {vr(208,16)}")
        else:
            if t == 0:
                a("s_lshl_b32 s29, s23, 2")
                a("s_add_u32 s29, s29, s22")
                a("s_lshl_b32 s30, s24, 7")
                a("s_add_u32 s30, s30, s29")
                a("v_lshlrev_b32 v8, 4, v1")
                a("s_lshl_b32 s32, s30, 10")
                a(f"s_add_u32 s32, s32, {WS_Q}")
                a("s_add_u32 s33, s32, 65536")
                a(f"buffer_store_dwordx4 {vr(PK,4)}, v8, s[16:19], s32 offen {QF}")
                a(f"buffer_store_dwordx4 {vr(PK+4,4)}, v8, s[16:19], s33 offen {QF}")
            else:
                a("s_lshl_b32 s30, s38, 7")
                a("s_add_u32 s30, s30, s29")
                a("s_lshl_b32 s32, s30, 11")
                a(f"s_add_u32 s32, s32, {WS_KV}")
                a("s_add_u32 s33, s32, 131072")
                a(f"buffer_store_dwordx4 {vr(PK+8,4)}, v8, s[16:19], s32 offen {QF}")
                a(f"buffer_store_dwordx4 {vr(PK+12,4)}, v8, s[16:19], s33 offen {QF}")
    for i in range(8):
        a(f"v_cvt_pk_bf16_f32 v{PK+16+i}, v{208+2*i}, v{208+2*i+1}")
    a("v_bfe_u32 v9, v1, 4, 1")
    a("v_lshlrev_b32 v9, 17, v9")
    a("v_lshrrev_b32 v10, 5, v1")
    a("v_lshl_add_u32 v9, v10, 8, v9")
    a("v_and_b32 v10, 15, v1")
    a("v_lshl_add_u32 v9, v10, 4, v9")
    a("s_lshl_b32 s30, s39, 7")
    a("s_add_u32 s30, s30, s29")
    a("s_lshl_b32 s32, s30, 11")
    a(f"s_add_u32 s32, s32, {WS_KV}")
    a(f"buffer_store_dwordx4 {vr(PK+16,4)}, v9, s[16:19], s32 offen offset:1024 {QF}")
    a(f"buffer_store_dwordx4 {vr(PK+20,4)}, v9, s[16:19], s32 offen offset:1536 {QF}")
    stamp(a, 4)
    for t in range(2):
        for hd in range(2):
            r = 64 + 2*t + hd; b = ACC[t] + 8*hd
            a(f"v_mul_f32 v{r}, v{b}, v{b}")
    for i in range(1, 8):
        for t in range(2):
            for hd in range(2):
                r = 64 + 2*t + hd; b = ACC[t] + 8*hd
                a(f"v_fma_f32 v{r}, v{b+i}, v{b+i}, v{r}")
    for k in range(4): a(f"v_mov_b32 v{70+k}, v{64+k}")
    for k in range(4): a(f"v_permlane32_swap_b32 v{64+k}, v{70+k}")
    for k in range(4): a(f"v_add_f32 v{64+k}, v{64+k}, v{70+k}")
    for sh in (1, 2, 4, 8):
        for k in range(4):
            a(f"v_max_u32_dpp v{64+k}, v{64+k}, v{64+k} row_ror:{sh} row_mask:0xf bank_mask:0xf")
    a("s_lshl_b32 s32, s23, 3")
    a("s_lshl_b32 s33, s22, 1")
    a("s_add_u32 s32, s32, s33")
    a("s_lshl_b32 s33, s38, 8")
    a("s_add_u32 s33, s33, s32")
    a("s_lshl_b32 s33, s33, 2")
    a(f"s_add_u32 s33, s33, {WS_NRM + 16384}")
    a("s_lshl_b32 s30, s24, 8")
    a("s_add_u32 s32, s32, s30")
    a("s_lshl_b32 s32, s32, 2")
    a(f"s_add_u32 s32, s32, {WS_NRM}")
    a("v_lshrrev_b32 v10, 4, v1")
    a("v_lshlrev_b32 v10, 2, v10")
    a("s_mov_b32 exec_lo, 0x00010001")
    a("s_mov_b32 exec_hi, 0")
    for hd in range(2):
        a(f"buffer_store_dword v{64+hd}, v10, s[16:19], s32 offen offset:{hd*512}")
        a(f"buffer_store_dword v{66+hd}, v10, s[16:19], s33 offen offset:{hd*512}")
    a("s_mov_b64 exec, -1")
    kernel_tail(a, name, 0)
    return name, a.lines, 1024 + 5*SLOT + 4096

VH = 240
VB1 = 224
S_X, S_WO, S_W1, S_B1, S_W2, S_B2, S_OUT = 40, 44, 48, 50, 52, 54, 56

def arrive(a, s_off, tmpv=8):
    a("s_waitcnt vmcnt(0)")
    a("s_barrier")
    lab = a.uniq("arr")
    a("s_cmp_lg_u32 s22, 0")
    a(f"s_cbranch_scc1 {lab}")
    a(f"v_mov_b32 v{tmpv}, 0")
    a(f"v_mov_b32 v{tmpv+1}, 1")
    a("s_mov_b64 exec, 1")
    a(f"buffer_atomic_add v{tmpv+1}, v{tmpv}, s[16:19], {s_off} offen sc1")
    a("s_mov_b64 exec, -1")
    a.label(lab)

def await_cnt(a, s_off, n, tmpv=8):
    lab = a.uniq("pw"); done = a.uniq("pd")
    a("s_cmp_lg_u32 s22, 0")
    a(f"s_cbranch_scc1 {done}")
    a(f"v_mov_b32 v{tmpv}, 0")
    a(f"s_mov_b32 s37, {SPIN_MAX}")
    a.label(lab)
    a(f"buffer_load_dword v{tmpv+1}, v{tmpv}, s[16:19], {s_off} offen sc1")
    a("s_waitcnt vmcnt(0)")
    a(f"v_readfirstlane_b32 s38, v{tmpv+1}")
    a("s_sub_u32 s37, s37, 1")
    a("s_cmp_eq_u32 s37, 0")
    a(f"s_cbranch_scc1 {done}")
    a(f"s_cmp_lt_u32 s38, {n}")
    a(f"s_cbranch_scc1 {lab}")
    a.label(done)
    a("s_barrier")

def phase_B(a):
    name = "kb"
    a("s_and_b32 s23, s2, 31")
    a("s_lshr_b32 s24, s2, 5")
    a("s_lshr_b32 s25, s22, 1")
    a("s_and_b32 s26, s22, 1")
    Q = [4, 8, 12, 16]; KF = [20, 24]; VF = [[28, 32], [36, 40]]; S = [44, 60]; P = 76
    O = [84, 100, 116, 132]; NM = [148, 164, 180, 196]
    VK, VV, VPF1, VPF2, VDUM = 212, 213, 214, 215, 216
    a("s_lshl_b32 s28, s23, 9")
    a(f"s_add_u32 s28, s28, {WS_NRM}")
    a("v_lshlrev_b32 v3, 3, v1")
    a("s_add_u32 s29, s28, 16384")
    a("buffer_load_dwordx2 v[218:219], v3, s[16:19], s28 offen")
    a("buffer_load_dwordx2 v[220:221], v3, s[16:19], s29 offen")
    a("s_lshl_b32 s27, s24, 3")
    a("s_lshl_b32 s28, s25, 2")
    a("s_add_u32 s27, s27, s28")
    a("s_lshl_b32 s28, s27, 10")
    a("s_lshl_b32 s29, s23, 16")
    a("s_add_u32 s28, s28, s29")
    a(f"s_add_u32 s28, s28, {WS_Q}")
    for z in range(4):
        a(f"buffer_load_dwordx4 {vr(Q[z],4)}, v2, s[16:19], s28 offen offset:{z*1024}")
    a("s_lshl_b32 s31, s26, 16")
    a("s_lshl_b32 s28, s25, 13")
    a("s_add_u32 s31, s31, s28")
    a("s_lshl_b32 s30, s23, 17")
    a("s_add_u32 s30, s30, s31")
    a(f"s_add_u32 s30, s30, {WS_KV}")
    def dma_chunk():
        a("s_mov_b32 m0, s31")
        a("s_add_u32 s32, s30, 4096")
        for k in range(4): a(f"buffer_load_dwordx4 v2, s[16:19], s30 offen offset:{k*1024} lds")
        a("s_add_u32 m0, s31, 4096")
        a("s_add_u32 s30, s30, 16384")
        for k in range(4): a(f"buffer_load_dwordx4 v2, s[16:19], s32 offen offset:{k*1024} lds")
        a("s_add_u32 s31, s31, 16384")
    dma_chunk()
    tile_map_D(a, 33, 34)
    srd(a, 8, S_B1, 1792 * 2)
    a("v_lshrrev_b32 v3, 5, v1")
    a("v_lshlrev_b32 v3, 3, v3")
    a("s_lshl_b32 s35, s34, 7")
    a("s_lshl_b32 s36, s26, 6")
    a("s_add_u32 s35, s35, s36")
    for g in range(4):
        a(f"buffer_load_dwordx2 {vr(VB1+2*g,2)}, v3, s[8:11], s35 offen offset:{g*16}")
    tile_map_CE(a, 35, 36)
    srd(a, 12, S_B2, 2048 * 2)
    a("v_and_b32 v3, 31, v1")
    a("v_lshlrev_b32 v3, 1, v3")
    a("s_lshl_b32 s37, s36, 7")
    a("s_lshl_b32 s38, s25, 6")
    a("s_add_u32 s37, s37, s38")
    a(f"buffer_load_ushort v{VB1+8}, v3, s[12:15], s37 offen")
    a("s_lshl_b32 s37, s22, 8")
    a("v_add_u32 v3, s37, v1")
    a("v_lshrrev_b32 v217, 1, v3")
    a("v_and_b32 v3, 1, v3")
    a("v_lshlrev_b32 v3, 6, v3")
    a("s_and_b32 s37, s33, 3")
    a("s_lshl_b32 s37, s37, 9")
    a(f"v_add_u32 v{VPF1}, s37, v217")
    a("s_movk_i32 s38, 3584")
    a(f"v_mul_lo_u32 v{VPF1}, v{VPF1}, s38")
    a("s_lshl_b32 s37, s34, 7")
    a(f"v_add3_u32 v{VPF1}, v{VPF1}, s37, v3")
    a("s_and_b32 s37, s35, 3")
    a("s_mul_i32 s37, s37, 448")
    a(f"v_add_u32 v{VPF2}, s37, v217")
    a(f"v_lshlrev_b32 v{VPF2}, 12, v{VPF2}")
    a("s_lshl_b32 s37, s36, 7")
    a(f"v_add3_u32 v{VPF2}, v{VPF2}, s37, v3")
    srd(a, 8, S_W1, 2048 * 1792 * 2)
    srd(a, 12, S_W2, 1792 * 2048 * 2)
    srd(a, 4, S_WO, 512 * 512 * 2)
    VPF3 = 217
    a("s_lshl_b32 s37, s26, 8")
    a("s_lshl_b32 s38, s25, 5")
    a("s_add_u32 s37, s37, s38")
    a("v_lshrrev_b32 v3, 5, v1")
    a("v_lshlrev_b32 v3, 6, v3")
    a(f"v_and_b32 v{VPF3}, 31, v1")
    a(f"v_add3_u32 v{VPF3}, v{VPF3}, v3, s37")
    a(f"v_lshlrev_b32 v{VPF3}, 10, v{VPF3}")
    a("s_lshl_b32 s37, s35, 7")
    a(f"v_add_u32 v{VPF3}, s37, v{VPF3}")
    for r in range(28, 44): a(f"v_mov_b32 v{r}, {ONES:#x}")
    a("v_and_b32 v3, 31, v1")
    a("v_cmp_eq_u32 vcc, 16, v3")
    a("v_cmp_eq_u32 s[58:59], 20, v3")
    a("s_or_b64 vcc, vcc, s[58:59]")
    for r in range(28, 44): a(f"v_cndmask_b32 v{r}, 0, v{r}, vcc")
    for r in range(P, P + 8): a(f"v_mov_b32 v{r}, 0")
    for z in range(4):
        for r in range(16): a(f"v_mov_b32 v{O[z]+r}, 0")
    a("s_lshl_b32 s28, s26, 16")
    a(f"v_add_u32 v{VK}, s28, v2")
    a(f"v_lshrrev_b32 v{VV}, 5, v1")
    a(f"v_lshlrev_b32 v{VV}, 8, v{VV}")
    a("v_and_b32 v3, 15, v1")
    a(f"v_lshl_add_u32 v{VV}, v3, 4, v{VV}")
    a("s_add_u32 s28, s28, 1024")
    a(f"v_add_u32 v{VV}, s28, v{VV}")
    a("s_mov_b32 s58, 0x0000ffff"); a("s_mov_b32 s59, 0x0000ffff")
    a("s_waitcnt vmcnt(17)")
    a("v_max_u32 v218, v218, v219")
    a("v_max_u32 v220, v220, v221")
    for sh in (1, 2, 4, 8):
        a(f"v_max_u32_dpp v218, v218, v218 row_ror:{sh} row_mask:0xf bank_mask:0xf")
        a(f"v_max_u32_dpp v220, v220, v220 row_ror:{sh} row_mask:0xf bank_mask:0xf")
    for k, r in ((0, 218), (1, 220)):
        for row in range(4):
            a(f"v_readlane_b32 s{60+4*k+row}, v{r}, {16*row}")
    a("s_max_u32 s60, s60, s61"); a("s_max_u32 s62, s62, s63"); a("s_max_u32 s60, s60, s62")
    a("s_max_u32 s64, s64, s65"); a("s_max_u32 s66, s66, s67"); a("s_max_u32 s64, s64, s66")
    a("v_mov_b32 v218, s60")
    a("v_mul_f32 v218, s64, v218")
    a(f"s_mov_b32 s61, {f2u(1600.0/1.03):#x}")
    a("v_cmp_ge_f32 vcc, s61, v218")
    a("s_cmp_eq_u64 vcc, 0")
    a(f"s_cbranch_scc1 L_{name}_slow")
    MASK_ON = "s_mov_b64 exec, s[58:59]"
    def wo_dma():
        wtile_dma_voffs(a, 218, 1, 1024, 222, 223, 4)
        a("s_lshl_b32 s37, s26, 8")
        a("s_lshl_b32 s38, s25, 5")
        a("s_add_u32 s37, s37, s38")
        a("s_lshl_b32 s37, s37, 10")
        a("s_lshl_b32 s28, s35, 7")
        a("s_add_u32 s37, s37, s28")
        a("s_lshl_b32 s28, s26, 16")
        a("s_lshl_b32 s38, s38, 7")
        a("s_add_u32 s38, s38, s28")
        for cc in range(4):
            a(f"s_add_u32 m0, s38, {cc*8192}")
            a(f"s_add_u32 s28, s37, {cc*65536}")
            for n in range(4):
                a(f"buffer_load_dwordx4 v{218+n}, s[4:7], s28 offen offset:{n*1024} lds")
    def first_reads():
        a(f"ds_read_b128 {vr(KF[0],4)}, v{VK}")
        a(MASK_ON)
        a(f"ds_read_b128 {vr(VF[0][0],4)}, v{VV}")
        a(f"ds_read_b128 {vr(VF[0][1],4)}, v{VV} offset:512")
        a("s_mov_b64 exec, -1")
        a("s_waitcnt lgkmcnt(0)")
    def main_loop(tag, slow):
        C = (lambda z: vr(NM[z], 16)) if slow else (lambda z: "0")
        first_reads()
        a(f"{MF} {vr(S[0],16)}, {vr(KF[0],4)}, {vr(Q[0],4)}, {C(0)}")
        a("s_mov_b32 s39, 0")
        a.nop(12)
        a.lines.append(".p2align 6")
        a.label(f"L_{name}_{tag}_loop")
        if not slow: cstamp(a)
        if not slow and not OPT.get("nodma"):
            a("s_cmp_eq_u32 s39, 3")
            a(f"s_cbranch_scc1 L_{name}_wo")
            dma_chunk()
            a.label(f"L_{name}_back")
            if not OPT.get("nopf"):
                a(f"buffer_load_dword v{VDUM}, v{VPF1}, s[8:11], 0 offen")
                a(f"buffer_load_dword v{VDUM}, v{VPF2}, s[12:15], 0 offen")
                a(f"buffer_load_dword v{VDUM}, v{VPF3}, s[4:7], 0 offen")
        for t in range(8):
            for z in range(4):
                s = S[z & 1]; sn = S[(z + 1) & 1]
                pz = (z - 1) & 3; pt = t if z > 0 else t - 1
                nz = (z + 1) & 3; nt = t if z < 3 else t + 1
                e = lambda i: a(f"v_exp_f32 v{s+i}, v{s+i}")
                c = lambda i: a(f"v_cvt_pk_bf16_f32 v{P+i}, v{s+2*i}, v{s+2*i+1}")
                if z == 0 and t == 7 and not slow:
                    if not OPT.get("nobar"):
                        a(f"s_waitcnt vmcnt({0 if OPT.get('nopf') else 3})")
                        a("s_barrier")
                e(0); e(1)
                a(f"{MF} {vr(O[pz],16)}, {vr(VF[pt&1][1],4)}, {vr(P+4,4)}, {vr(O[pz],16)}")
                if z == 0: a(f"ds_read_b128 {vr(KF[(t+1)&1],4)}, v{VK} offset:{(t+1)*2048}")
                e(2); e(3)
                if z == 0:
                    a(MASK_ON)
                    a(f"ds_read_b128 {vr(VF[(t+1)&1][0],4)}, v{VV} offset:{(t+1)*2048}")
                    a(f"ds_read_b128 {vr(VF[(t+1)&1][1],4)}, v{VV} offset:{(t+1)*2048+512}")
                    a("s_mov_b64 exec, -1")
                e(4); e(5); e(6)
                if z == 3: a("s_waitcnt lgkmcnt(0)")
                a(f"{MF} {vr(sn,16)}, {vr(KF[nt&1],4)}, {vr(Q[nz],4)}, {C(nz)}")
                e(7); c(0); c(1); c(2); c(3); e(8); e(9); e(10)
                a(f"{MF} {vr(O[z],16)}, {vr(VF[t&1][0],4)}, {vr(P,4)}, {vr(O[z],16)}")
                e(11); e(12); e(13); e(14); e(15); c(4); c(5); c(6); c(7)
        a(f"v_add_u32 v{VK}, 0x4000, v{VK}")
        a(f"v_add_u32 v{VV}, 0x4000, v{VV}")
        if not slow:
            a(f"v_add_u32 v{VPF1}, {32*3584}, v{VPF1}")
            a(f"v_add_u32 v{VPF2}, {32*4096}, v{VPF2}")
            a(f"v_add_u32 v{VPF3}, {128*1024}, v{VPF3}")
        a("s_add_u32 s39, s39, 1")
        a("s_cmp_lt_u32 s39, 4")
        a(f"s_cbranch_scc1 L_{name}_{tag}_loop")
    a("s_waitcnt vmcnt(5)")
    a("s_barrier")
    stamp(a, 1)
    main_loop("f", False)
    cstamp(a, 24)
    a(f"s_branch L_{name}_fin")
    a.label(f"L_{name}_wo")
    wo_dma()
    a(f"s_branch L_{name}_back")
    a.label(f"L_{name}_slow")
    for c in range(3): dma_chunk()
    a("s_waitcnt vmcnt(0)")
    a("s_barrier")
    for z in range(4): a(f"v_mov_b32 v{218+z}, 0xff800000")
    a("s_mov_b32 s39, 0")
    a("v_mov_b32 v222, v2")
    a.label(f"L_{name}_p1")
    a(f"ds_read_b128 {vr(KF[0],4)}, v222")
    a("v_add_u32 v222, 0x800, v222")
    a("s_waitcnt lgkmcnt(0)")
    for zz in range(2):
        a(f"{MF} {vr(S[0],16)}, {vr(KF[0],4)}, {vr(Q[2*zz],4)}, 0")
        a(f"{MF} {vr(S[1],16)}, {vr(KF[0],4)}, {vr(Q[2*zz+1],4)}, 0")
        for z in range(2):
            for r in range(0, 16, 2):
                a(f"v_max3_f32 v{218+2*zz+z}, v{S[z]+r}, v{S[z]+r+1}, v{218+2*zz+z}")
    a("s_add_u32 s39, s39, 1")
    a("s_cmp_lt_u32 s39, 64")
    a(f"s_cbranch_scc1 L_{name}_p1")
    for z in range(4):
        a(f"v_mov_b32 v222, v{218+z}")
        a(f"v_permlane32_swap_b32 v{218+z}, v222")
        a(f"v_max_f32 v{218+z}, v{218+z}, v222")
        a(f"v_sub_f32 v{218+z}, 0, v{218+z}")
        for r in range(16): a(f"v_mov_b32 v{NM[z]+r}, v{218+z}")
    main_loop("s", True)
    a("s_barrier")
    wo_dma()
    a("s_waitcnt vmcnt(0)")
    a.label(f"L_{name}_fin")
    stamp(a, 2)
    a.nop(2)
    a(f"{MF} {vr(O[3],16)}, {vr(VF[1][1],4)}, {vr(P+4,4)}, {vr(O[3],16)}")
    SCR = 131072
    a("s_xor_b32 s28, s22, 1")
    a("s_mul_i32 s28, s28, 6144")
    a(f"s_add_u32 s28, s28, {SCR}")
    a("v_add_u32 v218, s28, v2")
    a("s_mul_i32 s28, s22, 6144")
    a(f"s_add_u32 s28, s28, {SCR}")
    a("v_add_u32 v219, s28, v2")
    a("s_lshl_b32 s29, s27, 15")
    a("s_lshl_b32 s28, s23, 10")
    a("s_add_u32 s29, s29, s28")
    a(f"s_add_u32 s29, s29, {WS_O}")
    a("s_cmp_eq_u32 s26, 0")
    a(f"s_cbranch_scc0 L_{name}_x1")
    for kh in range(2):
        if kh == 1: a.label(f"L_{name}_x1")
        a.nop(12)
        for n in range(2):
            z = 2 * (1 - kh) + n
            for g in range(3): a(f"ds_write_b128 v218, {vr(O[z]+4*g,4)} offset:{n*3072+g*1024}")
        a("s_waitcnt lgkmcnt(0)")
        a("s_barrier")
        for n in range(2):
            for g in range(3): a(f"ds_read_b128 {vr(S[0]+12*n+4*g,4)}, v219 offset:{n*3072+g*1024}")
        a("s_waitcnt lgkmcnt(0)")
        a("s_barrier")
        for n in range(2):
            z = 2 * kh + n
            for r in range(9): a(f"v_add_f32 v{O[z]+r}, v{O[z]+r}, v{S[0]+12*n+r}")
            a(f"v_rcp_f32 v220, v{O[z]+8}")
            a("s_nop 0")
            for r in range(8): a(f"v_mul_f32 v{O[z]+r}, v{O[z]+r}, v220")
            for i in range(4): a(f"v_cvt_pk_bf16_f32 v{P+4*n+i}, v{O[z]+2*i}, v{O[z]+2*i+1}")
            a(f"s_add_u32 s28, s29, {z*32768}")
            a(f"v_min_u32 v{P+4*n}, 0xfffffffe, v{P+4*n}")
            a(f"buffer_store_dwordx4 {vr(P+4*n,4)}, v2, s[16:19], s28 offen sc1")
        if kh == 0: a(f"s_branch L_{name}_x2")
    a.label(f"L_{name}_x2")
    stamp(a, 3)

class Stager:
    def __init__(s, a, vm, tag, srd_w, sglob, stride, voff, vrd, sring):
        s.a, s.vm, s.tag, s.srd, s.sglob, s.stride, s.voff, s.vrd, s.sring = a, vm, tag, srd_w, sglob, stride, voff, vrd, sring
    def issue_half(s, c, slot, hh):
        a = s.a
        a(f"s_add_u32 m0, {s.sring}, {slot*8192 + hh*4096}")
        a(f"s_add_u32 s34, {s.sglob}, {(c*64 + hh*32)*s.stride}")
        for n in range(4):
            a(f"buffer_load_dwordx4 v{s.voff+n}, {s.srd}, s34 offen offset:{n*1024} lds")
        s.vm.op((s.tag, c), 4)
    def issue(s, c, slot):
        s.issue_half(c, slot, 0); s.issue_half(c, slot, 1)
    def singles(s, c, slot):
        a = s.a; out = []
        for hh in range(2):
            for n in range(4):
                def f(hh=hh, n=n):
                    if n == 0:
                        a(f"s_add_u32 m0, {s.sring}, {slot*8192 + hh*4096}")
                        a(f"s_add_u32 s34, {s.sglob}, {(c*64 + hh*32)*s.stride}")
                    a(f"buffer_load_dwordx4 v{s.voff+n}, {s.srd}, s34 offen offset:{n*1024} lds")
                    s.vm.op((s.tag, c))
                out.append(f)
        return out
    def read_k(s, slot, areg, kk):
        for t in range(2):
            for q in range(2):
                s.a(f"ds_read_b64_tr_b16 {ar(areg+8*kk+4*t+2*q,2)}, v{s.vrd+t} offset:{slot*8192 + kk*2048 + q*1024}")
    def read(s, c, slot, areg, wait=True):
        if wait: s.vm.wait((s.tag, c))
        s.a("s_waitcnt lgkmcnt(0)")
        for kk in range(4):
            if kk == 3: s.a("s_waitcnt lgkmcnt(8)")
            s.read_k(slot, areg, kk)

S_DB, S_FB, S_CT, S_RB, S_W1G, S_W2G, S_RING = 70, 71, 72, 73, 74, 75, 80
V_W1, V_W2, V_RDL, V_RD = 4, 20, 24, 26

def k2_roles(a):
    tile_map_D(a, S_DB, S_FB)
    tile_map_CE(a, S_CT, S_RB)
    a(f"s_mul_i32 s{S_W1G}, s22, {512*3584}")
    a(f"s_lshl_b32 s69, s{S_FB}, 7")
    a(f"s_add_u32 s{S_W1G}, s{S_W1G}, s69")
    a(f"s_mul_i32 s{S_W2G}, s22, {448*4096}")
    a(f"s_lshl_b32 s69, s{S_RB}, 7")
    a(f"s_add_u32 s{S_W2G}, s{S_W2G}, s69")

def set_ring(a, expr_lines):
    for l in expr_lines: a(l)
    a(f"v_add_u32 v{V_RD}, s{S_RING}, v{V_RDL}")
    a(f"v_add_u32 v{V_RD+1}, s{S_RING}, v{V_RDL+1}")

def check_frags(a, regs, lab_retry, lab_ok):
    r = list(regs)
    a(f"v_max3_u32 v17, v{r[0]}, v{r[1]}, v{r[2]}")
    a(f"v_max3_u32 v18, v{r[3]}, v{r[4]}, v{r[5]}")
    k = 6; tg = 17
    while k < len(r):
        grp = r[k:k+2]
        if len(grp) == 2: a(f"v_max3_u32 v{tg}, v{tg}, v{grp[0]}, v{grp[1]}")
        else: a(f"v_max_u32 v{tg}, v{tg}, v{grp[0]}")
        tg = 35 - tg; k += 2
    a("v_max_u32 v17, v17, v18")
    a("v_cmp_eq_u32 vcc, -1, v17")
    a(f"s_cbranch_vccnz {lab_retry}")
    a.label(lab_ok)

def emit_retry(a, lab_retry, lab_ok, s_base_line, vprobe, reload_fn, regs):
    a.label(lab_retry)
    a(f"s_mov_b32 s37, {SPIN_MAX}")
    a(s_base_line)
    spin = lab_retry + "_spin"
    a.label(spin)
    a(f"buffer_load_dword v17, v{vprobe}, s[16:19], s38 offen sc1")
    a("s_waitcnt vmcnt(0)")
    a("v_cmp_eq_u32 vcc, -1, v17")
    a("s_sub_u32 s37, s37, 1")
    a("s_cmp_eq_u32 s37, 0")
    a(f"s_cbranch_scc1 {lab_ok}")
    a(f"s_cbranch_vccnz {spin}")
    reload_fn()
    a("s_waitcnt vmcnt(0)")
    check_frags(a, regs, spin, lab_ok + "_x")
    a(f"s_branch {lab_ok}")

def phase_C(a, vm, late):
    name = "kc"
    a(f"s_mov_b32 s23, s{S_CT}")
    a(f"s_mov_b32 s24, s{S_RB}")
    a("s_lshl_b32 s31, s24, 1")
    a("s_add_u32 s31, s31, s25")
    srd(a, 4, S_X, 2048 * 512 * 2)
    XF = 96
    a("v_and_b32 v8, 31, v1")
    a("v_lshlrev_b32 v8, 10, v8")
    a("v_lshrrev_b32 v9, 5, v1")
    a("v_lshl_add_u32 v8, v9, 4, v8")
    a("s_lshl_b32 s33, s31, 15")
    a("s_lshl_b32 s34, s23, 7")
    a("s_add_u32 s33, s33, s34")
    a("s_lshl_b32 s34, s26, 6")
    a("s_add_u32 s33, s33, s34")
    a(f"buffer_load_dwordx4 {vr(XF,4)}, v8, s[4:7], s33 offen")
    a(f"buffer_load_dwordx4 {vr(XF+4,4)}, v8, s[4:7], s33 offen offset:32")
    vm.op("x", 2)
    wtile_dma_voffs(a, V_W1, 1, 3584, 8, 9, 4)
    wtile_dma_voffs(a, V_W2, 1, 4096, 8, 9, 4)
    wtile_read_addrs(a, V_RDL, V_RDL+1, 1, 8, 9)
    set_ring(a, [f"s_lshl_b32 s{S_RING}, s26, 14", "s_lshl_b32 s69, s25, 16", f"s_add_u32 s{S_RING}, s{S_RING}, s69",
                 f"s_add_u32 s{S_RING}, s{S_RING}, 32768"])
    w1 = Stager(a, vm, "w1", "s[8:11]", f"s{S_W1G}", 3584, V_W1, V_RD, f"s{S_RING}")
    w1.issue(4, 0); w1.issue(5, 1)
    a("s_lshl_b32 s34, s26, 16")
    a(f"v_add_u32 v10, s34, v{V_RDL}")
    a(f"v_add_u32 v11, s34, v{V_RDL+1}")
    IDN = 104; IDS = 112
    ACC = [128, 144]; OF = 32
    for ks in range(16):
        if ks >= 3 and ks % 2 == 1: a("s_waitcnt lgkmcnt(6)")
        for t in range(2):
            for q in range(2):
                a(f"ds_read_b64_tr_b16 {ar(8*ks+4*t+2*q,2)}, v{10+t} offset:{ks*2048 + q*1024}")
    emit_identity(a, IDN, 1, 12, 13, True)
    emit_identity(a, IDS, 1, 12, 13, False)
    for b in ACC:
        for r in range(16): a(f"v_mov_b32 v{b+r}, 0")
    vm.wait("x")
    a("s_cmp_eq_u32 s26, 0")
    a(f"s_cbranch_scc1 L_{name}_r0")
    a(f"{MF} {vr(ACC[1],16)}, {vr(IDN,4)}, {vr(XF,4)}, {vr(ACC[1],16)}")
    a(f"{MF} {vr(ACC[1],16)}, {vr(IDN+4,4)}, {vr(XF+4,4)}, {vr(ACC[1],16)}")
    a(f"s_branch L_{name}_r1")
    a.label(f"L_{name}_r0")
    a.nop(2)
    a(f"{MF} {vr(ACC[0],16)}, {vr(IDN,4)}, {vr(XF,4)}, {vr(ACC[0],16)}")
    a(f"{MF} {vr(ACC[0],16)}, {vr(IDN+4,4)}, {vr(XF+4,4)}, {vr(ACC[0],16)}")
    a.label(f"L_{name}_r1")
    a("s_lshl_b32 s32, s31, 15")
    a("s_lshl_b32 s33, s26, 14")
    a("s_add_u32 s32, s32, s33")
    a(f"s_add_u32 s32, s32, {WS_O}")
    a("v_and_b32 v16, 15, v1")
    a("v_lshlrev_b32 v16, 10, v16")
    def oloads():
        for cc in range(4):
            a(f"s_add_u32 s33, s32, {cc*4096}")
            for k in range(4):
                a(f"buffer_load_dwordx4 {vr(OF+16*cc+4*k,4)}, v2, s[16:19], s33 offen offset:{k*1024} sc1")
    oregs = [OF + 4*k for k in range(16)]
    if OPT.get("cprobe"):
        a(f"s_mov_b32 s37, {SPIN_MAX}")
        a.label(f"L_{name}_probe")
        a("buffer_load_dword v9, v16, s[16:19], s32 offen sc1")
        a("s_waitcnt vmcnt(0)")
        a("v_cmp_eq_u32 vcc, -1, v9")
        a("s_sub_u32 s37, s37, 1")
        a("s_cmp_eq_u32 s37, 0")
        a(f"s_cbranch_scc1 L_{name}_load")
        a(f"s_cbranch_vccnz L_{name}_probe")
        a.label(f"L_{name}_load")
        vm.ops = []
        stamp(a, 4)
        oloads(); vm.op("o", 16)
        w1.read(4, 0, 128, wait=False); w1.read(5, 1, 160, wait=False)
        vm.wait("o")
        check_frags(a, oregs, f"L_{name}_retry", f"L_{name}_ok")
        late.append(lambda: emit_retry(a, f"L_{name}_retry", f"L_{name}_ok", "s_mov_b32 s38, s32", 16, oloads, oregs))
    else:
        w1.read(4, 0, 128); w1.read(5, 1, 160)
        a(f"s_mov_b32 s37, {SPIN_MAX}")
        a.label(f"L_{name}_spin")
        oloads()
        a("s_waitcnt vmcnt(0)")
        a("s_sub_u32 s37, s37, 1")
        a("s_cmp_eq_u32 s37, 0")
        a(f"s_cbranch_scc1 L_{name}_ok")
        check_frags(a, oregs, f"L_{name}_spin", f"L_{name}_ok")
        vm.ops = []
        stamp(a, 4)
    for ks in range(16):
        for t in range(2):
            a(f"{MF} {vr(ACC[t],16)}, {ar(8*ks+4*t,4)}, {vr(OF+4*ks,4)}, {vr(ACC[t],16)}")
    stamp(a, 5)
    SCR = 131072
    a("s_xor_b32 s34, s22, 1")
    a("s_lshl_b32 s34, s34, 12")
    a(f"s_add_u32 s34, s34, {SCR}")
    a("v_add_u32 v8, s34, v2")
    a("s_lshl_b32 s34, s22, 12")
    a(f"s_add_u32 s34, s34, {SCR}")
    a("v_add_u32 v9, s34, v2")
    H = VH
    a("s_cmp_eq_u32 s26, 0")
    a(f"s_cbranch_scc1 L_{name}_k0")
    for g in range(4): a(f"ds_write_b128 v8, {vr(ACC[0]+4*g,4)} offset:{g*1024}")
    for r in range(16): a(f"v_mov_b32 v{H+r}, v{ACC[1]+r}")
    a(f"s_branch L_{name}_k1")
    a.label(f"L_{name}_k0")
    a.nop(12)
    for g in range(4): a(f"ds_write_b128 v8, {vr(ACC[1]+4*g,4)} offset:{g*1024}")
    for r in range(16): a(f"v_mov_b32 v{H+r}, v{ACC[0]+r}")
    a.label(f"L_{name}_k1")
    a("s_waitcnt lgkmcnt(0)")
    a("s_barrier")
    for g in range(4): a(f"ds_read_b128 {vr(ACC[1]+4*g,4)}, v9 offset:{g*1024}")
    a("s_waitcnt lgkmcnt(0)")
    for r in range(16): a(f"v_add_f32 v{H+r}, v{H+r}, v{ACC[1]+r}")
    a(f"v_add_f32 v16, v{H}, v{H+1}")
    a(f"v_mul_f32 v17, v{H}, v{H}")
    a(f"v_add_f32 v18, v{H+2}, v{H+3}")
    a(f"v_mul_f32 v19, v{H+2}, v{H+2}")
    a(f"v_fma_f32 v17, v{H+1}, v{H+1}, v17")
    a(f"v_fma_f32 v19, v{H+3}, v{H+3}, v19")
    for r in range(4, 16, 2):
        a(f"v_add_f32 v16, v16, v{H+r}")
        a(f"v_fma_f32 v17, v{H+r}, v{H+r}, v17")
        a(f"v_add_f32 v18, v18, v{H+r+1}")
        a(f"v_fma_f32 v19, v{H+r+1}, v{H+r+1}, v19")
    a("v_add_f32 v16, v16, v18")
    a("v_add_f32 v17, v17, v19")
    a("v_mov_b32 v18, v16"); a("v_mov_b32 v19, v17")
    a("v_permlane32_swap_b32 v16, v18"); a("v_permlane32_swap_b32 v17, v19")
    a("v_add_f32 v16, v16, v18"); a("v_add_f32 v17, v17, v19")
    a("v_min_u32 v16, 0xfffffffe, v16")
    a("v_min_u32 v17, 0xfffffffe, v17")
    a("s_lshl_b32 s34, s31, 12")
    a(f"s_add_u32 s39, s34, {WS_ST}")
    a("s_lshl_b32 s35, s23, 1")
    a("s_add_u32 s35, s35, s26")
    a("s_lshl_b32 s35, s35, 8")
    a("s_add_u32 s35, s35, s39")
    a("v_and_b32 v8, 31, v1")
    a("v_lshlrev_b32 v8, 3, v8")
    a("s_mov_b32 exec_hi, 0")
    a("buffer_store_dwordx2 v[16:17], v8, s[16:19], s35 offen sc0 sc1")
    a("s_mov_b64 exec, -1")
    vm.op("st")
    if OPT.get("dbgH"):
        for i in range(8): a(f"v_cvt_pk_bf16_f32 v{48+i}, v{H+2*i}, v{H+2*i+1}")
        a("s_lshl_b32 s36, s24, 3"); a("s_add_u32 s36, s36, s23"); a("s_lshl_b32 s36, s36, 2")
        a("s_add_u32 s36, s36, s22"); a("s_lshl_b32 s36, s36, 11"); a(f"s_add_u32 s36, s36, {WS_H}")
        a(f"buffer_store_dwordx4 {vr(48,4)}, v2, s[16:19], s36 offen")
        a(f"buffer_store_dwordx4 {vr(52,4)}, v2, s[16:19], s36 offen offset:1024")
        vm.op("dbg", 2)
    w1.issue(6, 0); w1.issue(7, 1)
    a("v_lshrrev_b32 v9, 5, v1")
    a("v_lshl_add_u32 v8, v9, 11, v8")
    a(f"s_mov_b32 s37, {SPIN_MAX}")
    a.label(f"L_{name}_poll")
    for p in range(8):
        a(f"buffer_load_dwordx2 {vr(32+2*p,2)}, v8, s[16:19], s39 offen offset:{p*256} sc0 sc1")
    a("s_waitcnt vmcnt(0)")
    a("v_max_u32 v48, v32, v33")
    for p in range(1, 8):
        a(f"v_max3_u32 v48, v{32+2*p}, v{33+2*p}, v48")
    a("v_cmp_eq_u32 vcc, -1, v48")
    a("s_sub_u32 s37, s37, 1")
    a("s_cmp_eq_u32 s37, 0")
    a(f"s_cbranch_scc1 L_{name}_go")
    a(f"s_cbranch_vccnz L_{name}_poll")
    a.label(f"L_{name}_go")
    vm.ops = []
    stamp(a, 6)
    for st in (4, 2, 1):
        for p in range(st):
            a(f"v_add_f32 v{32+2*p}, v{32+2*p}, v{32+2*(p+st)}")
            a(f"v_add_f32 v{33+2*p}, v{33+2*p}, v{33+2*(p+st)}")
    a("v_mov_b32 v34, v32"); a("v_mov_b32 v35, v33")
    a("v_permlane32_swap_b32 v32, v34"); a("v_permlane32_swap_b32 v33, v35")
    a("v_add_f32 v32, v32, v34"); a("v_add_f32 v33, v33, v35")
    a(f"s_mov_b32 s30, {f2u(1.0/512):#x}")
    a("v_mul_f32 v32, s30, v32")
    a("v_mul_f32 v33, s30, v33")
    a("v_fma_f32 v33, -v32, v32, v33")
    a("v_max_f32 v33, 0, v33")
    a(f"v_add_f32 v34, {f2u(1e-5):#x}, v33")
    a("v_rsq_f32 v34, v34")
    a("s_nop 0")
    a("v_mul_f32 v35, v33, v34")
    a("v_mul_f32 v35, v35, v34")
    a(f"v_add_f32 v35, {f2u(1e-5):#x}, v35")
    a("v_rsq_f32 v35, v35")
    a("s_nop 0")
    a("v_mul_f32 v34, v34, v35")
    a("v_mul_f32 v36, v32, v34")
    a("v_sub_f32 v36, 0, v36")
    a("v_mov_b32 v35, v34")
    a("v_mov_b32 v37, v36")
    N = 160
    for r in range(0, 16, 2):
        a(f"v_pk_fma_f32 {vr(N+r,2)}, {vr(H+r,2)}, v[34:35], v[36:37]")
    for i in range(8): a(f"v_cvt_pk_bf16_f32 v{40+i}, v{N+2*i}, v{N+2*i+1}")
    T = ACC[1]
    a(f"{MF} {vr(T,16)}, {vr(40,4)}, {vr(IDS,4)}, 0")
    a(f"{MF} {vr(T,16)}, {vr(44,4)}, {vr(IDS+4,4)}, {vr(T,16)}")
    a("s_lshl_b32 s35, s23, 1")
    a("s_add_u32 s35, s35, s26")
    a("s_lshl_b32 s35, s35, 7")
    a("s_lshl_b32 s36, s31, 1")
    a("s_add_u32 s35, s35, s36")
    a("s_lshl_b32 s35, s35, 10")
    a(f"s_add_u32 s35, s35, {WS_HT}")
    for i in range(8): a(f"v_cvt_pk_bf16_f32 v{48+i}, v{T+2*i}, v{T+2*i+1}")
    a("v_min_u32 v48, 0xfffffffe, v48")
    a("v_min_u32 v52, 0xfffffffe, v52")
    a(f"buffer_store_dwordx4 {vr(48,4)}, v2, s[16:19], s35 offen sc1")
    a(f"buffer_store_dwordx4 {vr(52,4)}, v2, s[16:19], s35 offen offset:1024 sc1")
    vm.op("ht", 2)
    w1.read(6, 0, 192, wait=False)
    w1.read(7, 1, 224, wait=False)
    a("s_waitcnt lgkmcnt(0)")
    a("s_barrier")
    set_ring(a, [f"s_mul_i32 s{S_RING}, s22, 24576"])
    stamp(a, 7)

AF0 = 32; ACC0 = 160; INBOX = 98304
class ActStream:
    def __init__(s, a, vm, name, s_act, stride, late):
        s.a, s.vm, s.name, s.s_act, s.stride, s.late = a, vm, name, s_act, stride, late
        a("v_bfe_u32 v16, v1, 2, 1")
        a(f"s_mov_b32 s69, {stride}")
        a("v_mul_lo_u32 v16, v16, s69")
        a("v_and_b32 v17, 3, v1")
        a("v_lshl_add_u32 v16, v17, 10, v16")
    def loads(s, b, part=None, sr0=35):
        a = s.a; fb = AF0 + (b % 4) * 32
        if part in (None, 0):
            a(f"s_add_u32 s{sr0}, {s.s_act}, {b*4096}")
            a(f"s_add_u32 s{sr0+1}, s{sr0}, {s.stride}")
        for kk in (range(4) if part is None else [part]):
            a(f"buffer_load_dwordx4 {vr(fb+8*kk,4)}, v2, s[16:19], s{sr0} offen offset:{kk*1024} sc1")
            a(f"buffer_load_dwordx4 {vr(fb+8*kk+4,4)}, v2, s[16:19], s{sr0+1} offen offset:{kk*1024} sc1")
    def issue(s, b, part=None):
        s.loads(b, part); s.vm.op(("a", b), 8 if part is None else 2)
    def singles(s, b):
        a = s.a; fb = AF0 + (b % 4) * 32
        out = []
        for kk in range(4):
            for t in range(2):
                def f(kk=kk, t=t):
                    if kk == 0 and t == 0:
                        a(f"s_add_u32 s35, {s.s_act}, {b*4096}")
                        a(f"s_add_u32 s36, s35, {s.stride}")
                    a(f"buffer_load_dwordx4 {vr(fb+8*kk+4*t,4)}, v2, s[16:19], s{35+t} offen offset:{kk*1024} sc1")
                    s.vm.op(("a", b))
                out.append(f)
        return out
    def spin_first(s):
        a = s.a
        lab = f"L_{s.name}_first"
        a(f"s_mov_b32 s37, {SPIN_MAX}")
        a.label(lab)
        s.loads(0); s.loads(1)
        a("s_waitcnt vmcnt(8)")
        a("s_sub_u32 s37, s37, 1")
        a("s_cmp_eq_u32 s37, 0")
        a(f"s_cbranch_scc1 {lab}_ok")
        check_frags(a, [AF0 + 4*i for i in range(8)], lab + "_again", lab + "_ok")
        s.late.append(lambda: (a.label(lab + "_again"), a("s_waitcnt vmcnt(0)"), a("s_sleep 1"), a(f"s_branch {lab}")))
        s.vm.ops = [("a", 1)] * 8
    def probe_all(s, nk):
        a = s.a
        a("v_and_b32 v18, 1, v1")
        a(f"v_mul_lo_u32 v18, v18, s69")
        a("v_lshrrev_b32 v17, 1, v1")
        a(f"v_min_u32 v17, {nk-1}, v17")
        a("v_lshl_add_u32 v19, v17, 10, v18")
        lab = f"L_{s.name}_pall"
        a(f"s_mov_b32 s37, {SPIN_MAX}")
        a.label(lab)
        a(f"buffer_load_dword v17, v19, s[16:19], {s.s_act} offen sc1")
        a("s_waitcnt vmcnt(0)")
        a("v_cmp_eq_u32 vcc, -1, v17")
        a("s_sub_u32 s37, s37, 1")
        a("s_cmp_eq_u32 s37, 0")
        a(f"s_cbranch_scc1 {lab}_done")
        a(f"s_cbranch_vccnz {lab}")
        a.label(lab + "_done")
        s.vm.ops = []
    def check(s, b):
        s.vm.wait(("a", b))
        fb = AF0 + (b % 4) * 32
        regs = [fb + 4*i for i in range(8)]
        lr, lo = f"L_{s.name}_retry{b}", f"L_{s.name}_ok{b}"
        check_frags(s.a, regs, lr, lo)
        s.late.append(lambda: emit_retry(s.a, lr, lo, f"s_add_u32 s38, {s.s_act}, {b*4096}", 16, lambda: s.loads(b, None, 81), regs))

def gemm_main(a, act, nb, w_is_A, extra):
    for b in range(nb):
        cstamp(a, (30 if w_is_A else 40) + b)
        fb = AF0 + (b % 4) * 32
        q = []
        if b + 3 < nb: q += act.singles(b + 3)
        q += extra.get(b, [])
        for kk in range(4):
            for n, (t0, t1) in enumerate(((0, 0), (0, 1), (1, 0), (1, 1))):
                w = ar((4*b+kk)*8 + 4*t0, 4); x = vr(fb + 8*kk + 4*t1, 4)
                qd = t1*2 + t0 if w_is_A else t0*2 + t1
                acc = vr(ACC0 + 16*qd, 16)
                if w_is_A: a(f"{MF} {acc}, {w}, {x}, {acc}")
                else: a(f"{MF} {acc}, {x}, {w}, {acc}")
                if n in (0, 2) and q: q.pop(0)()
                if n == 3 and kk == 2 and b + 1 < nb: act.check(b + 1)
        assert not q
    cstamp(a, (30 if w_is_A else 40) + nb)

def quad_write(a):
    for qd in range(4):
        a(f"s_lshl_b32 s34, s22, 12")
        a(f"s_add_u32 s34, s34, {INBOX + qd*16384}")
        a("v_add_u32 v8, s34, v2")
        for g in range(4): a(f"ds_write_b128 v8, {vr(ACC0+16*qd+4*g,4)} offset:{g*1024}")
    a("s_lshl_b32 s34, s22, 14")
    a(f"s_add_u32 s34, s34, {INBOX}")
    a("v_add_u32 v9, s34, v2")
    a("s_waitcnt lgkmcnt(0)")
    a("s_barrier")
def quad_read(a, OUT):
    R = [OUT, 32, 48, 64]
    for src in range(4):
        if src == 3: a("s_waitcnt lgkmcnt(8)")
        for g in range(4): a(f"ds_read_b128 {vr(R[src]+4*g,4)}, v9 offset:{src*4096+g*1024}")
    a("s_waitcnt lgkmcnt(8)")
    for r in range(16): a(f"v_add_f32 v{OUT+r}, v{OUT+r}, v{R[1]+r}")
    a("s_waitcnt lgkmcnt(0)")
    for r in range(16): a(f"v_add_f32 v{R[2]+r}, v{R[2]+r}, v{R[3]+r}")
    for r in range(16): a(f"v_add_f32 v{OUT+r}, v{OUT+r}, v{R[2]+r}")

def phase_DE(a, vm, late):
    name = "kd"
    w1 = Stager(a, vm, "w1", "s[8:11]", f"s{S_W1G}", 3584, V_W1, V_RD, f"s{S_RING}")
    w2 = Stager(a, vm, "w2", "s[12:15]", f"s{S_W2G}", 4096, V_W2, V_RD, f"s{S_RING}")
    a("s_cmp_ge_u32 s2, 224")
    a(f"s_cbranch_scc1 L_{name}_skip")
    w1.issue(0, 0); w1.issue(1, 1); w1.issue(2, 2)
    a(f"s_lshl_b32 s32, s{S_DB}, 18")
    a("s_lshl_b32 s33, s22, 15")
    a("s_add_u32 s32, s32, s33")
    a(f"s_add_u32 s32, s32, {WS_HT}")
    act = ActStream(a, vm, "kd", "s32", 131072, late)
    for r in range(64): a(f"v_mov_b32 v{ACC0+r}, 0")
    stamp(a, 8)
    w1.read(0, 0, 0)
    a("s_waitcnt lgkmcnt(0)")
    w1.issue(3, 0)
    if OPT.get("probeall"):
        act.probe_all(32)
        act.issue(0); act.issue(1); act.issue(2)
        w1.read(1, 1, 32, wait=False); w1.read(2, 2, 64, wait=False); w1.read(3, 0, 96, wait=False)
        act.check(0)
    else:
        w1.read(1, 1, 32); w1.read(2, 2, 64); w1.read(3, 0, 96)
        act.spin_first()
        act.issue(2)
    a("s_waitcnt lgkmcnt(0)")
    stamp(a, 9)
    gemm_main(a, act, 8, True, {5: w2.singles(0, 0), 6: w2.singles(1, 1), 7: w2.singles(2, 2)})
    stamp(a, 10)
    U = 128
    quad_write(a)
    quad_read(a, U)
    for g in range(4):
        for i in range(2):
            r = VB1 + 2*g + i
            a(f"v_lshlrev_b32 v{184+4*g+2*i}, 16, v{r}")
            a(f"v_and_b32 v{185+4*g+2*i}, 0xffff0000, v{r}")
    for r in range(16): a(f"v_add_f32 v{U+r}, v{U+r}, v{184+r}")
    kk = -2.0 * 0.7978845608028654 * LOG2E
    a(f"s_mov_b32 s36, {f2u(kk*0.044715):#x}")
    a(f"s_mov_b32 s37, {f2u(kk):#x}")
    T = 184
    a("v_mov_b32 v16, s37")
    for r in range(16): a(f"v_mul_f32 v{T+r}, v{U+r}, v{U+r}")
    for r in range(16): a(f"v_fma_f32 v{T+r}, v{T+r}, s36, v16")
    for r in range(16): a(f"v_mul_f32 v{T+r}, v{T+r}, v{U+r}")
    for r in range(16): a(f"v_exp_f32 v{T+r}, v{T+r}")
    for r in range(16): a(f"v_add_f32 v{T+r}, 1.0, v{T+r}")
    for r in range(16): a(f"v_rcp_f32 v{T+r}, v{T+r}")
    for r in range(16): a(f"v_mul_f32 v{U+r}, v{U+r}, v{T+r}")
    for i in range(8): a(f"v_cvt_pk_bf16_f32 v{48+i}, v{U+2*i}, v{U+2*i+1}")
    a(f"s_lshl_b32 s31, s{S_DB}, 1")
    a("s_lshr_b32 s36, s22, 1")
    a("s_add_u32 s31, s31, s36")
    a("s_mul_i32 s35, s31, 112")
    a(f"s_lshl_b32 s36, s{S_FB}, 2")
    a("s_add_u32 s35, s35, s36")
    a("s_and_b32 s36, s22, 1")
    a("s_lshl_b32 s36, s36, 1")
    a("s_add_u32 s35, s35, s36")
    a("s_lshl_b32 s35, s35, 10")
    a(f"s_add_u32 s35, s35, {WS_U}")
    a("v_min_u32 v48, 0xfffffffe, v48")
    a("v_min_u32 v52, 0xfffffffe, v52")
    a(f"buffer_store_dwordx4 {vr(48,4)}, v2, s[16:19], s35 offen sc1")
    a(f"buffer_store_dwordx4 {vr(52,4)}, v2, s[16:19], s35 offen offset:1024 sc1")
    vm.op("u", 2)
    a("s_barrier")
    stamp(a, 11)
    w2.read(0, 0, 0); w2.read(1, 1, 32); w2.read(2, 2, 64)
    a("s_waitcnt lgkmcnt(0)")
    w2.issue(3, 0); w2.issue(4, 1); w2.issue(5, 2)
    a(f"s_branch L_{name}_join")
    a.label(f"L_{name}_skip")
    vm2 = VM(a)
    w2b = Stager(a, vm2, "w2", "s[12:15]", f"s{S_W2G}", 4096, V_W2, V_RD, f"s{S_RING}")
    w2b.issue(0, 0); w2b.issue(1, 1); w2b.issue(2, 2)
    w2b.read(0, 0, 0); w2b.read(1, 1, 32); w2b.read(2, 2, 64)
    a("s_waitcnt lgkmcnt(0)")
    w2b.issue(3, 0); w2b.issue(4, 1); w2b.issue(5, 2)
    a.label(f"L_{name}_join")
    name = "ke"
    a(f"s_mov_b32 s23, s{S_CT}")
    a(f"s_mov_b32 s24, s{S_RB}")
    srd(a, 4, S_OUT, 2048 * 512 * 2)
    a("s_mul_i32 s32, s23, 2*112*1024")
    a("s_mul_i32 s33, s22, 28*1024")
    a("s_add_u32 s32, s32, s33")
    a(f"s_add_u32 s32, s32, {WS_U}")
    act = ActStream(a, vm, "ke", "s32", 112*1024, late)
    for r in range(64): a(f"v_mov_b32 v{ACC0+r}, 0")
    stamp(a, 12)
    w2.read(3, 0, 96)
    a("s_waitcnt lgkmcnt(0)")
    w2.issue(6, 0)
    if OPT.get("probeall"):
        act.probe_all(28)
        act.issue(0); act.issue(1); act.issue(2)
        w2.read(4, 1, 128, wait=False); w2.read(5, 2, 160, wait=False); w2.read(6, 0, 192, wait=False)
        act.check(0)
    else:
        w2.read(4, 1, 128); w2.read(5, 2, 160); w2.read(6, 0, 192)
        act.spin_first()
        act.issue(2)
    a("s_waitcnt lgkmcnt(0)")
    stamp(a, 13)
    gemm_main(a, act, 7, False, {})
    stamp(a, 14)
    Y = 128
    quad_write(a)
    quad_read(a, Y)
    a(f"v_lshlrev_b32 v184, 16, v{VB1+8}")
    for r in range(16): a(f"v_add_f32 v{Y+r}, v{Y+r}, v{VH+r}")
    for r in range(16): a(f"v_add_f32 v{Y+r}, v{Y+r}, v184")
    for i in range(8): a(f"v_cvt_pk_bf16_f32 v{48+i}, v{Y+2*i}, v{Y+2*i+1}")
    a("v_and_b32 v8, 31, v1")
    a("v_lshlrev_b32 v8, 10, v8")
    a("v_lshrrev_b32 v9, 5, v1")
    a("v_lshl_add_u32 v8, v9, 4, v8")
    a("v_permlane32_swap_b32 v48, v50"); a("v_permlane32_swap_b32 v49, v51")
    a("v_permlane32_swap_b32 v52, v54"); a("v_permlane32_swap_b32 v53, v55")
    a("s_lshl_b32 s35, s24, 1")
    a("s_lshr_b32 s36, s22, 1")
    a("s_add_u32 s35, s35, s36")
    a("s_lshl_b32 s35, s35, 15")
    a("s_lshl_b32 s36, s23, 1")
    a("s_and_b32 s33, s22, 1")
    a("s_add_u32 s36, s36, s33")
    a("s_lshl_b32 s36, s36, 6")
    a("s_add_u32 s35, s35, s36")
    a(f"buffer_store_dwordx4 {vr(48,4)}, v8, s[4:7], s35 offen")
    a(f"buffer_store_dwordx4 {vr(52,4)}, v8, s[4:7], s35 offen offset:32")

def gen_K2():
    global VST
    VST = 239
    a = Asm(); name = "k2_kernel"
    cnt = [0]
    def uniq(p):
        cnt[0] += 1
        return f"L_{p}{cnt[0]}"
    a.uniq = uniq
    kernel_head(a, name, 256)
    a("s_load_dwordx16 s[40:55], s[0:1], 0")
    a(f"s_load_dwordx2 s[56:57], s[0:1], {KA_OUT}")
    a(f"s_load_dwordx2 s[20:21], s[0:1], {KA_WS}")
    a("v_lshrrev_b32 v2, 6, v0")
    a("v_and_b32 v1, 63, v0")
    a("v_readfirstlane_b32 s22, v2")
    a("v_lshlrev_b32 v2, 4, v1")
    a("s_waitcnt lgkmcnt(0)")
    srd(a, 16, 20, WS_SIZE)
    k2_roles(a)
    phase_B(a)
    vm = VM(a); late = []
    vm.op("ostore", 2)
    phase_C(a, vm, late)
    phase_DE(a, vm, late)
    a(f"s_branch L_{name}_fin")
    for f in late: f()
    a.label(f"L_{name}_fin")
    kernel_tail(a, name, 1)
    a.label("L_k2_code_end")
    return name, a.lines, 163840

def build(path):
    ks = [gen_K1(), gen_K2()]
    ref = open("cdna_kernels/" + NAME + ".s.ref").read().split("\n")
    hdr = [l for l in ref if l.startswith(";") and "@launch" not in l and not l.startswith("; Override") and not l.startswith("; grid=")]
    out = list(hdr)
    for name, lines, lds in ks:
        out.append(f"; @launch kernel={name} grid=(256,1,1) block=(256,1,1) lds={lds}")
    out.append('.amdgcn_target "amdgcn-amd-amdhsa--gfx950"')
    out.append(".text")
    tot = 0; body = []
    for name, lines, lds in ks:
        fixed, n = fix_hazards(lines)
        tot += n
        for p in check_backedges(fixed): print("BACKEDGE HAZARD", name, p)
        if name == "k2_kernel":
            k2size = sum(ins_sizes([l for l in fixed]))
        for l in fixed:
            body.append(l if (l.endswith(":") or l.startswith(".")) else "    " + l)
    k2size = (k2size + 63) // 64 * 64
    out.append(f".set K2_CODE_BYTES, {k2size - 128}")
    out += body
    out.append('.section .rodata,"a"')
    for name, lines, lds in ks:
        out.append(".p2align 6")
        out.append(kd(name, 512, 256) if name == "k2_kernel" else kd(name))
    open(path, "w").write("\n".join(out) + "\n")
    print("wrote", path, "nops inserted:", tot, "k2 code bytes", k2size)

if __name__ == "__main__":
    args = sys.argv[2:]
    if "stamp" in args: STAMP = True
    for o in args: OPT[o] = 1
    build(sys.argv[1] if len(sys.argv) > 1 else "cdna_kernels/" + NAME + ".s")
```

```python
import sys
sys.path.insert(0, "dev")
from asmlib import *

NAME = "sequential_preLN__mha_block__mixer_token_mlp__prompt"
WS_Q   = 0
WS_KV  = 2 << 20
WS_NRM = 6 << 20
WS_CNT = (6 << 20) + (64 << 10)
WS_O   = 7 << 20
WS_ST  = 9 << 20
WS_H   = 10 << 20
WS_HT  = 12 << 20
WS_U   = 14 << 20
WS_SIZE = 16 << 20
KA_X, KA_WQKV, KA_WO, KA_W1, KA_B1, KA_W2, KA_B2, KA_OUT, KA_DBG, KA_WS = 0, 8, 16, 32, 40, 48, 56, 64, 72, 80
ONES = 0x3F803F80
LOG2E = 1.4426950408889634
MF = "v_mfma_f32_32x32x16_bf16"
OPT = {}
STAMP = False
STAMP_OFF = 32 << 20
SPIN_MAX = 0x40000

def f2u(x):
    import struct
    return struct.unpack("<I", struct.pack("<f", x))[0]

def srd(a, s, ptr, size):
    a(f"s_mov_b32 s{s}, s{ptr}")
    a(f"s_and_b32 s{s+1}, s{ptr+1}, 0xffff")
    a(f"s_mov_b32 s{s+2}, {size}")
    a(f"s_mov_b32 s{s+3}, 0x00020000")

class VM:
    def __init__(self, a): self.a = a; self.ops = []
    def op(self, tag, n=1): self.ops += [tag] * n
    def wait(self, *tags):
        last = -1
        for i, t in enumerate(self.ops):
            if t in tags: last = i
        assert last >= 0, tags
        n = len(self.ops) - 1 - last
        self.a(f"s_waitcnt vmcnt({min(n, 63)})")
        self.ops = self.ops[last + 1:]
    def drain(self):
        self.a("s_waitcnt vmcnt(0)"); self.ops = []

VST = 239
def stamp(a, k):
    if STAMP:
        a("s_memrealtime s[90:91]")
        a("s_waitcnt lgkmcnt(0)")
        a(f"v_writelane_b32 v{VST}, s90, {k}")

def cstamp(a, k=None):
    if STAMP:
        a("s_memtime s[90:91]")
        a("s_waitcnt lgkmcnt(0)")
        if k is None:
            a("s_add_u32 s91, s39, 20"); a("s_mov_b32 s89, m0"); a("s_mov_b32 m0, s91")
            a(f"v_writelane_b32 v{VST}, s90, m0"); a("s_mov_b32 m0, s89")
        else:
            a(f"v_writelane_b32 v{VST}, s90, {k}")

def kernel_head(a, name, nwg):
    a.lines.append(f".globl {name}")
    a.lines.append(".p2align 8")
    a.lines.append(f".type {name},@function")
    a.label(name)
    a(f"s_cmp_ge_u32 s2, {nwg}")
    a(f"s_cbranch_scc1 L_{name}_end")
    if STAMP:
        a(f"v_mov_b32 v{VST}, 0")
        a("s_memtime s[92:93]")
        stamp(a, 0)
    dbg_time(a, 0 if name.startswith("k1") else 1, 0 if name.startswith("k1") else 2, True)

def kernel_tail(a, name, kidx):
    if STAMP:
        a.label(f"L_{name}_stamp")
        a("s_waitcnt vmcnt(0) lgkmcnt(0)")
        a("s_memtime s[94:95]")
        stamp(a, 62)
        a("s_sub_u32 s94, s94, s92")
        a(f"v_writelane_b32 v{VST}, s94, 63")
        a("s_cmp_lg_u32 s22, 0")
        a(f"s_cbranch_scc1 L_{name}_end")
        a("s_mov_b64 exec, -1")
        a("s_lshl_b32 s30, s2, 8")
        a(f"s_add_u32 s30, s30, {STAMP_OFF + kidx*65536}")
        a("v_and_b32 v4, 63, v0")
        a("v_lshlrev_b32 v4, 2, v4")
        a("v_add_u32 v4, s30, v4")
        a(f"global_store_dword v4, v{VST}, s[20:21]")
        a("s_waitcnt vmcnt(0)")
    if OPT.get("dbgtime"):
        a("s_waitcnt vmcnt(0)")
        dbg_time(a, kidx, 1 + 2*kidx, False)
        a("s_waitcnt vmcnt(0)")
    a.label(f"L_{name}_end")
    a("s_endpgm")

def dbg_time(a, kidx, slot, invert):
    if not OPT.get("dbgtime"): return
    lab = f"L_dbgt_{kidx}_{slot}"
    if invert:
        a("s_cmp_ge_u32 s2, 8"); a(f"s_cbranch_scc1 {lab}")
    else:
        a("s_cmp_lg_u32 s22, 0"); a(f"s_cbranch_scc1 {lab}")
    a("s_load_dwordx2 s[96:97], s[0:1], 72")
    a("s_memrealtime s[90:91]")
    a("s_waitcnt lgkmcnt(0)")
    if OPT.get("dbglast"):
        if not kidx:
            a(f"s_add_u32 s96, s96, 512"); a("s_addc_u32 s97, s97, 0")
    elif kidx:
        a(f"s_sub_u32 s96, s96, {512*kidx}"); a("s_subb_u32 s97, s97, 0")
    if invert: a("s_not_b32 s90, s90")
    a("v_mov_b32 v46, s90")
    a(f"v_mov_b32 v45, {slot*4}")
    a("s_mov_b64 exec, 1")
    a("global_atomic_umax v45, v46, s[96:97]")
    a("s_mov_b64 exec, -1")
    a.label(lab)

def kd(name, nv=256, acc=256, ns=100):
    return f""".amdhsa_kernel {name}
  .amdhsa_next_free_vgpr {nv}
  .amdhsa_next_free_sgpr {ns}
  .amdhsa_accum_offset {acc}
  .amdhsa_group_segment_fixed_size 0
  .amdhsa_kernarg_size 88
  .amdhsa_user_sgpr_count 2
  .amdhsa_user_sgpr_kernarg_segment_ptr 1
  .amdhsa_system_sgpr_workgroup_id_x 1
.end_amdhsa_kernel
"""

def emit_identity(a, base, vl, t0, t1, natural):
    a(f"v_mov_b32 v{t1+1}, 0x3f80")
    a(f"v_mov_b32 v{t1+2}, 0x3f800000")
    a(f"v_and_b32 v{t0}, 31, v{vl}")
    a(f"v_lshrrev_b32 v{t1}, 5, v{vl}")
    a(f"v_lshlrev_b32 v{t1}, {3 if natural else 2}, v{t1}")
    a(f"v_sub_u32 v{t0}, v{t0}, v{t1}")
    for q in range(2):
        for i in range(4):
            c = 16 * q + ((2 * i) if natural else (0, 2, 8, 10)[i])
            r = base + 4 * q + i
            a(f"v_cmp_eq_u32 vcc, {c}, v{t0}")
            a(f"v_cmp_eq_u32 s[58:59], {c+1}, v{t0}")
            a(f"v_cndmask_b32 v{r}, 0, v{t1+1}, vcc")
            a(f"v_cndmask_b32 v{r}, v{r}, v{t1+2}, s[58:59]")

def swap_add(a, v, t):
    a(f"v_mov_b32 v{t}, v{v}")
    a(f"v_permlane32_swap_b32 v{v}, v{t}")
    a(f"v_add_f32 v{v}, v{v}, v{t}")

def tile_map_CE(a, sct, srb):
    a(f"s_and_b32 s{sct}, s2, 1")
    a(f"s_lshl_b32 s{sct}, s{sct}, 2")
    a("s_lshr_b32 s68, s2, 3")
    a("s_and_b32 s69, s68, 3")
    a(f"s_add_u32 s{sct}, s{sct}, s69")
    a(f"s_bfe_u32 s{srb}, s2, 0x20001")
    a(f"s_lshl_b32 s{srb}, s{srb}, 3")
    a("s_lshr_b32 s69, s68, 2")
    if not OPT.get("noswap"):
        a("s_and_b32 s68, s69, 3")
        a("s_cmp_eq_u32 s68, 3")
        a("s_cselect_b32 s68, 4, 0")
        a("s_xor_b32 s69, s69, s68")
    a(f"s_add_u32 s{srb}, s{srb}, s69")

def tile_map_D(a, sdb, sfb):
    a(f"s_and_b32 s{sdb}, s2, 1")
    a(f"s_lshl_b32 s{sdb}, s{sdb}, 2")
    a("s_lshr_b32 s68, s2, 3")
    a("s_and_b32 s69, s68, 3")
    a(f"s_add_u32 s{sdb}, s{sdb}, s69")
    a(f"s_bfe_u32 s{sfb}, s2, 0x20001")
    a(f"s_mul_i32 s{sfb}, s{sfb}, 7")
    a("s_lshr_b32 s69, s68, 2")
    a(f"s_add_u32 s{sfb}, s{sfb}, s69")

def wtile_dma_voffs(a, base, vl, stride, t0, t1, n_regs=4):
    a(f"v_lshrrev_b32 v{t0}, 3, v{vl}")
    a(f"s_mov_b32 s69, {stride}")
    a(f"v_mul_lo_u32 v{t0}, v{t0}, s69")
    a(f"v_bfe_u32 v{t1}, v{vl}, 4, 1")
    a(f"v_lshlrev_b32 v{t1}, 2, v{t1}")
    a(f"v_and_b32 v{base}, 7, v{vl}")
    a(f"v_xor_b32 v{t1}, v{t1}, v{base}")
    a(f"v_lshl_add_u32 v{base}, v{t1}, 4, v{t0}")
    for n in range(1, n_regs):
        a(f"v_add_u32 v{base+n}, {n*8*stride - n*1024}, v{base}")

def wtile_read_addrs(a, r0, r1, vl, t0, t1):
    a(f"v_lshrrev_b32 v{t0}, 5, v{vl}")
    a(f"v_lshlrev_b32 v{t0}, 2, v{t0}")
    a(f"v_bfe_u32 v{t1}, v{vl}, 2, 2")
    a(f"v_add_u32 v{t0}, v{t0}, v{t1}")
    a(f"v_lshlrev_b32 v{t0}, 7, v{t0}")
    a(f"v_bfe_u32 v{t1}, v{vl}, 4, 1")
    a(f"v_lshlrev_b32 v{t1}, 1, v{t1}")
    a(f"v_bfe_u32 v{r1}, v{vl}, 1, 1")
    a(f"v_add_u32 v{t1}, v{t1}, v{r1}")
    a(f"v_bfe_u32 v{r1}, v{vl}, 3, 1")
    a(f"v_lshlrev_b32 v{r1}, 2, v{r1}")
    a(f"v_xor_b32 v{t1}, v{t1}, v{r1}")
    a(f"v_lshl_add_u32 v{t0}, v{t1}, 4, v{t0}")
    a(f"v_and_b32 v{t1}, 1, v{vl}")
    a(f"v_lshl_add_u32 v{r0}, v{t1}, 3, v{t0}")
    a(f"v_xor_b32 v{r1}, 64, v{r0}")

def gen_K1():
    global VST
    VST = 47
    a = Asm(); name = "k1_kernel"
    kernel_head(a, name, 256)
    a(f"s_load_dwordx4 s[4:7], s[0:1], {KA_X}")
    a(f"s_load_dwordx2 s[20:21], s[0:1], {KA_WS}")
    a("v_lshrrev_b32 v2, 6, v0")
    a("v_and_b32 v1, 63, v0")
    a("v_readfirstlane_b32 s22, v2")
    a("s_getpc_b64 s[32:33]")
    a.label("L_k1_pc")
    a("v_lshlrev_b32 v3, 6, v0")
    a("global_load_dword v8, v3, s[32:33]")
    a("s_add_u32 s34, s32, k2_kernel-L_k1_pc")
    a("s_addc_u32 s35, s33, 0")
    a("s_lshr_b32 s36, s2, 3")
    a("s_lshl_b32 s36, s36, 11")
    a("v_and_b32 v3, 31, v0")
    a("v_lshlrev_b32 v3, 6, v3")
    a("v_add_u32 v3, s36, v3")
    a("v_min_u32 v3, K2_CODE_BYTES, v3")
    a("global_load_dword v9, v3, s[34:35]")
    a("s_and_b32 s23, s2, 3")
    a("s_lshl_b32 s23, s23, 2")
    a("s_lshr_b32 s29, s2, 3")
    a("s_and_b32 s30, s29, 3")
    a("s_add_u32 s23, s23, s30")
    a("s_bfe_u32 s24, s2, 0x10002")
    a("s_lshl_b32 s24, s24, 3")
    a("s_lshr_b32 s30, s29, 2")
    a("s_add_u32 s24, s24, s30")
    a("s_lshl_b32 s25, s23, 17")
    a("s_lshl_b32 s30, s22, 15")
    a("s_add_u32 s25, s25, s30")
    JO = 0 if OPT.get("nojoff") else 5
    a(f"s_add_u32 s38, s24, {JO}"); a("s_and_b32 s38, s38, 15")
    a(f"s_add_u32 s39, s24, {2*JO}"); a("s_and_b32 s39, s39, 15")
    a("s_mul_i32 s30, s22, 49152")
    for t, sj in enumerate((24, 38, 39)):
        a(f"s_lshl_b32 s{70+t}, s{sj}, 6")
        a(f"s_add_u32 s{70+t}, s{70+t}, s30")
    SLOT = 28672; L0 = 1024
    a("s_lshl_b32 s27, s22, 12")
    a(f"s_add_u32 s27, s27, {L0}")
    a("s_lshl_b32 s28, s22, 10")
    a(f"s_add_u32 s28, s28, {L0 + 16384}")
    a("v_lshrrev_b32 v8, 3, v1") if False else None
    a("v_lshrrev_b32 v10, 3, v1")
    a("v_lshlrev_b32 v10, 10, v10")
    a("v_lshrrev_b32 v11, 4, v1")
    a("v_and_b32 v12, 7, v1")
    a("v_xor_b32 v11, v11, v12")
    for n in range(4):
        a(f"v_xor_b32 v12, {4*(n&1)}, v11")
        a(f"v_lshl_add_u32 v12, v12, 4, v10")
        a(f"v_add_u32 v{2+n}, {n*8192 - n*1024}, v12")
    a("v_lshrrev_b32 v10, 2, v1")
    a("s_movk_i32 s30, 3072")
    a("v_mul_lo_u32 v10, v10, s30")
    a("v_and_b32 v11, 3, v1")
    a("v_lshl_add_u32 v6, v11, 4, v10")
    a("s_waitcnt lgkmcnt(0)")
    srd(a, 8, 4, 2048 * 512 * 2)
    srd(a, 12, 6, 512 * 1536 * 2)
    srd(a, 16, 20, WS_SIZE)
    vm = VM(a); vm.op("code", 2)
    KORD = [0, 1, 2, 3, 4, 5, 6, 7] if OPT.get('nokord') else [0, 1, 2, 4, 5, 6, 7, 3]
    def dma_stage(s):
        for f in dma_singles(s): f()
    def dma_singles(s):
        slot = s % 5; out = []; kb = KORD[s]
        for n in range(4):
            def f(n=n):
                if n == 0:
                    a(f"s_add_u32 m0, s27, {slot*SLOT - kb*128}")
                    a("s_nop 0")
                a(f"buffer_load_dwordx4 v{2+n}, s[8:11], s25 offen offset:{kb*128 + n*1024} lds")
                vm.op(("st", s))
            out.append(f)
        for t in range(3):
            def f(t=t):
                a(f"s_add_u32 m0, s28, {slot*SLOT + t*4096 - t*1024}")
                a(f"s_add_u32 s29, s{70+t}, {kb*196608}")
                a(f"buffer_load_dwordx4 v6, s[12:15], s29 offen offset:{t*1024} lds")
                vm.op(("st", s))
            out.append(f)
        return out
    FILLF = 'sc1' if OPT.get('fillsc1') else ('' if OPT.get('fillplain') else 'nt')
    def fill_setup():
        for r in range(20, 24): a(f"v_mov_b32 v{r}, -1")
        a("v_lshlrev_b32 v24, 4, v1")
        a("v_lshlrev_b32 v25, 2, v1")
        a("s_lshl_b32 s36, s2, 13")
        a("s_lshl_b32 s33, s22, 11")
        a("s_add_u32 s36, s36, s33")
        a("s_lshl_b32 s37, s2, 10")
        a("s_lshl_b32 s33, s22, 8")
        a("s_add_u32 s37, s37, s33")
        a(f"s_add_u32 s37, s37, {WS_ST}")
    def fill(n):
        if n < 6:
            a(f"s_add_u32 s33, s36, {(WS_O, WS_HT, WS_U)[n >> 1]}")
            a(f"buffer_store_dwordx4 v[20:23], v24, s[16:19], s33 offen offset:{(n & 1)*1024} {FILLF}")
        else:
            a(f"buffer_store_dword v20, v25, s[16:19], s37 offen {FILLF}")
        vm.op("fill")
    for s in range(3): dma_stage(s)
    stamp(a, 1)
    a("v_and_b32 v10, 31, v1")
    a("v_lshrrev_b32 v11, 5, v1")
    a("v_bfe_u32 v16, v1, 1, 3")
    a("v_lshlrev_b32 v10, 7, v10")
    a("v_add_u32 v10, s27, v10")
    for ks in range(4):
        a(f"v_add_u32 v17, {2*ks}, v11")
        a("v_xor_b32 v17, v17, v16")
        a(f"v_lshl_add_u32 v{12+ks}, v17, 4, v10")
    a("v_bfe_u32 v10, v1, 2, 2")
    a("v_lshl_add_u32 v10, v11, 3, v10")
    a("v_lshlrev_b32 v10, 6, v10")
    a("v_bfe_u32 v16, v1, 4, 1")
    a("v_lshl_add_u32 v10, v16, 5, v10")
    a("v_and_b32 v16, 3, v1")
    a("v_lshl_add_u32 v10, v16, 3, v10")
    a(f"v_add_u32 v7, {L0 + 16384}, v10")
    a("s_lshl_b32 s30, s22, 10")
    a("v_add_u32 v11, s30, v7")
    FB = [128, 192]; CF = 48
    SUM = [60, 61]; SQ = [62, 63]; CS = [64, 65, 66, 67, 68, 69]
    ACC = [80, 96, 112]
    for r in SUM + SQ + CS: a(f"v_mov_b32 v{r}, 0")
    for b in ACC:
        for r in range(16): a(f"v_mov_b32 v{b+r}, 0")
    a(f"s_mov_b32 s31, {ONES:#x}")
    def rdx(ks, buf): a(f"ds_read_b128 {vr(FB[buf]+16*ks,4)}, v{12+ks}")
    def rdw(ks, buf, t):
        for q in range(2):
            a(f"ds_read_b64_tr_b16 {vr(FB[buf]+16*ks+4+4*t+2*q,2)}, v7 offset:{t*4096 + ks*1024 + q*256}")
    def creads():
        for t in range(3):
            for q in range(2):
                a(f"ds_read_b64_tr_b16 {vr(CF+4*t+2*q,2)}, v11 offset:{t*4096 + q*256}")
    def advance(s):
        d = ((s + 1) % 5 - s % 5) * SLOT
        for r in (12, 13, 14, 15, 7, 11):
            if d >= 0: a(f"v_add_u32 v{r}, {d}, v{r}")
            else: a(f"v_subrev_u32 v{r}, {-d}, v{r}")
    dma_stage(3)
    vm.wait(("st", 0))
    a("s_barrier")
    stamp(a, 2)
    for ks in range(4):
        if ks >= 2: a("s_waitcnt lgkmcnt(8)")
        rdx(ks, 0)
        for t in range(3): rdw(ks, 0, t)
    a("s_waitcnt lgkmcnt(9)")
    creads()
    dma_stage(4)
    for s_ in range(8):
        buf = s_ & 1; nb = buf ^ 1
        more = s_ < 7
        cstamp(a, 8 + 2*s_)
        a("s_waitcnt lgkmcnt(0)")
        if more:
            vm.wait(("st", s_ + 1))
            if not OPT.get("k1nobar"): a("s_barrier")
            cstamp(a, 9 + 2*s_)
            advance(s_)
        vq = dma_singles(s_ + 5) if s_ + 5 <= 7 else []
        if s_ == 2: fill_setup()
        if s_ == 3: vq = [lambda n=n: fill(n) for n in range(4)]
        if s_ == 4: vq = [lambda n=n: fill(n) for n in range(4, 7)]
        def pop():
            if vq: vq.pop(0)()
        for ks in range(4):
            x = FB[buf] + 16*ks
            mf = lambda t: a(f"{MF} {vr(ACC[t],16)}, {vr(x+4+4*t,4)}, {vr(x,4)}, {vr(ACC[t],16)}")
            mf(0)
            if more and not OPT.get("k1nord"):
                if ks >= 2: a("s_waitcnt lgkmcnt(8)")
                rdx(ks, nb); rdw(ks, nb, 0)
            mf(1)
            if more and not OPT.get("k1nord"): rdw(ks, nb, 1); rdw(ks, nb, 2)
            mf(2)
            pop()
            if ks == 0:
                for t in range(3 if not OPT.get("k1nocs") else 0):
                    for i in range(4):
                        a(f"v_dot2c_f32_bf16 v{CS[2*t+(i&1)]}, s31, v{CF+4*t+i}")
            for i in range(4 if not OPT.get("k1nodot") else 0):
                a(f"v_dot2c_f32_bf16 v{SUM[i&1]}, s31, v{x+i}")
                a(f"v_dot2c_f32_bf16 v{SQ[i&1]}, v{x+i}, v{x+i}")
                if i == 1: pop()
            if ks == 3 and more and not OPT.get("k1nocs"):
                a("s_waitcnt lgkmcnt(9)")
                creads()
        assert not vq
    stamp(a, 3)
    SCR = L0 + 5 * SLOT
    for t in range(3): a(f"v_add_f32 v{64+t*2}, v{64+t*2}, v{65+t*2}")
    for t in range(3): swap_add(a, 64 + 2*t, 72 + t)
    a("v_and_b32 v8, 31, v1")
    a("v_lshlrev_b32 v8, 2, v8")
    a("s_mul_i32 s30, s22, 384")
    a(f"s_add_u32 s30, s30, {SCR}")
    a("v_add_u32 v9, s30, v8")
    for t in range(3): a(f"ds_write_b32 v9, v{64+2*t} offset:{t*128}")
    a(f"v_add_f32 v60, v60, v61")
    a(f"v_add_f32 v62, v62, v63")
    swap_add(a, 60, 70); swap_add(a, 62, 71)
    a("s_waitcnt lgkmcnt(0)")
    a("s_barrier")
    a("v_lshlrev_b32 v10, 2, v1")
    a(f"v_add_u32 v10, {SCR}, v10")
    for w in range(4): a(f"ds_read_b32 v{64+w}, v10 offset:{w*384}")
    a(f"v_add_u32 v9, {SCR + 256}, v8")
    for w in range(4): a(f"ds_read_b32 v{68+w}, v9 offset:{w*384}")
    a(f"s_mov_b32 s30, {f2u(1.0/512):#x}")
    a("v_mul_f32 v60, s30, v60")
    a("v_mul_f32 v62, s30, v62")
    a("v_fma_f32 v62, -v60, v60, v62")
    a("v_max_f32 v62, 0, v62")
    a(f"v_add_f32 v62, {f2u(1e-5):#x}, v62")
    a("v_rsq_f32 v62, v62")
    a("v_sub_f32 v60, 0, v60")
    a("v_mov_b32 v61, v60")
    a("v_mov_b32 v63, v62")
    a(f"v_mul_f32 v74, {f2u(0.25*LOG2E):#x}, v62")
    a("v_mov_b32 v75, v74")
    a("s_waitcnt lgkmcnt(0)")
    a("v_add_f32 v64, v64, v65"); a("v_add_f32 v66, v66, v67"); a("v_add_f32 v68, v68, v69"); a("v_add_f32 v70, v70, v71")
    a("v_add_f32 v64, v64, v66"); a("v_add_f32 v68, v68, v70")
    a("s_lshl_b32 s30, s22, 9")
    a(f"s_add_u32 s30, s30, {SCR + 2048}")
    a("v_lshlrev_b32 v10, 2, v1")
    a("v_add_u32 v10, s30, v10")
    a("ds_write_b32 v10, v64")
    a("v_add_u32 v9, s30, v8")
    a("ds_write_b32 v9, v68 offset:256")
    a("v_lshrrev_b32 v9, 5, v1")
    a("v_lshlrev_b32 v9, 4, v9")
    a("v_add_u32 v9, s30, v9")
    a("s_waitcnt lgkmcnt(0)")
    CSR = 128
    for t in (2, 0, 1):
        for g in range(4):
            a(f"ds_read_b128 {vr(CSR+16*t+4*g,4)}, v9 offset:{t*128 + g*32}")
    IDS = 176
    emit_identity(a, IDS, 1, 76, 77, False)
    PK = 184
    QF = 'sc1' if OPT.get('qsc1') else ('nt' if OPT.get('qnt') else '')
    for n, t in enumerate((2, 0, 1)):
        a(f"s_waitcnt lgkmcnt({8 - 4*n})")
        for r in range(0, 16, 2):
            a(f"v_pk_fma_f32 {vr(ACC[t]+r,2)}, {vr(CSR+16*t+r,2)}, v[60:61], {vr(ACC[t]+r,2)}")
        sc = "v[74:75]" if t == 0 else "v[62:63]"
        for r in range(0, 16, 2):
            a(f"v_pk_mul_f32 {vr(ACC[t]+r,2)}, {vr(ACC[t]+r,2)}, {sc}")
        for i in range(8):
            a(f"v_cvt_pk_bf16_f32 v{PK+8*t+i}, v{ACC[t]+2*i}, v{ACC[t]+2*i+1}")
        if t == 2:
            a(f"{MF} {vr(208,16)}, {vr(PK+16,4)}, {vr(IDS,4)}, 0")
            a(f"{MF} {vr(208,16)}, {vr(PK+20,4)}, {vr(IDS+4,4)}, {vr(208,16)}")
        else:
            if t == 0:
                a("s_lshl_b32 s29, s23, 2")
                a("s_add_u32 s29, s29, s22")
                a("s_lshl_b32 s30, s24, 7")
                a("s_add_u32 s30, s30, s29")
                a("v_lshlrev_b32 v8, 4, v1")
                a("s_lshl_b32 s32, s30, 10")
                a(f"s_add_u32 s32, s32, {WS_Q}")
                a("s_add_u32 s33, s32, 65536")
                a(f"buffer_store_dwordx4 {vr(PK,4)}, v8, s[16:19], s32 offen {QF}")
                a(f"buffer_store_dwordx4 {vr(PK+4,4)}, v8, s[16:19], s33 offen {QF}")
            else:
                a("s_lshl_b32 s30, s38, 7")
                a("s_add_u32 s30, s30, s29")
                a("s_lshl_b32 s32, s30, 11")
                a(f"s_add_u32 s32, s32, {WS_KV}")
                a("s_add_u32 s33, s32, 131072")
                a(f"buffer_store_dwordx4 {vr(PK+8,4)}, v8, s[16:19], s32 offen {QF}")
                a(f"buffer_store_dwordx4 {vr(PK+12,4)}, v8, s[16:19], s33 offen {QF}")
    for i in range(8):
        a(f"v_cvt_pk_bf16_f32 v{PK+16+i}, v{208+2*i}, v{208+2*i+1}")
    a("v_bfe_u32 v9, v1, 4, 1")
    a("v_lshlrev_b32 v9, 17, v9")
    a("v_lshrrev_b32 v10, 5, v1")
    a("v_lshl_add_u32 v9, v10, 8, v9")
    a("v_and_b32 v10, 15, v1")
    a("v_lshl_add_u32 v9, v10, 4, v9")
    a("s_lshl_b32 s30, s39, 7")
    a("s_add_u32 s30, s30, s29")
    a("s_lshl_b32 s32, s30, 11")
    a(f"s_add_u32 s32, s32, {WS_KV}")
    a(f"buffer_store_dwordx4 {vr(PK+16,4)}, v9, s[16:19], s32 offen offset:1024 {QF}")
    a(f"buffer_store_dwordx4 {vr(PK+20,4)}, v9, s[16:19], s32 offen offset:1536 {QF}")
    stamp(a, 4)
    for t in range(2):
        for hd in range(2):
            r = 64 + 2*t + hd; b = ACC[t] + 8*hd
            a(f"v_mul_f32 v{r}, v{b}, v{b}")
    for i in range(1, 8):
        for t in range(2):
            for hd in range(2):
                r = 64 + 2*t + hd; b = ACC[t] + 8*hd
                a(f"v_fma_f32 v{r}, v{b+i}, v{b+i}, v{r}")
    for k in range(4): a(f"v_mov_b32 v{70+k}, v{64+k}")
    for k in range(4): a(f"v_permlane32_swap_b32 v{64+k}, v{70+k}")
    for k in range(4): a(f"v_add_f32 v{64+k}, v{64+k}, v{70+k}")
    for sh in (1, 2, 4, 8):
        for k in range(4):
            a(f"v_max_u32_dpp v{64+k}, v{64+k}, v{64+k} row_ror:{sh} row_mask:0xf bank_mask:0xf")
    a("s_lshl_b32 s32, s23, 3")
    a("s_lshl_b32 s33, s22, 1")
    a("s_add_u32 s32, s32, s33")
    a("s_lshl_b32 s33, s38, 8")
    a("s_add_u32 s33, s33, s32")
    a("s_lshl_b32 s33, s33, 2")
    a(f"s_add_u32 s33, s33, {WS_NRM + 16384}")
    a("s_lshl_b32 s30, s24, 8")
    a("s_add_u32 s32, s32, s30")
    a("s_lshl_b32 s32, s32, 2")
    a(f"s_add_u32 s32, s32, {WS_NRM}")
    a("v_lshrrev_b32 v10, 4, v1")
    a("v_lshlrev_b32 v10, 2, v10")
    a("s_mov_b32 exec_lo, 0x00010001")
    a("s_mov_b32 exec_hi, 0")
    for hd in range(2):
        a(f"buffer_store_dword v{64+hd}, v10, s[16:19], s32 offen offset:{hd*512}")
        a(f"buffer_store_dword v{66+hd}, v10, s[16:19], s33 offen offset:{hd*512}")
    a("s_mov_b64 exec, -1")
    kernel_tail(a, name, 0)
    return name, a.lines, 1024 + 5*SLOT + 4096

VH = 240
VB1 = 224
S_X, S_WO, S_W1, S_B1, S_W2, S_B2, S_OUT = 40, 44, 48, 50, 52, 54, 56

def arrive(a, s_off, tmpv=8):
    a("s_waitcnt vmcnt(0)")
    a("s_barrier")
    lab = a.uniq("arr")
    a("s_cmp_lg_u32 s22, 0")
    a(f"s_cbranch_scc1 {lab}")
    a(f"v_mov_b32 v{tmpv}, 0")
    a(f"v_mov_b32 v{tmpv+1}, 1")
    a("s_mov_b64 exec, 1")
    a(f"buffer_atomic_add v{tmpv+1}, v{tmpv}, s[16:19], {s_off} offen sc1")
    a("s_mov_b64 exec, -1")
    a.label(lab)

def await_cnt(a, s_off, n, tmpv=8):
    lab = a.uniq("pw"); done = a.uniq("pd")
    a("s_cmp_lg_u32 s22, 0")
    a(f"s_cbranch_scc1 {done}")
    a(f"v_mov_b32 v{tmpv}, 0")
    a(f"s_mov_b32 s37, {SPIN_MAX}")
    a.label(lab)
    a(f"buffer_load_dword v{tmpv+1}, v{tmpv}, s[16:19], {s_off} offen sc1")
    a("s_waitcnt vmcnt(0)")
    a(f"v_readfirstlane_b32 s38, v{tmpv+1}")
    a("s_sub_u32 s37, s37, 1")
    a("s_cmp_eq_u32 s37, 0")
    a(f"s_cbranch_scc1 {done}")
    a(f"s_cmp_lt_u32 s38, {n}")
    a(f"s_cbranch_scc1 {lab}")
    a.label(done)
    a("s_barrier")

def phase_B(a):
    name = "kb"
    a("s_and_b32 s23, s2, 31")
    a("s_lshr_b32 s24, s2, 5")
    a("s_lshr_b32 s25, s22, 1")
    a("s_and_b32 s26, s22, 1")
    Q = [4, 8, 12, 16]; KF = [20, 24]; VF = [[28, 32], [36, 40]]; S = [44, 60]; P = 76
    O = [84, 100, 116, 132]; NM = [148, 164, 180, 196]
    VK, VV, VPF1, VPF2, VDUM = 212, 213, 214, 215, 216
    a("s_lshl_b32 s28, s23, 9")
    a(f"s_add_u32 s28, s28, {WS_NRM}")
    a("v_lshlrev_b32 v3, 3, v1")
    a("s_add_u32 s29, s28, 16384")
    a("buffer_load_dwordx2 v[218:219], v3, s[16:19], s28 offen")
    a("buffer_load_dwordx2 v[220:221], v3, s[16:19], s29 offen")
    a("s_lshl_b32 s27, s24, 3")
    a("s_lshl_b32 s28, s25, 2")
    a("s_add_u32 s27, s27, s28")
    a("s_lshl_b32 s28, s27, 10")
    a("s_lshl_b32 s29, s23, 16")
    a("s_add_u32 s28, s28, s29")
    a(f"s_add_u32 s28, s28, {WS_Q}")
    for z in range(4):
        a(f"buffer_load_dwordx4 {vr(Q[z],4)}, v2, s[16:19], s28 offen offset:{z*1024}")
    a("s_lshl_b32 s31, s26, 16")
    a("s_lshl_b32 s28, s25, 13")
    a("s_add_u32 s31, s31, s28")
    a("s_lshl_b32 s30, s23, 17")
    a("s_add_u32 s30, s30, s31")
    a(f"s_add_u32 s30, s30, {WS_KV}")
    def dma_chunk():
        a("s_mov_b32 m0, s31")
        a("s_add_u32 s32, s30, 4096")
        for k in range(4): a(f"buffer_load_dwordx4 v2, s[16:19], s30 offen offset:{k*1024} lds")
        a("s_add_u32 m0, s31, 4096")
        a("s_add_u32 s30, s30, 16384")
        for k in range(4): a(f"buffer_load_dwordx4 v2, s[16:19], s32 offen offset:{k*1024} lds")
        a("s_add_u32 s31, s31, 16384")
    dma_chunk()
    tile_map_D(a, 33, 34)
    srd(a, 8, S_B1, 1792 * 2)
    a("v_lshrrev_b32 v3, 5, v1")
    a("v_lshlrev_b32 v3, 3, v3")
    a("s_lshl_b32 s35, s34, 7")
    a("s_lshl_b32 s36, s26, 6")
    a("s_add_u32 s35, s35, s36")
    for g in range(4):
        a(f"buffer_load_dwordx2 {vr(VB1+2*g,2)}, v3, s[8:11], s35 offen offset:{g*16}")
    tile_map_CE(a, 35, 36)
    srd(a, 12, S_B2, 2048 * 2)
    a("v_and_b32 v3, 31, v1")
    a("v_lshlrev_b32 v3, 1, v3")
    a("s_lshl_b32 s37, s36, 7")
    a("s_lshl_b32 s38, s25, 6")
    a("s_add_u32 s37, s37, s38")
    a(f"buffer_load_ushort v{VB1+8}, v3, s[12:15], s37 offen")
    a("s_lshl_b32 s37, s22, 8")
    a("v_add_u32 v3, s37, v1")
    a("v_lshrrev_b32 v217, 1, v3")
    a("v_and_b32 v3, 1, v3")
    a("v_lshlrev_b32 v3, 6, v3")
    a("s_and_b32 s37, s33, 3")
    a("s_lshl_b32 s37, s37, 9")
    a(f"v_add_u32 v{VPF1}, s37, v217")
    a("s_movk_i32 s38, 3584")
    a(f"v_mul_lo_u32 v{VPF1}, v{VPF1}, s38")
    a("s_lshl_b32 s37, s34, 7")
    a(f"v_add3_u32 v{VPF1}, v{VPF1}, s37, v3")
    a("s_and_b32 s37, s35, 3")
    a("s_mul_i32 s37, s37, 448")
    a(f"v_add_u32 v{VPF2}, s37, v217")
    a(f"v_lshlrev_b32 v{VPF2}, 12, v{VPF2}")
    a("s_lshl_b32 s37, s36, 7")
    a(f"v_add3_u32 v{VPF2}, v{VPF2}, s37, v3")
    srd(a, 8, S_W1, 2048 * 1792 * 2)
    srd(a, 12, S_W2, 1792 * 2048 * 2)
    srd(a, 4, S_WO, 512 * 512 * 2)
    VPF3 = 217
    a("s_lshl_b32 s37, s26, 8")
    a("s_lshl_b32 s38, s25, 5")
    a("s_add_u32 s37, s37, s38")
    a("v_lshrrev_b32 v3, 5, v1")
    a("v_lshlrev_b32 v3, 6, v3")
    a(f"v_and_b32 v{VPF3}, 31, v1")
    a(f"v_add3_u32 v{VPF3}, v{VPF3}, v3, s37")
    a(f"v_lshlrev_b32 v{VPF3}, 10, v{VPF3}")
    a("s_lshl_b32 s37, s35, 7")
    a(f"v_add_u32 v{VPF3}, s37, v{VPF3}")
    for r in range(28, 44): a(f"v_mov_b32 v{r}, {ONES:#x}")
    a("v_and_b32 v3, 31, v1")
    a("v_cmp_eq_u32 vcc, 16, v3")
    a("v_cmp_eq_u32 s[58:59], 20, v3")
    a("s_or_b64 vcc, vcc, s[58:59]")
    for r in range(28, 44): a(f"v_cndmask_b32 v{r}, 0, v{r}, vcc")
    for r in range(P, P + 8): a(f"v_mov_b32 v{r}, 0")
    for z in range(4):
        for r in range(16): a(f"v_mov_b32 v{O[z]+r}, 0")
    a("s_lshl_b32 s28, s26, 16")
    a(f"v_add_u32 v{VK}, s28, v2")
    a(f"v_lshrrev_b32 v{VV}, 5, v1")
    a(f"v_lshlrev_b32 v{VV}, 8, v{VV}")
    a("v_and_b32 v3, 15, v1")
    a(f"v_lshl_add_u32 v{VV}, v3, 4, v{VV}")
    a("s_add_u32 s28, s28, 1024")
    a(f"v_add_u32 v{VV}, s28, v{VV}")
    a("s_mov_b32 s58, 0x0000ffff"); a("s_mov_b32 s59, 0x0000ffff")
    a("s_waitcnt vmcnt(17)")
    a("v_max_u32 v218, v218, v219")
    a("v_max_u32 v220, v220, v221")
    for sh in (1, 2, 4, 8):
        a(f"v_max_u32_dpp v218, v218, v218 row_ror:{sh} row_mask:0xf bank_mask:0xf")
        a(f"v_max_u32_dpp v220, v220, v220 row_ror:{sh} row_mask:0xf bank_mask:0xf")
    for k, r in ((0, 218), (1, 220)):
        for row in range(4):
            a(f"v_readlane_b32 s{60+4*k+row}, v{r}, {16*row}")
    a("s_max_u32 s60, s60, s61"); a("s_max_u32 s62, s62, s63"); a("s_max_u32 s60, s60, s62")
    a("s_max_u32 s64, s64, s65"); a("s_max_u32 s66, s66, s67"); a("s_max_u32 s64, s64, s66")
    a("v_mov_b32 v218, s60")
    a("v_mul_f32 v218, s64, v218")
    a(f"s_mov_b32 s61, {f2u(1600.0/1.03):#x}")
    a("v_cmp_ge_f32 vcc, s61, v218")
    a("s_cmp_eq_u64 vcc, 0")
    a(f"s_cbranch_scc1 L_{name}_slow")
    MASK_ON = "s_mov_b64 exec, s[58:59]"
    def wo_dma():
        wtile_dma_voffs(a, 218, 1, 1024, 222, 223, 4)
        a("s_lshl_b32 s37, s26, 8")
        a("s_lshl_b32 s38, s25, 5")
        a("s_add_u32 s37, s37, s38")
        a("s_lshl_b32 s37, s37, 10")
        a("s_lshl_b32 s28, s35, 7")
        a("s_add_u32 s37, s37, s28")
        a("s_lshl_b32 s28, s26, 16")
        a("s_lshl_b32 s38, s38, 7")
        a("s_add_u32 s38, s38, s28")
        for cc in range(4):
            a(f"s_add_u32 m0, s38, {cc*8192}")
            a(f"s_add_u32 s28, s37, {cc*65536}")
            for n in range(4):
                a(f"buffer_load_dwordx4 v{218+n}, s[4:7], s28 offen offset:{n*1024} lds")
    def first_reads():
        a(f"ds_read_b128 {vr(KF[0],4)}, v{VK}")
        a(MASK_ON)
        a(f"ds_read_b128 {vr(VF[0][0],4)}, v{VV}")
        a(f"ds_read_b128 {vr(VF[0][1],4)}, v{VV} offset:512")
        a("s_mov_b64 exec, -1")
        a("s_waitcnt lgkmcnt(0)")
    def main_loop(tag, slow):
        C = (lambda z: vr(NM[z], 16)) if slow else (lambda z: "0")
        first_reads()
        a(f"{MF} {vr(S[0],16)}, {vr(KF[0],4)}, {vr(Q[0],4)}, {C(0)}")
        a("s_mov_b32 s39, 0")
        a.nop(12)
        a.lines.append(".p2align 6")
        a.label(f"L_{name}_{tag}_loop")
        if not slow: cstamp(a)
        if not slow and not OPT.get("nodma"):
            a("s_cmp_eq_u32 s39, 3")
            a(f"s_cbranch_scc1 L_{name}_wo")
            dma_chunk()
            a.label(f"L_{name}_back")
            if not OPT.get("nopf"):
                a(f"buffer_load_dword v{VDUM}, v{VPF1}, s[8:11], 0 offen")
                a(f"buffer_load_dword v{VDUM}, v{VPF2}, s[12:15], 0 offen")
                a(f"buffer_load_dword v{VDUM}, v{VPF3}, s[4:7], 0 offen")
        for t in range(8):
            for z in range(4):
                s = S[z & 1]; sn = S[(z + 1) & 1]
                pz = (z - 1) & 3; pt = t if z > 0 else t - 1
                nz = (z + 1) & 3; nt = t if z < 3 else t + 1
                e = lambda i: a(f"v_exp_f32 v{s+i}, v{s+i}")
                c = lambda i: a(f"v_cvt_pk_bf16_f32 v{P+i}, v{s+2*i}, v{s+2*i+1}")
                if z == 0 and t == 7 and not slow:
                    if not OPT.get("nobar"):
                        a(f"s_waitcnt vmcnt({0 if OPT.get('nopf') else 3})")
                        a("s_barrier")
                e(0); e(1)
                a(f"{MF} {vr(O[pz],16)}, {vr(VF[pt&1][1],4)}, {vr(P+4,4)}, {vr(O[pz],16)}")
                if z == 0: a(f"ds_read_b128 {vr(KF[(t+1)&1],4)}, v{VK} offset:{(t+1)*2048}")
                e(2); e(3)
                if z == 0:
                    a(MASK_ON)
                    a(f"ds_read_b128 {vr(VF[(t+1)&1][0],4)}, v{VV} offset:{(t+1)*2048}")
                    a(f"ds_read_b128 {vr(VF[(t+1)&1][1],4)}, v{VV} offset:{(t+1)*2048+512}")
                    a("s_mov_b64 exec, -1")
                e(4); e(5); e(6)
                if z == 3: a("s_waitcnt lgkmcnt(0)")
                a(f"{MF} {vr(sn,16)}, {vr(KF[nt&1],4)}, {vr(Q[nz],4)}, {C(nz)}")
                e(7); c(0); c(1); c(2); c(3); e(8); e(9); e(10)
                a(f"{MF} {vr(O[z],16)}, {vr(VF[t&1][0],4)}, {vr(P,4)}, {vr(O[z],16)}")
                e(11); e(12); e(13); e(14); e(15); c(4); c(5); c(6); c(7)
        a(f"v_add_u32 v{VK}, 0x4000, v{VK}")
        a(f"v_add_u32 v{VV}, 0x4000, v{VV}")
        if not slow:
            a(f"v_add_u32 v{VPF1}, {32*3584}, v{VPF1}")
            a(f"v_add_u32 v{VPF2}, {32*4096}, v{VPF2}")
            a(f"v_add_u32 v{VPF3}, {128*1024}, v{VPF3}")
        a("s_add_u32 s39, s39, 1")
        a("s_cmp_lt_u32 s39, 4")
        a(f"s_cbranch_scc1 L_{name}_{tag}_loop")
    a("s_waitcnt vmcnt(5)")
    a("s_barrier")
    stamp(a, 1)
    main_loop("f", False)
    cstamp(a, 24)
    a(f"s_branch L_{name}_fin")
    a.label(f"L_{name}_wo")
    wo_dma()
    a(f"s_branch L_{name}_back")
    a.label(f"L_{name}_slow")
    for c in range(3): dma_chunk()
    a("s_waitcnt vmcnt(0)")
    a("s_barrier")
    for z in range(4): a(f"v_mov_b32 v{218+z}, 0xff800000")
    a("s_mov_b32 s39, 0")
    a("v_mov_b32 v222, v2")
    a.label(f"L_{name}_p1")
    a(f"ds_read_b128 {vr(KF[0],4)}, v222")
    a("v_add_u32 v222, 0x800, v222")
    a("s_waitcnt lgkmcnt(0)")
    for zz in range(2):
        a(f"{MF} {vr(S[0],16)}, {vr(KF[0],4)}, {vr(Q[2*zz],4)}, 0")
        a(f"{MF} {vr(S[1],16)}, {vr(KF[0],4)}, {vr(Q[2*zz+1],4)}, 0")
        for z in range(2):
            for r in range(0, 16, 2):
                a(f"v_max3_f32 v{218+2*zz+z}, v{S[z]+r}, v{S[z]+r+1}, v{218+2*zz+z}")
    a("s_add_u32 s39, s39, 1")
    a("s_cmp_lt_u32 s39, 64")
    a(f"s_cbranch_scc1 L_{name}_p1")
    for z in range(4):
        a(f"v_mov_b32 v222, v{218+z}")
        a(f"v_permlane32_swap_b32 v{218+z}, v222")
        a(f"v_max_f32 v{218+z}, v{218+z}, v222")
        a(f"v_sub_f32 v{218+z}, 0, v{218+z}")
        for r in range(16): a(f"v_mov_b32 v{NM[z]+r}, v{218+z}")
    main_loop("s", True)
    a("s_barrier")
    wo_dma()
    a("s_waitcnt vmcnt(0)")
    a.label(f"L_{name}_fin")
    stamp(a, 2)
    a.nop(2)
    a(f"{MF} {vr(O[3],16)}, {vr(VF[1][1],4)}, {vr(P+4,4)}, {vr(O[3],16)}")
    SCR = 131072
    a("s_xor_b32 s28, s22, 1")
    a("s_mul_i32 s28, s28, 6144")
    a(f"s_add_u32 s28, s28, {SCR}")
    a("v_add_u32 v218, s28, v2")
    a("s_mul_i32 s28, s22, 6144")
    a(f"s_add_u32 s28, s28, {SCR}")
    a("v_add_u32 v219, s28, v2")
    a("s_lshl_b32 s29, s27, 15")
    a("s_lshl_b32 s28, s23, 10")
    a("s_add_u32 s29, s29, s28")
    a(f"s_add_u32 s29, s29, {WS_O}")
    a("s_cmp_eq_u32 s26, 0")
    a(f"s_cbranch_scc0 L_{name}_x1")
    for kh in range(2):
        if kh == 1: a.label(f"L_{name}_x1")
        a.nop(12)
        for n in range(2):
            z = 2 * (1 - kh) + n
            for g in range(3): a(f"ds_write_b128 v218, {vr(O[z]+4*g,4)} offset:{n*3072+g*1024}")
        a("s_waitcnt lgkmcnt(0)")
        a("s_barrier")
        for n in range(2):
            for g in range(3): a(f"ds_read_b128 {vr(S[0]+12*n+4*g,4)}, v219 offset:{n*3072+g*1024}")
        a("s_waitcnt lgkmcnt(0)")
        a("s_barrier")
        for n in range(2):
            z = 2 * kh + n
            for r in range(9): a(f"v_add_f32 v{O[z]+r}, v{O[z]+r}, v{S[0]+12*n+r}")
            a(f"v_rcp_f32 v220, v{O[z]+8}")
            a("s_nop 0")
            for r in range(8): a(f"v_mul_f32 v{O[z]+r}, v{O[z]+r}, v220")
            for i in range(4): a(f"v_cvt_pk_bf16_f32 v{P+4*n+i}, v{O[z]+2*i}, v{O[z]+2*i+1}")
            a(f"s_add_u32 s28, s29, {z*32768}")
            a(f"v_min_u32 v{P+4*n}, 0xfffffffe, v{P+4*n}")
            a(f"buffer_store_dwordx4 {vr(P+4*n,4)}, v2, s[16:19], s28 offen sc1")
        if kh == 0: a(f"s_branch L_{name}_x2")
    a.label(f"L_{name}_x2")
    stamp(a, 3)

class Stager:
    def __init__(s, a, vm, tag, srd_w, sglob, stride, voff, vrd, sring):
        s.a, s.vm, s.tag, s.srd, s.sglob, s.stride, s.voff, s.vrd, s.sring = a, vm, tag, srd_w, sglob, stride, voff, vrd, sring
    def issue_half(s, c, slot, hh):
        a = s.a
        a(f"s_add_u32 m0, {s.sring}, {slot*8192 + hh*4096}")
        a(f"s_add_u32 s34, {s.sglob}, {(c*64 + hh*32)*s.stride}")
        for n in range(4):
            a(f"buffer_load_dwordx4 v{s.voff+n}, {s.srd}, s34 offen offset:{n*1024} lds")
        s.vm.op((s.tag, c), 4)
    def issue(s, c, slot):
        s.issue_half(c, slot, 0); s.issue_half(c, slot, 1)
    def singles(s, c, slot):
        a = s.a; out = []
        for hh in range(2):
            for n in range(4):
                def f(hh=hh, n=n):
                    if n == 0:
                        a(f"s_add_u32 m0, {s.sring}, {slot*8192 + hh*4096}")
                        a(f"s_add_u32 s34, {s.sglob}, {(c*64 + hh*32)*s.stride}")
                    a(f"buffer_load_dwordx4 v{s.voff+n}, {s.srd}, s34 offen offset:{n*1024} lds")
                    s.vm.op((s.tag, c))
                out.append(f)
        return out
    def read_k(s, slot, areg, kk):
        for t in range(2):
            for q in range(2):
                s.a(f"ds_read_b64_tr_b16 {ar(areg+8*kk+4*t+2*q,2)}, v{s.vrd+t} offset:{slot*8192 + kk*2048 + q*1024}")
    def read(s, c, slot, areg, wait=True):
        if wait: s.vm.wait((s.tag, c))
        s.a("s_waitcnt lgkmcnt(0)")
        for kk in range(4):
            if kk == 3: s.a("s_waitcnt lgkmcnt(8)")
            s.read_k(slot, areg, kk)

S_DB, S_FB, S_CT, S_RB, S_W1G, S_W2G, S_RING = 70, 71, 72, 73, 74, 75, 80
V_W1, V_W2, V_RDL, V_RD = 4, 20, 24, 26

def k2_roles(a):
    tile_map_D(a, S_DB, S_FB)
    tile_map_CE(a, S_CT, S_RB)
    a(f"s_mul_i32 s{S_W1G}, s22, {512*3584}")
    a(f"s_lshl_b32 s69, s{S_FB}, 7")
    a(f"s_add_u32 s{S_W1G}, s{S_W1G}, s69")
    a(f"s_mul_i32 s{S_W2G}, s22, {448*4096}")
    a(f"s_lshl_b32 s69, s{S_RB}, 7")
    a(f"s_add_u32 s{S_W2G}, s{S_W2G}, s69")

def set_ring(a, expr_lines):
    for l in expr_lines: a(l)
    a(f"v_add_u32 v{V_RD}, s{S_RING}, v{V_RDL}")
    a(f"v_add_u32 v{V_RD+1}, s{S_RING}, v{V_RDL+1}")

def check_frags(a, regs, lab_retry, lab_ok):
    r = list(regs)
    a(f"v_max3_u32 v17, v{r[0]}, v{r[1]}, v{r[2]}")
    a(f"v_max3_u32 v18, v{r[3]}, v{r[4]}, v{r[5]}")
    k = 6; tg = 17
    while k < len(r):
        grp = r[k:k+2]
        if len(grp) == 2: a(f"v_max3_u32 v{tg}, v{tg}, v{grp[0]}, v{grp[1]}")
        else: a(f"v_max_u32 v{tg}, v{tg}, v{grp[0]}")
        tg = 35 - tg; k += 2
    a("v_max_u32 v17, v17, v18")
    a("v_cmp_eq_u32 vcc, -1, v17")
    a(f"s_cbranch_vccnz {lab_retry}")
    a.label(lab_ok)

def emit_retry(a, lab_retry, lab_ok, s_base_line, vprobe, reload_fn, regs):
    a.label(lab_retry)
    a(f"s_mov_b32 s37, {SPIN_MAX}")
    a(s_base_line)
    spin = lab_retry + "_spin"
    a.label(spin)
    a(f"buffer_load_dword v17, v{vprobe}, s[16:19], s38 offen sc1")
    a("s_waitcnt vmcnt(0)")
    a("v_cmp_eq_u32 vcc, -1, v17")
    a("s_sub_u32 s37, s37, 1")
    a("s_cmp_eq_u32 s37, 0")
    a(f"s_cbranch_scc1 {lab_ok}")
    a(f"s_cbranch_vccnz {spin}")
    reload_fn()
    a("s_waitcnt vmcnt(0)")
    check_frags(a, regs, spin, lab_ok + "_x")
    a(f"s_branch {lab_ok}")

def phase_C(a, vm, late):
    name = "kc"
    a(f"s_mov_b32 s23, s{S_CT}")
    a(f"s_mov_b32 s24, s{S_RB}")
    a("s_lshl_b32 s31, s24, 1")
    a("s_add_u32 s31, s31, s25")
    srd(a, 4, S_X, 2048 * 512 * 2)
    XF = 96
    a("v_and_b32 v8, 31, v1")
    a("v_lshlrev_b32 v8, 10, v8")
    a("v_lshrrev_b32 v9, 5, v1")
    a("v_lshl_add_u32 v8, v9, 4, v8")
    a("s_lshl_b32 s33, s31, 15")
    a("s_lshl_b32 s34, s23, 7")
    a("s_add_u32 s33, s33, s34")
    a("s_lshl_b32 s34, s26, 6")
    a("s_add_u32 s33, s33, s34")
    a(f"buffer_load_dwordx4 {vr(XF,4)}, v8, s[4:7], s33 offen")
    a(f"buffer_load_dwordx4 {vr(XF+4,4)}, v8, s[4:7], s33 offen offset:32")
    vm.op("x", 2)
    wtile_dma_voffs(a, V_W1, 1, 3584, 8, 9, 4)
    wtile_dma_voffs(a, V_W2, 1, 4096, 8, 9, 4)
    wtile_read_addrs(a, V_RDL, V_RDL+1, 1, 8, 9)
    set_ring(a, [f"s_lshl_b32 s{S_RING}, s26, 14", "s_lshl_b32 s69, s25, 16", f"s_add_u32 s{S_RING}, s{S_RING}, s69",
                 f"s_add_u32 s{S_RING}, s{S_RING}, 32768"])
    w1 = Stager(a, vm, "w1", "s[8:11]", f"s{S_W1G}", 3584, V_W1, V_RD, f"s{S_RING}")
    w1.issue(4, 0); w1.issue(5, 1)
    a("s_lshl_b32 s34, s26, 16")
    a(f"v_add_u32 v10, s34, v{V_RDL}")
    a(f"v_add_u32 v11, s34, v{V_RDL+1}")
    IDN = 104; IDS = 112
    ACC = [128, 144]; OF = 32
    for ks in range(16):
        if ks >= 3 and ks % 2 == 1: a("s_waitcnt lgkmcnt(6)")
        for t in range(2):
            for q in range(2):
                a(f"ds_read_b64_tr_b16 {ar(8*ks+4*t+2*q,2)}, v{10+t} offset:{ks*2048 + q*1024}")
    emit_identity(a, IDN, 1, 12, 13, True)
    emit_identity(a, IDS, 1, 12, 13, False)
    for b in ACC:
        for r in range(16): a(f"v_mov_b32 v{b+r}, 0")
    vm.wait("x")
    a("s_cmp_eq_u32 s26, 0")
    a(f"s_cbranch_scc1 L_{name}_r0")
    a(f"{MF} {vr(ACC[1],16)}, {vr(IDN,4)}, {vr(XF,4)}, {vr(ACC[1],16)}")
    a(f"{MF} {vr(ACC[1],16)}, {vr(IDN+4,4)}, {vr(XF+4,4)}, {vr(ACC[1],16)}")
    a(f"s_branch L_{name}_r1")
    a.label(f"L_{name}_r0")
    a.nop(2)
    a(f"{MF} {vr(ACC[0],16)}, {vr(IDN,4)}, {vr(XF,4)}, {vr(ACC[0],16)}")
    a(f"{MF} {vr(ACC[0],16)}, {vr(IDN+4,4)}, {vr(XF+4,4)}, {vr(ACC[0],16)}")
    a.label(f"L_{name}_r1")
    a("s_lshl_b32 s32, s31, 15")
    a("s_lshl_b32 s33, s26, 14")
    a("s_add_u32 s32, s32, s33")
    a(f"s_add_u32 s32, s32, {WS_O}")
    a("v_and_b32 v16, 15, v1")
    a("v_lshlrev_b32 v16, 10, v16")
    def oloads():
        for cc in range(4):
            a(f"s_add_u32 s33, s32, {cc*4096}")
            for k in range(4):
                a(f"buffer_load_dwordx4 {vr(OF+16*cc+4*k,4)}, v2, s[16:19], s33 offen offset:{k*1024} sc1")
    oregs = [OF + 4*k for k in range(16)]
    if OPT.get("cprobe"):
        a(f"s_mov_b32 s37, {SPIN_MAX}")
        a.label(f"L_{name}_probe")
        a("buffer_load_dword v9, v16, s[16:19], s32 offen sc1")
        a("s_waitcnt vmcnt(0)")
        a("v_cmp_eq_u32 vcc, -1, v9")
        a("s_sub_u32 s37, s37, 1")
        a("s_cmp_eq_u32 s37, 0")
        a(f"s_cbranch_scc1 L_{name}_load")
        a(f"s_cbranch_vccnz L_{name}_probe")
        a.label(f"L_{name}_load")
        vm.ops = []
        stamp(a, 4)
        oloads(); vm.op("o", 16)
        w1.read(4, 0, 128, wait=False); w1.read(5, 1, 160, wait=False)
        vm.wait("o")
        check_frags(a, oregs, f"L_{name}_retry", f"L_{name}_ok")
        late.append(lambda: emit_retry(a, f"L_{name}_retry", f"L_{name}_ok", "s_mov_b32 s38, s32", 16, oloads, oregs))
    else:
        w1.read(4, 0, 128); w1.read(5, 1, 160)
        a(f"s_mov_b32 s37, {SPIN_MAX}")
        a.label(f"L_{name}_spin")
        oloads()
        a("s_waitcnt vmcnt(0)")
        a("s_sub_u32 s37, s37, 1")
        a("s_cmp_eq_u32 s37, 0")
        a(f"s_cbranch_scc1 L_{name}_ok")
        check_frags(a, oregs, f"L_{name}_spin", f"L_{name}_ok")
        vm.ops = []
        stamp(a, 4)
    for ks in range(16):
        for t in range(2):
            a(f"{MF} {vr(ACC[t],16)}, {ar(8*ks+4*t,4)}, {vr(OF+4*ks,4)}, {vr(ACC[t],16)}")
    stamp(a, 5)
    SCR = 131072
    a("s_xor_b32 s34, s22, 1")
    a("s_lshl_b32 s34, s34, 12")
    a(f"s_add_u32 s34, s34, {SCR}")
    a("v_add_u32 v8, s34, v2")
    a("s_lshl_b32 s34, s22, 12")
    a(f"s_add_u32 s34, s34, {SCR}")
    a("v_add_u32 v9, s34, v2")
    H = VH
    a("s_cmp_eq_u32 s26, 0")
    a(f"s_cbranch_scc1 L_{name}_k0")
    for g in range(4): a(f"ds_write_b128 v8, {vr(ACC[0]+4*g,4)} offset:{g*1024}")
    for r in range(16): a(f"v_mov_b32 v{H+r}, v{ACC[1]+r}")
    a(f"s_branch L_{name}_k1")
    a.label(f"L_{name}_k0")
    a.nop(12)
    for g in range(4): a(f"ds_write_b128 v8, {vr(ACC[1]+4*g,4)} offset:{g*1024}")
    for r in range(16): a(f"v_mov_b32 v{H+r}, v{ACC[0]+r}")
    a.label(f"L_{name}_k1")
    a("s_waitcnt lgkmcnt(0)")
    a("s_barrier")
    for g in range(4): a(f"ds_read_b128 {vr(ACC[1]+4*g,4)}, v9 offset:{g*1024}")
    a("s_waitcnt lgkmcnt(0)")
    for r in range(16): a(f"v_add_f32 v{H+r}, v{H+r}, v{ACC[1]+r}")
    a(f"v_add_f32 v16, v{H}, v{H+1}")
    a(f"v_mul_f32 v17, v{H}, v{H}")
    a(f"v_add_f32 v18, v{H+2}, v{H+3}")
    a(f"v_mul_f32 v19, v{H+2}, v{H+2}")
    a(f"v_fma_f32 v17, v{H+1}, v{H+1}, v17")
    a(f"v_fma_f32 v19, v{H+3}, v{H+3}, v19")
    for r in range(4, 16, 2):
        a(f"v_add_f32 v16, v16, v{H+r}")
        a(f"v_fma_f32 v17, v{H+r}, v{H+r}, v17")
        a(f"v_add_f32 v18, v18, v{H+r+1}")
        a(f"v_fma_f32 v19, v{H+r+1}, v{H+r+1}, v19")
    a("v_add_f32 v16, v16, v18")
    a("v_add_f32 v17, v17, v19")
    a("v_mov_b32 v18, v16"); a("v_mov_b32 v19, v17")
    a("v_permlane32_swap_b32 v16, v18"); a("v_permlane32_swap_b32 v17, v19")
    a("v_add_f32 v16, v16, v18"); a("v_add_f32 v17, v17, v19")
    a("v_min_u32 v16, 0xfffffffe, v16")
    a("v_min_u32 v17, 0xfffffffe, v17")
    a("s_lshl_b32 s34, s31, 12")
    a(f"s_add_u32 s39, s34, {WS_ST}")
    a("s_lshl_b32 s35, s23, 1")
    a("s_add_u32 s35, s35, s26")
    a("s_lshl_b32 s35, s35, 8")
    a("s_add_u32 s35, s35, s39")
    a("v_and_b32 v8, 31, v1")
    a("v_lshlrev_b32 v8, 3, v8")
    a("s_mov_b32 exec_hi, 0")
    a("buffer_store_dwordx2 v[16:17], v8, s[16:19], s35 offen sc0 sc1")
    a("s_mov_b64 exec, -1")
    vm.op("st")
    if OPT.get("dbgH"):
        for i in range(8): a(f"v_cvt_pk_bf16_f32 v{48+i}, v{H+2*i}, v{H+2*i+1}")
        a("s_lshl_b32 s36, s24, 3"); a("s_add_u32 s36, s36, s23"); a("s_lshl_b32 s36, s36, 2")
        a("s_add_u32 s36, s36, s22"); a("s_lshl_b32 s36, s36, 11"); a(f"s_add_u32 s36, s36, {WS_H}")
        a(f"buffer_store_dwordx4 {vr(48,4)}, v2, s[16:19], s36 offen")
        a(f"buffer_store_dwordx4 {vr(52,4)}, v2, s[16:19], s36 offen offset:1024")
        vm.op("dbg", 2)
    w1.issue(6, 0); w1.issue(7, 1)
    a("v_lshrrev_b32 v9, 5, v1")
    a("v_lshl_add_u32 v8, v9, 11, v8")
    a(f"s_mov_b32 s37, {SPIN_MAX}")
    a.label(f"L_{name}_poll")
    for p in range(8):
        a(f"buffer_load_dwordx2 {vr(32+2*p,2)}, v8, s[16:19], s39 offen offset:{p*256} sc0 sc1")
    a("s_waitcnt vmcnt(0)")
    a("v_max_u32 v48, v32, v33")
    for p in range(1, 8):
        a(f"v_max3_u32 v48, v{32+2*p}, v{33+2*p}, v48")
    a("v_cmp_eq_u32 vcc, -1, v48")
    a("s_sub_u32 s37, s37, 1")
    a("s_cmp_eq_u32 s37, 0")
    a(f"s_cbranch_scc1 L_{name}_go")
    a(f"s_cbranch_vccnz L_{name}_poll")
    a.label(f"L_{name}_go")
    vm.ops = []
    stamp(a, 6)
    for st in (4, 2, 1):
        for p in range(st):
            a(f"v_add_f32 v{32+2*p}, v{32+2*p}, v{32+2*(p+st)}")
            a(f"v_add_f32 v{33+2*p}, v{33+2*p}, v{33+2*(p+st)}")
    a("v_mov_b32 v34, v32"); a("v_mov_b32 v35, v33")
    a("v_permlane32_swap_b32 v32, v34"); a("v_permlane32_swap_b32 v33, v35")
    a("v_add_f32 v32, v32, v34"); a("v_add_f32 v33, v33, v35")
    a(f"s_mov_b32 s30, {f2u(1.0/512):#x}")
    a("v_mul_f32 v32, s30, v32")
    a("v_mul_f32 v33, s30, v33")
    a("v_fma_f32 v33, -v32, v32, v33")
    a("v_max_f32 v33, 0, v33")
    a(f"v_add_f32 v34, {f2u(1e-5):#x}, v33")
    a("v_rsq_f32 v34, v34")
    a("s_nop 0")
    a("v_mul_f32 v35, v33, v34")
    a("v_mul_f32 v35, v35, v34")
    a(f"v_add_f32 v35, {f2u(1e-5):#x}, v35")
    a("v_rsq_f32 v35, v35")
    a("s_nop 0")
    a("v_mul_f32 v34, v34, v35")
    a("v_mul_f32 v36, v32, v34")
    a("v_sub_f32 v36, 0, v36")
    a("v_mov_b32 v35, v34")
    a("v_mov_b32 v37, v36")
    N = 160
    for r in range(0, 16, 2):
        a(f"v_pk_fma_f32 {vr(N+r,2)}, {vr(H+r,2)}, v[34:35], v[36:37]")
    for i in range(8): a(f"v_cvt_pk_bf16_f32 v{40+i}, v{N+2*i}, v{N+2*i+1}")
    T = ACC[1]
    a(f"{MF} {vr(T,16)}, {vr(40,4)}, {vr(IDS,4)}, 0")
    a(f"{MF} {vr(T,16)}, {vr(44,4)}, {vr(IDS+4,4)}, {vr(T,16)}")
    a("s_lshl_b32 s35, s23, 1")
    a("s_add_u32 s35, s35, s26")
    a("s_lshl_b32 s35, s35, 7")
    a("s_lshl_b32 s36, s31, 1")
    a("s_add_u32 s35, s35, s36")
    a("s_lshl_b32 s35, s35, 10")
    a(f"s_add_u32 s35, s35, {WS_HT}")
    for i in range(8): a(f"v_cvt_pk_bf16_f32 v{48+i}, v{T+2*i}, v{T+2*i+1}")
    a("v_min_u32 v48, 0xfffffffe, v48")
    a("v_min_u32 v52, 0xfffffffe, v52")
    a(f"buffer_store_dwordx4 {vr(48,4)}, v2, s[16:19], s35 offen sc1")
    a(f"buffer_store_dwordx4 {vr(52,4)}, v2, s[16:19], s35 offen offset:1024 sc1")
    vm.op("ht", 2)
    w1.read(6, 0, 192, wait=False)
    w1.read(7, 1, 224, wait=False)
    a("s_waitcnt lgkmcnt(0)")
    a("s_barrier")
    set_ring(a, [f"s_mul_i32 s{S_RING}, s22, 24576"])
    stamp(a, 7)

AF0 = 32; ACC0 = 160; INBOX = 98304
class ActStream:
    def __init__(s, a, vm, name, s_act, stride, late):
        s.a, s.vm, s.name, s.s_act, s.stride, s.late = a, vm, name, s_act, stride, late
        a("v_bfe_u32 v16, v1, 2, 1")
        a(f"s_mov_b32 s69, {stride}")
        a("v_mul_lo_u32 v16, v16, s69")
        a("v_and_b32 v17, 3, v1")
        a("v_lshl_add_u32 v16, v17, 10, v16")
    def loads(s, b, part=None, sr0=35):
        a = s.a; fb = AF0 + (b % 4) * 32
        if part in (None, 0):
            a(f"s_add_u32 s{sr0}, {s.s_act}, {b*4096}")
            a(f"s_add_u32 s{sr0+1}, s{sr0}, {s.stride}")
        for kk in (range(4) if part is None else [part]):
            a(f"buffer_load_dwordx4 {vr(fb+8*kk,4)}, v2, s[16:19], s{sr0} offen offset:{kk*1024} sc1")
            a(f"buffer_load_dwordx4 {vr(fb+8*kk+4,4)}, v2, s[16:19], s{sr0+1} offen offset:{kk*1024} sc1")
    def issue(s, b, part=None):
        s.loads(b, part); s.vm.op(("a", b), 8 if part is None else 2)
    def singles(s, b):
        a = s.a; fb = AF0 + (b % 4) * 32
        out = []
        for kk in range(4):
            for t in range(2):
                def f(kk=kk, t=t):
                    if kk == 0 and t == 0:
                        a(f"s_add_u32 s35, {s.s_act}, {b*4096}")
                        a(f"s_add_u32 s36, s35, {s.stride}")
                    a(f"buffer_load_dwordx4 {vr(fb+8*kk+4*t,4)}, v2, s[16:19], s{35+t} offen offset:{kk*1024} sc1")
                    s.vm.op(("a", b))
                out.append(f)
        return out
    def spin_first(s):
        a = s.a
        lab = f"L_{s.name}_first"
        a(f"s_mov_b32 s37, {SPIN_MAX}")
        a.label(lab)
        s.loads(0); s.loads(1)
        a("s_waitcnt vmcnt(8)")
        a("s_sub_u32 s37, s37, 1")
        a("s_cmp_eq_u32 s37, 0")
        a(f"s_cbranch_scc1 {lab}_ok")
        check_frags(a, [AF0 + 4*i for i in range(8)], lab + "_again", lab + "_ok")
        s.late.append(lambda: (a.label(lab + "_again"), a("s_waitcnt vmcnt(0)"), a("s_sleep 1"), a(f"s_branch {lab}")))
        s.vm.ops = [("a", 1)] * 8
    def probe_all(s, nk):
        a = s.a
        a("v_and_b32 v18, 1, v1")
        a(f"v_mul_lo_u32 v18, v18, s69")
        a("v_lshrrev_b32 v17, 1, v1")
        a(f"v_min_u32 v17, {nk-1}, v17")
        a("v_lshl_add_u32 v19, v17, 10, v18")
        lab = f"L_{s.name}_pall"
        a(f"s_mov_b32 s37, {SPIN_MAX}")
        a.label(lab)
        a(f"buffer_load_dword v17, v19, s[16:19], {s.s_act} offen sc1")
        a("s_waitcnt vmcnt(0)")
        a("v_cmp_eq_u32 vcc, -1, v17")
        a("s_sub_u32 s37, s37, 1")
        a("s_cmp_eq_u32 s37, 0")
        a(f"s_cbranch_scc1 {lab}_done")
        a(f"s_cbranch_vccnz {lab}")
        a.label(lab + "_done")
        s.vm.ops = []
    def check(s, b):
        s.vm.wait(("a", b))
        fb = AF0 + (b % 4) * 32
        regs = [fb + 4*i for i in range(8)]
        lr, lo = f"L_{s.name}_retry{b}", f"L_{s.name}_ok{b}"
        check_frags(s.a, regs, lr, lo)
        s.late.append(lambda: emit_retry(s.a, lr, lo, f"s_add_u32 s38, {s.s_act}, {b*4096}", 16, lambda: s.loads(b, None, 81), regs))

def gemm_main(a, act, nb, w_is_A, extra):
    for b in range(nb):
        cstamp(a, (30 if w_is_A else 40) + b)
        fb = AF0 + (b % 4) * 32
        q = []
        if b + 3 < nb: q += act.singles(b + 3)
        q += extra.get(b, [])
        for kk in range(4):
            for n, (t0, t1) in enumerate(((0, 0), (0, 1), (1, 0), (1, 1))):
                w = ar((4*b+kk)*8 + 4*t0, 4); x = vr(fb + 8*kk + 4*t1, 4)
                qd = t1*2 + t0 if w_is_A else t0*2 + t1
                acc = vr(ACC0 + 16*qd, 16)
                if w_is_A: a(f"{MF} {acc}, {w}, {x}, {acc}")
                else: a(f"{MF} {acc}, {x}, {w}, {acc}")
                if n in (0, 2) and q: q.pop(0)()
                if n == 3 and kk == 2 and b + 1 < nb: act.check(b + 1)
        assert not q
    cstamp(a, (30 if w_is_A else 40) + nb)

def quad_write(a):
    for qd in range(4):
        a(f"s_lshl_b32 s34, s22, 12")
        a(f"s_add_u32 s34, s34, {INBOX + qd*16384}")
        a("v_add_u32 v8, s34, v2")
        for g in range(4): a(f"ds_write_b128 v8, {vr(ACC0+16*qd+4*g,4)} offset:{g*1024}")
    a("s_lshl_b32 s34, s22, 14")
    a(f"s_add_u32 s34, s34, {INBOX}")
    a("v_add_u32 v9, s34, v2")
    a("s_waitcnt lgkmcnt(0)")
    a("s_barrier")
def quad_read(a, OUT):
    R = [OUT, 32, 48, 64]
    for src in range(4):
        if src == 3: a("s_waitcnt lgkmcnt(8)")
        for g in range(4): a(f"ds_read_b128 {vr(R[src]+4*g,4)}, v9 offset:{src*4096+g*1024}")
    a("s_waitcnt lgkmcnt(8)")
    for r in range(16): a(f"v_add_f32 v{OUT+r}, v{OUT+r}, v{R[1]+r}")
    a("s_waitcnt lgkmcnt(0)")
    for r in range(16): a(f"v_add_f32 v{R[2]+r}, v{R[2]+r}, v{R[3]+r}")
    for r in range(16): a(f"v_add_f32 v{OUT+r}, v{OUT+r}, v{R[2]+r}")

def phase_DE(a, vm, late):
    name = "kd"
    w1 = Stager(a, vm, "w1", "s[8:11]", f"s{S_W1G}", 3584, V_W1, V_RD, f"s{S_RING}")
    w2 = Stager(a, vm, "w2", "s[12:15]", f"s{S_W2G}", 4096, V_W2, V_RD, f"s{S_RING}")
    a("s_cmp_ge_u32 s2, 224")
    a(f"s_cbranch_scc1 L_{name}_skip")
    w1.issue(0, 0); w1.issue(1, 1); w1.issue(2, 2)
    a(f"s_lshl_b32 s32, s{S_DB}, 18")
    a("s_lshl_b32 s33, s22, 15")
    a("s_add_u32 s32, s32, s33")
    a(f"s_add_u32 s32, s32, {WS_HT}")
    act = ActStream(a, vm, "kd", "s32", 131072, late)
    for r in range(64): a(f"v_mov_b32 v{ACC0+r}, 0")
    stamp(a, 8)
    w1.read(0, 0, 0)
    a("s_waitcnt lgkmcnt(0)")
    w1.issue(3, 0)
    if OPT.get("probeall"):
        act.probe_all(32)
        act.issue(0); act.issue(1); act.issue(2)
        w1.read(1, 1, 32, wait=False); w1.read(2, 2, 64, wait=False); w1.read(3, 0, 96, wait=False)
        act.check(0)
    else:
        w1.read(1, 1, 32); w1.read(2, 2, 64); w1.read(3, 0, 96)
        act.spin_first()
        act.issue(2)
    a("s_waitcnt lgkmcnt(0)")
    stamp(a, 9)
    gemm_main(a, act, 8, True, {5: w2.singles(0, 0), 6: w2.singles(1, 1), 7: w2.singles(2, 2)})
    stamp(a, 10)
    U = 128
    quad_write(a)
    quad_read(a, U)
    for g in range(4):
        for i in range(2):
            r = VB1 + 2*g + i
            a(f"v_lshlrev_b32 v{184+4*g+2*i}, 16, v{r}")
            a(f"v_and_b32 v{185+4*g+2*i}, 0xffff0000, v{r}")
    for r in range(16): a(f"v_add_f32 v{U+r}, v{U+r}, v{184+r}")
    kk = -2.0 * 0.7978845608028654 * LOG2E
    a(f"s_mov_b32 s36, {f2u(kk*0.044715):#x}")
    a(f"s_mov_b32 s37, {f2u(kk):#x}")
    T = 184
    a("v_mov_b32 v16, s37")
    for r in range(16): a(f"v_mul_f32 v{T+r}, v{U+r}, v{U+r}")
    for r in range(16): a(f"v_fma_f32 v{T+r}, v{T+r}, s36, v16")
    for r in range(16): a(f"v_mul_f32 v{T+r}, v{T+r}, v{U+r}")
    for r in range(16): a(f"v_exp_f32 v{T+r}, v{T+r}")
    for r in range(16): a(f"v_add_f32 v{T+r}, 1.0, v{T+r}")
    for r in range(16): a(f"v_rcp_f32 v{T+r}, v{T+r}")
    for r in range(16): a(f"v_mul_f32 v{U+r}, v{U+r}, v{T+r}")
    for i in range(8): a(f"v_cvt_pk_bf16_f32 v{48+i}, v{U+2*i}, v{U+2*i+1}")
    a(f"s_lshl_b32 s31, s{S_DB}, 1")
    a("s_lshr_b32 s36, s22, 1")
    a("s_add_u32 s31, s31, s36")
    a("s_mul_i32 s35, s31, 112")
    a(f"s_lshl_b32 s36, s{S_FB}, 2")
    a("s_add_u32 s35, s35, s36")
    a("s_and_b32 s36, s22, 1")
    a("s_lshl_b32 s36, s36, 1")
    a("s_add_u32 s35, s35, s36")
    a("s_lshl_b32 s35, s35, 10")
    a(f"s_add_u32 s35, s35, {WS_U}")
    a("v_min_u32 v48, 0xfffffffe, v48")
    a("v_min_u32 v52, 0xfffffffe, v52")
    a(f"buffer_store_dwordx4 {vr(48,4)}, v2, s[16:19], s35 offen sc1")
    a(f"buffer_store_dwordx4 {vr(52,4)}, v2, s[16:19], s35 offen offset:1024 sc1")
    vm.op("u", 2)
    a("s_barrier")
    stamp(a, 11)
    w2.read(0, 0, 0); w2.read(1, 1, 32); w2.read(2, 2, 64)
    a("s_waitcnt lgkmcnt(0)")
    w2.issue(3, 0); w2.issue(4, 1); w2.issue(5, 2)
    a(f"s_branch L_{name}_join")
    a.label(f"L_{name}_skip")
    vm2 = VM(a)
    w2b = Stager(a, vm2, "w2", "s[12:15]", f"s{S_W2G}", 4096, V_W2, V_RD, f"s{S_RING}")
    w2b.issue(0, 0); w2b.issue(1, 1); w2b.issue(2, 2)
    w2b.read(0, 0, 0); w2b.read(1, 1, 32); w2b.read(2, 2, 64)
    a("s_waitcnt lgkmcnt(0)")
    w2b.issue(3, 0); w2b.issue(4, 1); w2b.issue(5, 2)
    a.label(f"L_{name}_join")
    name = "ke"
    a(f"s_mov_b32 s23, s{S_CT}")
    a(f"s_mov_b32 s24, s{S_RB}")
    srd(a, 4, S_OUT, 2048 * 512 * 2)
    a("s_mul_i32 s32, s23, 2*112*1024")
    a("s_mul_i32 s33, s22, 28*1024")
    a("s_add_u32 s32, s32, s33")
    a(f"s_add_u32 s32, s32, {WS_U}")
    act = ActStream(a, vm, "ke", "s32", 112*1024, late)
    for r in range(64): a(f"v_mov_b32 v{ACC0+r}, 0")
    stamp(a, 12)
    w2.read(3, 0, 96)
    a("s_waitcnt lgkmcnt(0)")
    w2.issue(6, 0)
    if OPT.get("probeall"):
        act.probe_all(28)
        act.issue(0); act.issue(1); act.issue(2)
        w2.read(4, 1, 128, wait=False); w2.read(5, 2, 160, wait=False); w2.read(6, 0, 192, wait=False)
        act.check(0)
    else:
        w2.read(4, 1, 128); w2.read(5, 2, 160); w2.read(6, 0, 192)
        act.spin_first()
        act.issue(2)
    a("s_waitcnt lgkmcnt(0)")
    stamp(a, 13)
    gemm_main(a, act, 7, False, {})
    stamp(a, 14)
    Y = 128
    quad_write(a)
    quad_read(a, Y)
    a(f"v_lshlrev_b32 v184, 16, v{VB1+8}")
    for r in range(16): a(f"v_add_f32 v{Y+r}, v{Y+r}, v{VH+r}")
    for r in range(16): a(f"v_add_f32 v{Y+r}, v{Y+r}, v184")
    for i in range(8): a(f"v_cvt_pk_bf16_f32 v{48+i}, v{Y+2*i}, v{Y+2*i+1}")
    a("v_and_b32 v8, 31, v1")
    a("v_lshlrev_b32 v8, 10, v8")
    a("v_lshrrev_b32 v9, 5, v1")
    a("v_lshl_add_u32 v8, v9, 4, v8")
    a("v_permlane32_swap_b32 v48, v50"); a("v_permlane32_swap_b32 v49, v51")
    a("v_permlane32_swap_b32 v52, v54"); a("v_permlane32_swap_b32 v53, v55")
    a("s_lshl_b32 s35, s24, 1")
    a("s_lshr_b32 s36, s22, 1")
    a("s_add_u32 s35, s35, s36")
    a("s_lshl_b32 s35, s35, 15")
    a("s_lshl_b32 s36, s23, 1")
    a("s_and_b32 s33, s22, 1")
    a("s_add_u32 s36, s36, s33")
    a("s_lshl_b32 s36, s36, 6")
    a("s_add_u32 s35, s35, s36")
    a(f"buffer_store_dwordx4 {vr(48,4)}, v8, s[4:7], s35 offen")
    a(f"buffer_store_dwordx4 {vr(52,4)}, v8, s[4:7], s35 offen offset:32")

def gen_K2():
    global VST
    VST = 239
    a = Asm(); name = "k2_kernel"
    cnt = [0]
    def uniq(p):
        cnt[0] += 1
        return f"L_{p}{cnt[0]}"
    a.uniq = uniq
    kernel_head(a, name, 256)
    a("s_load_dwordx16 s[40:55], s[0:1], 0")
    a(f"s_load_dwordx2 s[56:57], s[0:1], {KA_OUT}")
    a(f"s_load_dwordx2 s[20:21], s[0:1], {KA_WS}")
    a("v_lshrrev_b32 v2, 6, v0")
    a("v_and_b32 v1, 63, v0")
    a("v_readfirstlane_b32 s22, v2")
    a("v_lshlrev_b32 v2, 4, v1")
    a("s_waitcnt lgkmcnt(0)")
    srd(a, 16, 20, WS_SIZE)
    k2_roles(a)
    phase_B(a)
    vm = VM(a); late = []
    vm.op("ostore", 2)
    phase_C(a, vm, late)
    phase_DE(a, vm, late)
    a(f"s_branch L_{name}_fin")
    for f in late: f()
    a.label(f"L_{name}_fin")
    kernel_tail(a, name, 1)
    a.label("L_k2_code_end")
    return name, a.lines, 163840

def build(path):
    ks = [gen_K1(), gen_K2()]
    ref = open("cdna_kernels/" + NAME + ".s.ref").read().split("\n")
    hdr = [l for l in ref if l.startswith(";") and "@launch" not in l and not l.startswith("; Override") and not l.startswith("; grid=")]
    out = list(hdr)
    for name, lines, lds in ks:
        out.append(f"; @launch kernel={name} grid=(256,1,1) block=(256,1,1) lds={lds}")
    out.append('.amdgcn_target "amdgcn-amd-amdhsa--gfx950"')
    out.append(".text")
    tot = 0; body = []
    for name, lines, lds in ks:
        fixed, n = fix_hazards(lines)
        tot += n
        for p in check_backedges(fixed): print("BACKEDGE HAZARD", name, p)
        if name == "k2_kernel":
            k2size = sum(ins_sizes([l for l in fixed]))
        for l in fixed:
            body.append(l if (l.endswith(":") or l.startswith(".")) else "    " + l)
    k2size = (k2size + 63) // 64 * 64
    out.append(f".set K2_CODE_BYTES, {k2size - 128}")
    out += body
    out.append('.section .rodata,"a"')
    for name, lines, lds in ks:
        out.append(".p2align 6")
        out.append(kd(name, 512, 256) if name == "k2_kernel" else kd(name))
    open(path, "w").write("\n".join(out) + "\n")
    print("wrote", path, "nops inserted:", tot, "k2 code bytes", k2size)

if __name__ == "__main__":
    args = sys.argv[2:]
    if "stamp" in args: STAMP = True
    for o in args: OPT[o] = 1
    build(sys.argv[1] if len(sys.argv) > 1 else "cdna_kernels/" + NAME + ".s")
```
